```python
import torch

def _softmax(x, axis=-1):
    return torch.softmax(x, dim=axis)
def _gelu(x):
    return torch.nn.functional.gelu(x, approximate="tanh")
def _silu(x):
    return torch.nn.functional.silu(x)
def _sigmoid(x):
    return torch.sigmoid(x)
def _layernorm(x, axis=-1, eps=1e-5):
    m = x.mean(dim=axis, keepdim=True)
    v = x.var(dim=axis, keepdim=True, unbiased=False)
    return (x - m) / torch.sqrt(v + eps)
def _scatter_add(tgt, idx, src, axis=0):
    return tgt.clone().index_add_(axis, idx, src)
def _segment_sum(src, seg, n):
    out = torch.zeros((n,) + src.shape[1:], dtype=src.dtype)
    return out.index_add_(0, seg, src)
def _pad(x, pw):
    flat = tuple(v for pair in reversed(pw) for v in pair)
    return torch.nn.functional.pad(x, flat)

kernel_name = 'concat_heads__mha_block__sliding_block__prompt'

def setup_inputs():

    _w = (lambda a: (lambda t: t.to(torch.bfloat16) if t.is_floating_point() else t)(torch.as_tensor(a)))
    def _A_setup():
        B, S, D, H = 1, 2048, 576, 32
        return {
            "x": _w((lambda *s: torch.randn(*s, dtype=torch.bfloat16) * 0.2)(B, S, D)),
            "wqkv": _w((lambda *s: torch.randn(*s, dtype=torch.bfloat16) * 0.4)(D, 3 * D)),
            "wo": _w((lambda *s: torch.randn(*s, dtype=torch.bfloat16) * 0.1)(D, D)),
        }
    _A_in = _A_setup()

    def _B_setup():
        B, S, D = 1, 2048, 576
        return {
            "x": _w((lambda *s: torch.randn(*s, dtype=torch.bfloat16) * 0.4)(B, S, D)),
            "wqkv": _w((lambda *s: torch.randn(*s, dtype=torch.bfloat16) * 0.4)(D, 3 * D)),
            "wo": _w((lambda *s: torch.randn(*s, dtype=torch.bfloat16) * 0.05)(D, D)),
        }
    _B_in = _B_setup()

    return {
        "A_x": _A_in["x"],
        "A_wqkv": _A_in["wqkv"],
        "A_wo": _A_in["wo"],
        "B_x": _B_in["x"],
        "B_wqkv": _B_in["wqkv"],
        "B_wo": _B_in["wo"],
    }

def reference(A_x, A_wqkv, A_wo, B_x, B_wqkv, B_wo):
    def _A_ref(x, wqkv, wo):
        B, S, D = x.shape
        H = 32
        Dh = D // H
        qkv = (lambda x, *d: x.permute(*d))((x @ wqkv).reshape(B, S, 3, H, Dh), 2, 0, 3, 1, 4)
        q, k, v = qkv[0], qkv[1], qkv[2]
        scores = torch.einsum("bhqd,bhkd->bhqk", q, k) * (Dh ** -0.5)
        p = _softmax(scores, axis=-1)
        o = torch.einsum("bhqk,bhkd->bhqd", p, v)
        return (lambda x, *d: x.permute(*d))(o, 0, 2, 1, 3).reshape(B, S, D) @ wo

    def _B_ref(x, wqkv, wo):
        B, S, D = x.shape
        H = 32; Dh = D // H; W = 256
        qkv = (lambda x, *d: x.permute(*d))((x @ wqkv).reshape(B, S, 3, H, Dh), 2, 0, 3, 1, 4)
        q, k, v = qkv[0], qkv[1], qkv[2]
        scores = torch.einsum("bhqd,bhkd->bhqk", q, k) * (Dh ** -0.5)
        idx = torch.arange(S)
        mask = (idx[:, None] - idx[None, :] >= 0) & (idx[:, None] - idx[None, :] < W)
        scores = torch.where(mask[None, None], scores, -1e9)
        p = _softmax(scores, axis=-1)
        o = torch.einsum("bhqk,bhkd->bhqd", p, v)
        return (lambda x, *d: x.permute(*d))(o, 0, 2, 1, 3).reshape(B, S, D) @ wo

    a = _A_ref(A_x, A_wqkv, A_wo)
    b = _B_ref(B_x, B_wqkv, B_wo)
    return torch.concatenate([a, b], axis=-1)
```

```python
from gen import *

LANE, L16, AK1, AK2, AV, IDX = 1, 2, 3, 4, 5, 6
T0 = 7
Q1 = {"A": 16, "B": 20}
Q2 = {"A": 24, "B": 26}
K1B = [28, 32]
K2B = [36, 38]
VB = [[40, 44], [48, 52]]
SS = [56, 72]
OA = 88
MF, ML = 104, 120
OBS = 136
SK1, SK2 = 144, 148
LK1, LV, LK2 = 0, 65536, 139264
VMASK = 40
LOW = 42
NEGF = 0xF1800000


def qk(e, ph, sb, kb, C):
    d = vr(SS[sb], 16)
    c = "0" if C is None else vr(C, 16)
    e(f"v_mfma_f32_32x32x16_bf16 {d}, {vr(K1B[kb],4)}, {vr(Q1[ph],4)}, {c}")
    return f"v_mfma_f32_32x32x8bf16_1k {d}, {vr(K2B[kb],2)}, {vr(Q2[ph],2)}, {d}"


def pv(vb, half, sb):
    return f"v_smfmac_f32_32x32x32_bf16 {vr(OA,16)}, {vr(VB[vb][half],4)}, {vr(SS[sb]+8*half,8)}, v{IDX}"


def rdK(e, kb, t):
    e(f"ds_read_b128 {vr(K1B[kb],4)}, v{AK1} offset:{1024*t}",
      f"ds_read_b64 {vr(K2B[kb],2)}, v{AK2} offset:{256*t}")


def rdV(e, vb, t):
    e(f"s_mov_b64 exec, s[{VMASK}:{VMASK+1}]",
      f"ds_read_b128 {vr(VB[vb][0],4)}, v{AV} offset:{1152*t}",
      f"ds_read_b128 {vr(VB[vb][1],4)}, v{AV} offset:{1152*t+576}",
      "s_mov_b64 exec, -1")


def tile_iter(e, ph, t, prev, nxt, nxt2, Cn):
    p = t & 1
    S = SS[p]
    ex = lambda r: e(f"v_exp_f32 v{S+r}, v{S+r}")
    ex(0); ex(1)
    if prev:
        e(pv(p ^ 1, 1, p ^ 1))
    ex(2); ex(3)
    e("s_waitcnt lgkmcnt(0)")
    q2 = None
    if nxt:
        q2 = qk(e, ph, p ^ 1, p ^ 1, Cn)
    if nxt2:
        rdK(e, p, t + 2)
    ex(4); ex(5)
    if nxt:
        e(q2)
        rdV(e, p ^ 1, t + 1)
    for r in (6, 7, 8, 9):
        ex(r)
    e(pv(p, 0, p))
    for r in range(10, 16):
        ex(r)


def finish(e, ph, last_p, slow_label, done_label):
    e("s_nop 1", pv(last_p, 1, last_p), "s_nop 7", "s_nop 7")
    a, b, t = T0, T0 + 1, T0 + 2
    e(f"v_mov_b32 v{a}, v{OA+10}", f"v_mov_b32 v{b}, v{OA+10}", f"v_mov_b32 v{t}, 0", "s_nop 0",
      f"v_permlane32_swap_b32 v{a}, v{b}")
    for r in range(10):
        e(f"v_fmac_f32 v{t}, 0, v{OA+r}")
    e(f"v_add_f32 v{t}, v{a}, v{t}",
      f"s_mov_b32 s3, 0x{f2u(2.0**-100):08x}", f"v_cmp_le_f32 vcc, s3, v{t}",
      f"s_mov_b32 s3, 0x{f2u(2.0**115):08x}", f"v_cmp_ge_f32 s[44:45], s3, v{t}",
      "s_nop 3", "s_and_b64 vcc, vcc, s[44:45]", "s_cmp_eq_u64 vcc, -1", f"s_cbranch_scc0 {slow_label}")
    e.lab(done_label)


def normalize(e, dst):
    a, b = T0, T0 + 1
    e(f"v_mov_b32 v{a}, v{OA+10}", f"v_mov_b32 v{b}, v{OA+10}", "s_nop 1",
      f"v_permlane32_swap_b32 v{a}, v{b}", "s_nop 1", f"v_rcp_f32 v{a}, v{a}", "s_nop 0")
    for r in range(10):
        e(f"v_mul_f32 v{OA+r}, v{a}, v{OA+r}")
    for k in range(5):
        e(f"v_cvt_pk_bf16_f32 v{dst+k}, v{OA+2*k}, v{OA+2*k+1}")
    e("s_nop 1", f"v_permlane32_swap_b32 v{dst}, v{dst+2}", f"v_permlane32_swap_b32 v{dst+1}, v{dst+3}")


def slow_path(e, ph, P, ntiles, back):
    masked = ph == "B"
    m, t2 = T0 + 3, T0 + 4
    a1, a2, a3 = T0 + 5, T0 + 6, T0 + 7
    S = SS[0]
    e.lab(f"{P}_SLOW{ph}")
    if masked:
        e(f"v_and_b32 v{Q2[ph]+1}, 0xffff0000, v{Q2[ph]+1}")
    e(f"v_mov_b32 v{m}, 0xff7fffff")
    for r in range(16):
        e(f"v_mov_b32 v{OA+r}, 0")
    for ps in range(2):
        lab = f"{P}_SL{ph}{ps}"
        e(f"v_mov_b32 v{a1}, v{AK1}", f"v_mov_b32 v{a2}, v{AK2}", f"v_mov_b32 v{a3}, v{AV}", "s_mov_b32 s46, 0")
        e.lab(lab)
        e(f"ds_read_b128 {vr(K1B[0],4)}, v{a1}", f"ds_read_b64 {vr(K2B[0],2)}, v{a2}")
        if ps == 1:
            e(f"s_mov_b64 exec, s[{VMASK}:{VMASK+1}]",
              f"ds_read_b128 {vr(VB[0][0],4)}, v{a3}", f"ds_read_b128 {vr(VB[0][1],4)}, v{a3} offset:576",
              "s_mov_b64 exec, -1")
        e("s_waitcnt lgkmcnt(0)")
        d = vr(S, 16)
        if masked:
            e("s_cmp_eq_u32 s46, 0", f"s_cbranch_scc1 {lab}_F",
              f"s_cmp_eq_u32 s46, {ntiles-1}", f"s_cbranch_scc1 {lab}_L",
              f"v_mfma_f32_32x32x16_bf16 {d}, {vr(K1B[0],4)}, {vr(Q1[ph],4)}, 0", f"s_branch {lab}_J")
            e.lab(f"{lab}_F")
            e(f"v_mfma_f32_32x32x16_bf16 {d}, {vr(K1B[0],4)}, {vr(Q1[ph],4)}, {vr(MF,16)}", f"s_branch {lab}_J")
            e.lab(f"{lab}_L")
            e(f"v_mfma_f32_32x32x16_bf16 {d}, {vr(K1B[0],4)}, {vr(Q1[ph],4)}, {vr(ML,16)}")
            e.lab(f"{lab}_J")
        else:
            e(f"v_mfma_f32_32x32x16_bf16 {d}, {vr(K1B[0],4)}, {vr(Q1[ph],4)}, 0")
        e(f"v_mfma_f32_32x32x8bf16_1k {d}, {vr(K2B[0],2)}, {vr(Q2[ph],2)}, {d}", "s_nop 7", "s_nop 7")
        if ps == 0:
            for r in range(0, 16, 2):
                e(f"v_max3_f32 v{m}, v{S+r}, v{S+r+1}, v{m}")
        else:
            for r in range(16):
                e(f"v_sub_f32 v{S+r}, v{S+r}, v{m}")
            for r in range(16):
                e(f"v_exp_f32 v{S+r}, v{S+r}")
            e("s_nop 1", pv(0, 0, 0), pv(0, 1, 0), "s_nop 7", "s_nop 7")
        e(f"v_add_u32 v{a1}, 1024, v{a1}", f"v_add_u32 v{a2}, 256, v{a2}", f"v_add_u32 v{a3}, 1152, v{a3}",
          "s_add_u32 s46, s46, 1", f"s_cmp_lt_u32 s46, {ntiles}", f"s_cbranch_scc1 {lab}")
        if ps == 0:
            e(f"v_mov_b32 v{t2}, v{m}", "s_nop 1", f"v_permlane32_swap_b32 v{m}, v{t2}", "s_nop 1",
              f"v_max_f32 v{m}, v{m}, v{t2}")
    e(f"s_branch {back}")


def dma(e, srdreg, lds, src_s, src_c):
    ls, lc = lds
    e(f"s_add_u32 m0, s{ls}, {lc}", f"s_add_u32 s3, s{src_s}, {src_c}",
      f"buffer_load_dwordx4 v{L16}, s[{srdreg}:{srdreg+3}], s3 offen lds")


def gen_k2(e):
    P = "K2"
    e.lab("attn_kernel")
    e("s_cmp_ge_u32 s2, 256", f"s_cbranch_scc1 {P}_END")
    e("s_load_dwordx2 s[32:33], s[0:1], 64")
    e("s_and_b32 s3, s2, 7", "s_lshl_b32 s3, s3, 2", "s_lshr_b32 s16, s2, 3", "s_and_b32 s16, s16, 3",
      "s_add_u32 s16, s16, s3", "s_lshr_b32 s17, s2, 5")
    e(f"v_lshrrev_b32 v{T0}, 6, v0", f"v_and_b32 v{LANE}, 63, v0", "s_nop 0", f"v_readfirstlane_b32 s19, v{T0}",
      f"v_lshlrev_b32 v{L16}, 4, v{LANE}")
    e("s_waitcnt lgkmcnt(0)")
    e(f"s_mul_i32 s3, s16, {HB}", "s_add_u32 s34, s32, s3", "s_addc_u32 s35, s33, 0")
    srd(e, 4, 34, 35, HB)
    e(f"s_add_u32 s34, s34, {32*HB}", "s_addc_u32 s35, s35, 0")
    srd(e, 8, 34, 35, HB)
    e(f"s_add_u32 s34, s32, {OO}", "s_addc_u32 s35, s33, 0")
    srd(e, 12, 34, 35, 2 * 2359296)
    e("s_lshl_b32 s18, s17, 3", "s_add_u32 s18, s18, s19", "s_lshl_b32 s20, s19, 10")
    e(f"s_mov_b32 s{VMASK}, 0x0003FFFF", f"s_mov_b32 s{VMASK+1}, 0x0003FFFF",
      f"s_mov_b32 s{LOW}, -1", f"s_mov_b32 s{LOW+1}, 0")
    e(f"v_and_b32 v{T0}, 31, v{LANE}", f"v_lshlrev_b32 v{T0+1}, 2, v{T0}",
      *[f"v_mov_b32 v{Q2[x]+k}, 0" for x in "AB" for k in range(2)],
      "s_lshl_b32 s21, s18, 10", "s_lshl_b32 s22, s18, 7", f"s_add_u32 s22, s22, {Q2O}")
    e(f"buffer_load_dwordx4 {vr(Q1['B'],4)}, v{L16}, s[8:11], s21 offen",
      f"s_mov_b64 exec, s[{LOW}:{LOW+1}]",
      f"buffer_load_dword v{Q2['B']}, v{T0+1}, s[8:11], s22 offen", "s_mov_b64 exec, -1")
    e("s_add_u32 s23, s17, 7", "s_and_b32 s23, s23, 7")
    for slot, ch in ((6, 23), (7, 17)):
        e(f"s_lshl_b32 s24, s{ch}, 13", "s_add_u32 s24, s24, s20")
        dma(e, 8, (20, LK1 + slot * 8192), 24, K1O)
        e(f"s_mul_i32 s24, s{ch}, 9216", "s_add_u32 s25, s24, s20")
        dma(e, 8, (20, LV + slot * 9216), 25, VO)
        e(f"s_cmp_eq_u32 s19, {slot-6}", f"s_cbranch_scc0 {P}_BV{slot}")
        e(f"s_mov_b32 m0, {LV + slot*9216 + 8192}", f"s_add_u32 s3, s24, {VO + 8192}",
          f"buffer_load_dwordx4 v{L16}, s[8:11], s3 offen lds")
        e.lab(f"{P}_BV{slot}")
    e("s_cmp_lt_u32 s19, 4", f"s_cbranch_scc1 {P}_BK2D")
    e("s_and_b32 s24, s19, 1", "s_lshl_b32 s24, s24, 10", "s_cmp_lt_u32 s19, 6",
      "s_cselect_b32 s25, s23, s17", "s_cselect_b32 s26, 0, 2048",
      f"s_add_u32 s26, s26, {LK2 + 6*2048}", "s_add_u32 s26, s26, s24", "s_lshl_b32 s25, s25, 11", "s_add_u32 s25, s25, s24",
      f"s_add_u32 s25, s25, {K2O}")
    e("s_cmp_lt_u32 s19, 6", "s_cselect_b32 s27, 1, 0", "s_cmp_eq_u32 s17, 0", "s_cselect_b32 s27, s27, 0",
      "s_cmp_eq_u32 s27, 1", f"s_cbranch_scc1 {P}_BK2F")
    e("s_mov_b32 m0, s26", "s_nop 0", f"buffer_load_dwordx4 v{L16}, s[8:11], s25 offen lds", f"s_branch {P}_BK2D")
    e.lab(f"{P}_BK2F")
    e(f"v_add_u32 v{T0+3}, s26, v{L16}")
    e(f"v_mov_b32 v12, 0", f"v_mov_b32 v13, 0x3F803F80", f"v_mov_b32 v14, 0", f"v_mov_b32 v15, 0x3F803F80",
      f"ds_write_b128 v{T0+3}, v[12:15]")
    e.lab(f"{P}_BK2D")
    e(f"buffer_load_dwordx4 {vr(Q1['A'],4)}, v{L16}, s[4:7], s21 offen",
      f"s_mov_b64 exec, s[{LOW}:{LOW+1}]",
      f"buffer_load_dword v{Q2['A']}, v{T0+1}, s[4:7], s22 offen", "s_mov_b64 exec, -1")
    for k in range(6):
        dma(e, 4, (20, LK1 + 8192 * k), 20, K1O + 8192 * k)
    for k in range(6):
        dma(e, 4, (20, LV + 8192 * k), 20, VO + 8192 * k)
    dma(e, 4, (20, LK2), 20, K2O)
    e("s_cmp_lt_u32 s19, 6", f"s_cbranch_scc0 {P}_AV")
    dma(e, 4, (20, LV + 8192 * 6), 20, VO + 8192 * 6)
    e.lab(f"{P}_AV")
    e("s_cmp_lt_u32 s19, 4", f"s_cbranch_scc1 {P}_AK2")
    dma(e, 4, (20, LK2 + 4096), 20, K2O + 4096)
    e.lab(f"{P}_AK2")
    hh, ii = T0 + 2, T0
    e(f"v_lshrrev_b32 v{hh}, 5, v{LANE}", f"v_mov_b32 v{IDX}, 0xDDDDDDDD")
    e(f"v_mov_b32 v{T0+3}, 0", f"v_mov_b32 v{T0+4}, 0x3F803F80", f"v_cmp_eq_u32 vcc, 18, v{ii}", "s_nop 1",
      f"v_cndmask_b32 v{T0+3}, v{T0+3}, v{T0+4}, vcc")
    for r in range(16):
        e(f"v_mov_b32 v{VB[0][0]+r}, v{T0+3}")
    e(f"v_lshlrev_b32 v{T0+3}, 2, v{hh}", f"v_sub_u32 v{T0+3}, v{ii}, v{T0+3}",
      f"v_mov_b32 v{T0+4}, 0x{NEGF:08x}", f"v_mov_b32 v{T0+5}, 0")
    for r in range(16):
        c = 8 * (r >> 2) + (r & 3)
        e(f"v_cmp_le_i32 vcc, {c}, v{T0+3}",
          f"v_cndmask_b32 v{ML+r}, v{T0+4}, v{T0+5}, vcc", f"v_cndmask_b32 v{MF+r}, v{T0+5}, v{T0+4}, vcc")
    e(f"v_lshlrev_b32 v{T0+4}, 3, v{ii}", f"v_add_u32 v{T0+4}, {LK2}, v{T0+4}",
      f"v_mul_u32_u24 v{T0+5}, 288, v{hh}", f"v_lshlrev_b32 v{T0+6}, 4, v{ii}",
      f"v_add_u32 v{T0+5}, v{T0+5}, v{T0+6}", f"v_add_u32 v{T0+5}, {LV}, v{T0+5}")
    e("s_add_u32 s24, s19, 48", "s_lshl_b32 s25, s24, 10", f"v_add_u32 v{AK1}, s25, v{L16}",
      "s_lshl_b32 s25, s24, 8", f"v_add_u32 v{AK2}, s25, v{T0+4}",
      "s_mul_i32 s25, s24, 1152", f"v_add_u32 v{AV}, s25, v{T0+5}")
    e("s_lshl_b32 s24, s18, 5", f"v_add_u32 v{T0+6}, s24, v{ii}", f"v_mul_u32_u24 v{T0+6}, 1152, v{T0+6}",
      f"v_lshlrev_b32 v{T0+7}, 4, v{hh}", f"v_add_u32 v{T0+6}, v{T0+6}, v{T0+7}",
      "s_mul_i32 s24, s16, 36", f"v_add_u32 v142, s24, v{T0+6}", f"v_add_u32 v141, 2359296, v142")
    e(f"v_mov_b32 v143, v{T0+4}", f"v_mov_b32 v150, v{T0+5}")
    for r in range(16):
        e(f"v_mov_b32 v{OA+r}, 0")
    e("s_cmp_eq_u32 s18, 0", "s_cselect_b32 s24, 8, 7", "s_lshl_b32 s25, s24, 10", f"v_add_u32 v{T0+6}, s25, v{AK1}",
      "s_lshl_b32 s25, s24, 8", f"v_add_u32 v{T0+7}, s25, v{AK2}")
    e("s_waitcnt vmcnt(16) lgkmcnt(0)", "s_barrier")
    e(f"ds_read_b128 {vr(SK1,4)}, v{T0+6}", f"ds_read_b64 {vr(SK2,2)}, v{T0+7}")
    rdK(e, 0, 0); rdK(e, 1, 1); rdV(e, 0, 0)
    e(f"s_mov_b64 exec, s[{LOW}:{LOW+1}]", f"v_mov_b32 v{Q2['B']+1}, 0x{NEGF:08x}", "s_mov_b64 exec, -1")
    e("s_waitcnt lgkmcnt(6)")
    d = vr(SS[0], 16)
    e("s_cmp_eq_u32 s18, 0", f"s_cbranch_scc1 {P}_SMPM",
      f"v_mfma_f32_32x32x16_bf16 {d}, {vr(SK1,4)}, {vr(Q1['B'],4)}, 0", f"s_branch {P}_SMPJ")
    e.lab(f"{P}_SMPM")
    e(f"v_mfma_f32_32x32x16_bf16 {d}, {vr(SK1,4)}, {vr(Q1['B'],4)}, {vr(ML,16)}")
    e.lab(f"{P}_SMPJ")
    e(f"v_mfma_f32_32x32x8bf16_1k {d}, {vr(SK2,2)}, {vr(Q2['B'],2)}, {d}", "s_nop 7", "s_nop 7")
    S = SS[0]
    m, t2 = T0 + 3, T0 + 4
    e(f"v_max3_f32 v{m}, v{S}, v{S+1}, v{S+2}")
    for r in range(3, 15, 2):
        e(f"v_max3_f32 v{m}, v{S+r}, v{S+r+1}, v{m}")
    e(f"v_max_f32 v{m}, v{S+15}, v{m}", f"v_mov_b32 v{t2}, v{m}", "s_nop 1",
      f"v_permlane32_swap_b32 v{m}, v{t2}", "s_nop 1", f"v_max_f32 v{m}, v{m}, v{t2}",
      f"v_sub_f32 v{m}, 0x{f2u(-90.0):08x}, v{m}", f"v_lshrrev_b32 v{m}, 16, v{m}",
      f"s_mov_b64 exec, s[{LOW}:{LOW+1}]", f"v_or_b32 v{Q2['B']+1}, 0x{NEGF:08x}, v{m}", "s_mov_b64 exec, -1",
      "s_waitcnt lgkmcnt(0)", "s_nop 0")
    q2 = qk(e, "B", 0, 0, MF)
    e(q2, "s_nop 7", "s_nop 7")
    for t in range(9):
        tile_iter(e, "B", t, t > 0, t < 8, t < 7, ML if t == 7 else None)
    finish(e, "B", 0, f"{P}_SLOWB", f"{P}_DONEB")
    normalize(e, OBS)
    e("s_waitcnt vmcnt(0)")
    e(f"buffer_store_dwordx4 {vr(OBS,4)}, v141, s[12:15], 0 offen",
      f"s_mov_b64 exec, s[{LOW}:{LOW+1}]", f"buffer_store_dword v{OBS+4}, v141, s[12:15], 0 offen offset:32",
      "s_mov_b64 exec, -1")
    e("s_barrier")
    for k in (6, 7):
        dma(e, 4, (20, LK1 + 8192 * k), 20, K1O + 8192 * k)
    for k in range(2):
        dma(e, 4, (20, LV + 55296 + 8192 * k), 20, VO + 55296 + 8192 * k)
    e("s_cmp_lt_u32 s19, 2", f"s_cbranch_scc0 {P}_LV")
    dma(e, 4, (20, LV + 55296 + 16384), 20, VO + 55296 + 16384)
    e.lab(f"{P}_LV")
    e("s_cmp_lt_u32 s19, 4", f"s_cbranch_scc1 {P}_LK2")
    dma(e, 4, (20, LK2 + 8192), 20, K2O + 8192)
    e.lab(f"{P}_LK2")
    e(f"v_mov_b32 v{AK1}, v{L16}", f"v_mov_b32 v{AK2}, v143", f"v_mov_b32 v{AV}, v150")
    rdK(e, 0, 0); rdK(e, 1, 1); rdV(e, 0, 0)
    for r in range(16):
        e(f"v_mov_b32 v{OA+r}, 0")
    for r in range(8, 16):
        e(f"v_mov_b32 v{SS[1]+r}, 0")
    e("s_waitcnt lgkmcnt(0)")
    q2 = qk(e, "A", 0, 0, None)
    e(q2, "s_mov_b32 s47, 0", "s_nop 7", "s_nop 7")
    e.lab(f"{P}_ALOOP")
    e("s_cmp_eq_u32 s47, 5", f"s_cbranch_scc0 {P}_NOBAR", "s_waitcnt vmcnt(0)", "s_barrier")
    e.lab(f"{P}_NOBAR")
    for t in range(8):
        tile_iter(e, "A", t, True, True, True, None)
    e(f"v_add_u32 v{AK1}, 8192, v{AK1}", f"v_add_u32 v{AK2}, 2048, v{AK2}", f"v_add_u32 v{AV}, 9216, v{AV}",
      "s_add_u32 s47, s47, 1", "s_cmp_lt_u32 s47, 8", f"s_cbranch_scc1 {P}_ALOOP")
    e("s_waitcnt lgkmcnt(0)")
    e(f"v_mov_b32 v{AK1}, v{L16}", f"v_mov_b32 v{AK2}, v143", f"v_mov_b32 v{AV}, v150")
    finish(e, "A", 1, f"{P}_SLOWA", f"{P}_DONEA")
    normalize(e, OBS)
    e(f"buffer_store_dwordx4 {vr(OBS,4)}, v142, s[12:15], 0 offen",
      f"s_mov_b64 exec, s[{LOW}:{LOW+1}]", f"buffer_store_dword v{OBS+4}, v142, s[12:15], 0 offen offset:32")
    e.lab(f"{P}_END")
    e("s_endpgm")
    slow_path(e, "B", P, 9, f"{P}_DONEB")
    slow_path(e, "A", P, 64, f"{P}_DONEA")
    return dict(name="attn_kernel", vgpr=152, grid=256, lds=156672)


def gen_k3(e):
    P = "K3"
    SB, NB = 28928, 5
    e.lab("proj_kernel")
    e("s_cmp_ge_u32 s2, 192", f"s_cbranch_scc1 {P}_END")
    e("s_load_dwordx2 s[24:25], s[0:1], 16", "s_load_dwordx2 s[26:27], s[0:1], 40",
      "s_load_dwordx2 s[28:29], s[0:1], 48", "s_load_dwordx2 s[32:33], s[0:1], 64")
    e("s_and_b32 s16, s2, 1", "s_and_b32 s3, s2, 7", "s_lshr_b32 s3, s3, 1", "s_lshl_b32 s3, s3, 2",
      "s_lshr_b32 s20, s2, 3", "s_and_b32 s17, s20, 3", "s_add_u32 s17, s17, s3", "s_lshr_b32 s18, s20, 2")
    e("v_lshrrev_b32 v1, 6, v0", "v_and_b32 v2, 63, v0", "s_nop 0", "v_readfirstlane_b32 s19, v1")
    e("s_waitcnt lgkmcnt(0)")
    e("s_mul_i32 s3, s16, 2359296", f"s_add_u32 s3, s3, {OO}", "s_add_u32 s34, s32, s3", "s_addc_u32 s35, s33, 0")
    srd(e, 4, 34, 35, 2359296)
    e("s_cmp_eq_u32 s16, 0", "s_cselect_b32 s36, s24, s26", "s_cselect_b32 s37, s25, s27")
    srd(e, 8, 36, 37, 663552)
    srd(e, 12, 28, 29, 4718592)
    g = Gemm(P, NB, SB, 3, 768, 6272, [16, 32], [48, 60], 72)
    e("s_cmp_ge_u32 s19, 4", f"s_cbranch_scc1 {P}_LOAD")
    e("s_and_b32 s20, s19, 1", "s_lshr_b32 s21, s19, 1")
    e("v_and_b32 v3, 15, v2", "v_lshrrev_b32 v4, 4, v2", "v_and_b32 v5, 7, v2", "v_xor_b32 v5, v5, v4",
      "v_lshlrev_b32 v5, 4, v5", "s_lshl_b32 s3, s20, 6", "v_add_u32 v6, s3, v3",
      "v_lshlrev_b32 v8, 7, v6", "v_add_u32 v8, v8, v5", "v_xor_b32 v9, 64, v8")
    e("v_bfe_u32 v5, v2, 2, 2", "v_lshlrev_b32 v7, 3, v4", "v_add_u32 v5, v5, v7",
      "v_mul_u32_u24 v5, 192, v5", "v_lshlrev_b32 v7, 5, v4", "v_add_u32 v5, v5, v7",
      "v_and_b32 v7, 3, v2", "v_lshlrev_b32 v7, 3, v7", "v_add_u32 v5, v5, v7",
      "s_mul_i32 s3, s21, 96", "s_add_u32 s3, s3, 16384", "v_add_u32 v10, s3, v5")
    e("v_mul_u32_u24 v11, 200, v6", "v_lshlrev_b32 v7, 3, v4", "v_add_u32 v11, v11, v7",
      "s_mul_i32 s3, s21, 96", "v_add_u32 v11, s3, v11")
    g.compute(e, [8, 9], 10)
    e("s_nop 7", "s_nop 1")
    for T in range(3):
        for i in range(4):
            a = g.acc + 4 * (4 * T + i)
            e(f"v_cvt_pk_bf16_f32 v{a}, v{a}, v{a+1}", f"v_cvt_pk_bf16_f32 v{a+1}, v{a+2}, v{a+3}",
              f"ds_write_b64 v11, {vr(a,2)} offset:{3200*i + 32*T}")
    e("s_waitcnt lgkmcnt(0)", f"s_branch {P}_OUT")
    e.lab(f"{P}_LOAD")
    e("s_sub_u32 s20, s19, 4")
    e("v_lshrrev_b32 v3, 3, v2", "v_and_b32 v4, 7, v2", "v_xor_b32 v4, v4, v3", "v_lshlrev_b32 v4, 4, v4",
      "s_lshl_b32 s3, s20, 5", "v_add_u32 v3, s3, v3", "v_mul_u32_u24 v8, 1152, v3", "v_add_u32 v8, v8, v4")
    e("v_mul_u32_u24 v3, 43, v2", "v_lshrrev_b32 v3, 9, v3", "v_mul_u32_u24 v4, 12, v3", "v_sub_u32 v4, v2, v4",
      "v_lshlrev_b32 v4, 4, v4", "v_mul_u32_u24 v9, 1152, v3", "v_add_u32 v9, v9, v4",
      "s_mul_i32 s3, s18, 192", "v_add_u32 v9, s3, v9")
    e("s_mul_i32 s40, s17, 147456", "s_lshl_b32 s41, s20, 12", "s_mul_i32 s42, s20, 3136",
      "s_add_u32 s42, s42, 16384", "s_mul_i32 s46, s20, 18432", "s_mov_b32 s44, -1", "s_mov_b32 s45, 0x0000FFFF")

    def issue(s):
        base = (s % NB) * SB
        for i in range(4):
            e(f"s_add_u32 m0, s41, {base + 1024*i}", f"s_add_u32 s43, s40, {128*s + 9216*i}",
              "buffer_load_dwordx4 v8, s[4:7], s43 offen lds")
        e("s_mov_b64 exec, s[44:45]")
        for qq in range(2):
            for hf in range(2):
                e(f"s_add_u32 m0, s42, {base + 1568*qq + 768*hf}",
                  f"s_add_u32 s43, s46, {73728*s + (8*qq + 4*hf)*1152}",
                  "buffer_load_dwordx4 v9, s[8:11], s43 offen lds")
        e("s_mov_b64 exec, -1")
    g.loader(e, issue, 8)
    e.lab(f"{P}_OUT")
    e("s_barrier")
    e("s_mul_i32 s3, s17, 294912", "s_mul_i32 s20, s16, 1152", "s_add_u32 s3, s3, s20",
      "s_mul_i32 s20, s18, 192", "s_add_u32 s20, s20, s3", "s_mov_b32 s21, 43691")
    for k in range(3):
        e(f"v_add_u32 v3, {512*k}, v0", "v_mul_lo_u32 v4, v3, s21", "v_lshrrev_b32 v4, 19, v4",
          "v_mul_u32_u24 v5, 12, v4", "v_sub_u32 v5, v3, v5", "v_lshlrev_b32 v5, 4, v5",
          "v_mul_u32_u24 v6, 200, v4", "v_add_u32 v6, v6, v5", f"ds_read_b128 {vr(16+4*k,4)}, v6",
          f"v_mul_u32_u24 v{12+k}, 2304, v4", f"v_add_u32 v{12+k}, v{12+k}, v5")
    for k in range(3):
        e(f"s_waitcnt lgkmcnt({2-k})", f"buffer_store_dwordx4 {vr(16+4*k,4)}, v{12+k}, s[12:15], s20 offen")
    e.lab(f"{P}_END")
    e("s_endpgm")
    return dict(name="proj_kernel", vgpr=120, grid=192, lds=NB * SB)
```

```python
import sys, struct

HB = 229376
Q1O, Q2O, K1O, K2O, VO = 0, 65536, 73728, 139264, 155648
OO = 64 * HB
WS_BYTES = 268435456
CSCALE = 1.4426950408889634 / (18 ** 0.5)


def f2u(x):
    return struct.unpack("<I", struct.pack("<f", x))[0]


class E:
    def __init__(self):
        self.L = []

    def __call__(self, *ss):
        for s in ss:
            self.L.append("    " + s)

    def lab(self, n):
        self.L.append(n + ":")

    def text(self):
        return "\n".join(self.L) + "\n"


def vr(b, n=1):
    return f"v{b}" if n == 1 else f"v[{b}:{b+n-1}]"


def sr(b, n=1):
    return f"s{b}" if n == 1 else f"s[{b}:{b+n-1}]"


def srd(e, d, lo, hi, size):
    e(f"s_mov_b32 s{d}, s{lo}", f"s_mov_b32 s{d+1}, s{hi}",
      f"s_mov_b32 s{d+2}, {size}", f"s_mov_b32 s{d+3}, 0x00020000")


class Gemm:
    def __init__(self, pfx, NB, stage, nct, whalf, wj, xset, wset, acc):
        self.pfx, self.NB, self.stage, self.nct = pfx, NB, stage, nct
        self.whalf, self.wj = whalf, wj
        self.xset, self.wset, self.acc = xset, wset, acc

    def reads(self, j, st, vX, vW):
        L = []
        for i in range(4):
            L.append(f"ds_read_b128 {vr(self.xset[st]+4*i,4)}, v{vX[j]} offset:{2048*i}")
        for T in range(self.nct):
            for h in range(2):
                L.append(f"ds_read_b64_tr_b16 {vr(self.wset[st]+4*T+2*h,2)}, v{vW} "
                         f"offset:{32*T + self.whalf*h + self.wj*j}")
        return L

    def mfmas(self, st, first):
        L = []
        for T in range(self.nct):
            for i in range(4):
                a = self.acc + 4 * (4 * T + i)
                c = "0" if first else vr(a, 4)
                L.append(f"v_mfma_f32_16x16x32_bf16 {vr(a,4)}, {vr(self.wset[st]+4*T,4)}, "
                         f"{vr(self.xset[st]+4*i,4)}, {c}")
        return L

    def compute(self, e, vX, vW):
        NB, SB = self.NB, self.stage
        e("s_barrier")
        e(*self.reads(0, 0, vX, vW))
        e("s_waitcnt lgkmcnt(0)")
        for s in range(9):
            for j in range(2):
                st = j
                M = self.mfmas(st, s == 0 and j == 0)
                if j == 0:
                    R = self.reads(1, 1, vX, vW)
                elif s < 8:
                    d = ((s + 1) % NB - s % NB) * SB
                    lit = f"0x{d & 0xffffffff:08x}"
                    R = [f"v_add_u32 v{vX[0]}, {lit}, v{vX[0]}", f"v_add_u32 v{vX[1]}, {lit}, v{vX[1]}",
                         f"v_add_u32 v{vW}, {lit}, v{vW}"] + self.reads(0, 0, vX, vW)
                else:
                    R = []
                k = 0
                for m in M:
                    e(m)
                    n = 1 if len(M) >= 2 * len(R) - 6 or True else 2
                    per = 1 if len(R) <= len(M) else 2
                    for _ in range(per):
                        if k < len(R):
                            e(R[k]); k += 1
                while k < len(R):
                    e(R[k]); k += 1
                if R:
                    e("s_waitcnt lgkmcnt(0)")
                if j == 0 and s < 8:
                    e("s_barrier")

    def loader(self, e, issue, n):
        NB = self.NB
        for s in range(min(NB, 9)):
            issue(s)
        e(f"s_waitcnt vmcnt({(min(NB,9)-1)*n})", "s_barrier")
        for s in range(8):
            issued = min(s - 1 + NB, 8)
            e(f"s_waitcnt vmcnt({max(issued-(s+1),0)*n})", "s_barrier")
            if s + NB <= 8:
                issue(s + NB)


def gen_k1(e):
    P = "K1"
    SB, NB = 45312, 3
    e.lab("qkv_kernel")
    e("s_cmp_ge_u32 s2, 256", f"s_cbranch_scc1 {P}_END")
    e("s_load_dwordx4 s[24:27], s[0:1], 0", "s_load_dwordx4 s[28:31], s[0:1], 24",
      "s_load_dwordx2 s[32:33], s[0:1], 64")
    e("s_and_b32 s16, s2, 1",
      "s_lshr_b32 s3, s2, 1", "s_and_b32 s3, s3, 1", "s_lshl_b32 s3, s3, 3",
      "s_lshr_b32 s20, s2, 3", "s_and_b32 s17, s20, 7", "s_add_u32 s17, s17, s3",
      "s_lshr_b32 s3, s2, 2", "s_and_b32 s3, s3, 1", "s_lshl_b32 s3, s3, 2",
      "s_lshr_b32 s18, s20, 3", "s_add_u32 s18, s18, s3")
    e("v_lshrrev_b32 v1, 6, v0", "v_and_b32 v2, 63, v0", "s_nop 0", "v_readfirstlane_b32 s19, v1")
    e("s_waitcnt lgkmcnt(0)")
    e("s_cmp_eq_u32 s16, 0",
      "s_cselect_b32 s34, s24, s28", "s_cselect_b32 s35, s25, s29",
      "s_cselect_b32 s36, s26, s30", "s_cselect_b32 s37, s27, s31")
    srd(e, 4, 34, 35, 2359296)
    srd(e, 8, 36, 37, 1990656)
    e("s_lshl_b32 s3, s16, 5", "s_lshl_b32 s20, s18, 2", "s_add_u32 s3, s3, s20",
      f"s_mul_i32 s3, s3, {HB}", "s_add_u32 s38, s32, s3", "s_addc_u32 s39, s33, 0")
    srd(e, 12, 38, 39, 4 * HB)
    g = Gemm(P, NB, SB, 7, 1792, 14464, [16, 32], [48, 76], 104)
    e("s_cmp_ge_u32 s19, 4", f"s_cbranch_scc1 {P}_LOAD")
    e("s_and_b32 s20, s19, 1", "s_lshr_b32 s21, s19, 1")
    e("v_and_b32 v3, 15, v2", "v_lshrrev_b32 v4, 4, v2", "v_and_b32 v5, 7, v2", "v_xor_b32 v5, v5, v4",
      "v_lshlrev_b32 v5, 4, v5", "s_lshl_b32 s3, s20, 6", "v_add_u32 v6, s3, v3",
      "v_lshlrev_b32 v8, 7, v6", "v_add_u32 v8, v8, v5", "v_xor_b32 v9, 64, v8")
    e("v_bfe_u32 v5, v2, 2, 2", "v_lshlrev_b32 v7, 3, v4", "v_add_u32 v5, v5, v7",
      "v_mul_u32_u24 v5, 448, v5", "v_lshlrev_b32 v7, 5, v4", "v_add_u32 v5, v5, v7",
      "v_and_b32 v7, 3, v2", "v_lshlrev_b32 v7, 3, v7", "v_add_u32 v5, v5, v7",
      "s_mul_i32 s3, s21, 224", "s_add_u32 s3, s3, 16384", "v_add_u32 v10, s3, v5")
    e("v_mul_u32_u24 v11, 456, v6", "v_lshlrev_b32 v7, 3, v4", "v_add_u32 v11, v11, v7",
      "s_mul_i32 s3, s21, 224", "v_add_u32 v11, s3, v11")
    e(f"s_mov_b32 s22, 0x{f2u(CSCALE):08x}", "s_cmp_eq_u32 s21, 0", "s_cselect_b32 s22, s22, 1.0",
      "v_mov_b32 v12, 1.0", "v_mov_b32 v13, s22", "v_cmp_gt_u32 vcc, 32, v2", "s_nop 1",
      "v_cndmask_b32 v12, v12, v13, vcc")
    g.compute(e, [8, 9], 10)
    e("s_nop 7", "s_nop 1")
    for T in range(7):
        for i in range(4):
            a = g.acc + 4 * (4 * T + i)
            if T < 4:
                e(*[f"v_mul_f32 v{a+r}, s22, v{a+r}" for r in range(4)])
            elif T == 4:
                e(*[f"v_mul_f32 v{a+r}, v12, v{a+r}" for r in range(4)])
            e(f"v_cvt_pk_bf16_f32 v{a}, v{a}, v{a+1}", f"v_cvt_pk_bf16_f32 v{a+1}, v{a+2}, v{a+3}",
              f"ds_write_b64 v11, {vr(a,2)} offset:{7296*i + 32*T}")
    e("s_waitcnt lgkmcnt(0)", f"s_branch {P}_OUT")
    e.lab(f"{P}_LOAD")
    e("s_sub_u32 s20, s19, 4")
    e("v_lshrrev_b32 v3, 3, v2", "v_and_b32 v4, 7, v2", "v_xor_b32 v4, v4, v3", "v_lshlrev_b32 v4, 4, v4",
      "s_lshl_b32 s3, s20, 5", "v_add_u32 v3, s3, v3", "v_mul_u32_u24 v8, 1152, v3", "v_add_u32 v8, v8, v4")
    e("v_cmp_le_u32 vcc, 28, v2", "v_mov_b32 v3, 0", "v_mov_b32 v5, 1", "v_cndmask_b32 v3, v3, v5, vcc",
      "v_mul_u32_u24 v4, 28, v3", "v_sub_u32 v4, v2, v4",
      "v_mul_u32_u24 v5, 57, v4", "v_lshrrev_b32 v5, 9, v5",
      "v_mul_u32_u24 v6, 9, v5", "v_sub_u32 v6, v4, v6", "v_lshlrev_b32 v6, 4, v6",
      "v_mul_u32_u24 v5, 1152, v5", "v_add_u32 v6, v6, v5",
      "s_lshl_b32 s3, s20, 1", "v_add_u32 v3, s3, v3", "v_mul_u32_u24 v9, 3456, v3", "v_add_u32 v9, v9, v6",
      "s_mul_i32 s3, s18, 144", "v_add_u32 v9, s3, v9")
    e("s_mul_i32 s40, s17, 147456", "s_lshl_b32 s41, s20, 12", "s_mul_i32 s42, s20, 896",
      "s_add_u32 s42, s42, 16384", "s_mov_b32 s44, 0xF7FFFFFF", "s_mov_b32 s45, 0x007FFFFF")

    def issue(s):
        base = (s % NB) * SB
        for i in range(4):
            e(f"s_add_u32 m0, s41, {base + 1024*i}", f"s_add_u32 s43, s40, {128*s + 9216*i}",
              "buffer_load_dwordx4 v8, s[4:7], s43 offen lds")
        e("s_mov_b64 exec, s[44:45]")
        for q in range(8):
            e(f"s_add_u32 m0, s42, {base + 3616*q}", f"s_mov_b32 s43, {221184*s + 27648*q}",
              "buffer_load_dwordx4 v9, s[8:11], s43 offen lds")
        e("s_mov_b64 exec, -1")
    g.loader(e, issue, 12)
    e.lab(f"{P}_OUT")
    e("s_barrier")
    e("s_lshr_b32 s20, s19, 2", "s_and_b32 s21, s19, 3",
      "v_and_b32 v3, 31, v2", "v_lshrrev_b32 v4, 5, v2", "v_mul_u32_u24 v5, 456, v3",
      "v_lshlrev_b32 v4, 4, v4", "v_add_u32 v5, v5, v4",
      "s_mul_i32 s3, s20, 144", "s_mul_i32 s22, s21, 36", "s_add_u32 s22, s22, s3",
      "v_add_u32 v5, s22, v5")
    for tt in range(4):
        e(f"ds_read_b128 {vr(16+4*tt,4)}, v5 offset:{32*456*tt}")
    e("v_mul_u32_u24 v6, 456, v2", "s_add_u32 s3, s22, 32", "v_add_u32 v6, s3, v6",
      "ds_read_b32 v32, v6", f"ds_read_b32 v34, v6 offset:{64*456}")
    e("v_lshrrev_b32 v7, 4, v2", "v_bfe_u32 v8, v2, 2, 2", "v_lshlrev_b32 v9, 3, v7", "v_add_u32 v8, v8, v9",
      "v_mul_u32_u24 v8, 456, v8", "v_and_b32 v9, 3, v2", "v_lshlrev_b32 v9, 3, v9", "v_add_u32 v8, v8, v9",
      "v_add_u32 v8, 288, v8")
    for k in range(3):
        e(f"s_add_u32 s23, s19, {8*k}", "s_min_u32 s23, s23, 19",
          "s_mul_i32 s24, s23, 52", "s_lshr_b32 s24, s24, 8",
          "s_mul_i32 s25, s24, 5", "s_sub_u32 s25, s23, s25",
          f"s_mov_b32 s{46+2*k}, s24", f"s_mov_b32 s{47+2*k}, s25",
          f"s_mul_i32 s26, s24, {32*456}", "s_lshl_b32 s27, s25, 5", "s_add_u32 s26, s26, s27",
          "v_add_u32 v9, s26, v8",
          f"ds_read_b64_tr_b16 {vr(40+4*k,2)}, v9", f"ds_read_b64_tr_b16 {vr(42+4*k,2)}, v9 offset:{4*456}")
    e(f"s_mul_i32 s22, s21, {HB}", f"s_mul_i32 s3, s20, {K1O}", "s_add_u32 s23, s22, s3",
      "s_lshl_b32 s3, s17, 12", "s_add_u32 s23, s23, s3", "v_lshlrev_b32 v10, 4, v2")
    e("s_waitcnt lgkmcnt(8)")
    for tt in range(4):
        e(f"s_add_u32 s3, s23, {1024*tt}", f"buffer_store_dwordx4 {vr(16+4*tt,4)}, v10, s[12:15], s3 offen")
    e("s_waitcnt lgkmcnt(6)")
    e("s_cmp_eq_u32 s20, 0", f"s_cbranch_scc0 {P}_K2")
    e("s_lshl_b32 s3, s17, 9", "s_add_u32 s3, s3, s22", f"s_add_u32 s3, s3, {Q2O}",
      "v_lshlrev_b32 v11, 2, v2",
      "buffer_store_dword v32, v11, s[12:15], s3 offen",
      "buffer_store_dword v34, v11, s[12:15], s3 offen offset:256",
      f"s_branch {P}_V")
    e.lab(f"{P}_K2")
    e("s_lshl_b32 s3, s17, 10", "s_add_u32 s3, s3, s22", f"s_add_u32 s3, s3, {K2O}",
      "v_lshlrev_b32 v11, 3, v2", "v_mov_b32 v33, 0x00003F80", "v_mov_b32 v35, 0x00003F80",
      "buffer_store_dwordx2 v[32:33], v11, s[12:15], s3 offen",
      "buffer_store_dwordx2 v[34:35], v11, s[12:15], s3 offen offset:512")
    e.lab(f"{P}_V")
    e("s_waitcnt lgkmcnt(0)")
    for k in range(3):
        e(f"s_lshl_b32 s3, s{47+2*k}, 4", "v_and_b32 v3, 15, v2", "v_add_u32 v3, s3, v3",
          "v_mul_u32_u24 v4, 57, v3", "v_lshrrev_b32 v4, 10, v4",
          "v_mul_u32_u24 v5, 18, v4", "v_sub_u32 v5, v3, v5", "v_lshlrev_b32 v5, 4, v5",
          f"s_mov_b32 s3, {HB}", "v_mul_lo_u32 v4, v4, s3", "v_add_u32 v5, v5, v4",
          "v_lshrrev_b32 v6, 5, v2", "v_mul_u32_u24 v6, 576, v6", "v_add_u32 v5, v5, v6",
          "v_bfe_u32 v6, v2, 4, 1", "v_mul_u32_u24 v6, 288, v6", "v_add_u32 v5, v5, v6",
          f"s_lshl_b32 s3, s{46+2*k}, 1", "s_lshl_b32 s24, s17, 3", "s_add_u32 s3, s3, s24",
          "s_mul_i32 s3, s3, 576", f"s_add_u32 s3, s3, {VO}",
          "v_cmp_gt_u32 vcc, 72, v3")
        if k == 2:
            e("s_cmp_ge_u32 s19, 4", f"s_cbranch_scc1 {P}_END")
        e("s_and_saveexec_b64 s[26:27], vcc",
          f"buffer_store_dwordx4 {vr(40+4*k,4)}, v5, s[12:15], s3 offen",
          "s_mov_b64 exec, -1")
    e.lab(f"{P}_END")
    e("s_endpgm")
    return dict(name="qkv_kernel", vgpr=216, grid=256, lds=NB * SB)


def kd(info):
    v = (info["vgpr"] + 3) // 4 * 4
    return f""".amdhsa_kernel {info['name']}
  .amdhsa_next_free_vgpr {v}
  .amdhsa_next_free_sgpr 96
  .amdhsa_accum_offset {v}
  .amdhsa_group_segment_fixed_size 0
  .amdhsa_kernarg_size 72
  .amdhsa_user_sgpr_count 2
  .amdhsa_user_sgpr_kernarg_segment_ptr 1
  .amdhsa_system_sgpr_workgroup_id_x 1
.end_amdhsa_kernel
"""


HEADER = open("concat_heads__mha_block__sliding_block__prompt.s.ref").read().split("; Override")[0]


def build(gens):
    infos, bodies = [], []
    for gfn in gens:
        e = E()
        infos.append(gfn(e))
        bodies.append(e.text())
    out = HEADER
    for i in infos:
        out += f"; @launch kernel={i['name']} grid=({i['grid']},1,1) block=(512,1,1) lds={i['lds']}\n"
    out += '.amdgcn_target "amdgcn-amd-amdhsa--gfx950"\n.text\n'
    for i, b in zip(infos, bodies):
        out += f".globl {i['name']}\n.p2align 8\n.type {i['name']},@function\n" + b
    out += '.section .rodata,"a"\n'
    for i in infos:
        out += ".p2align 6\n" + kd(i)
    return out, infos


if __name__ == "__main__":
    from gen2 import gen_k2, gen_k3
    txt, infos = build([gen_k1, gen_k2, gen_k3])
    path = sys.argv[1] if len(sys.argv) > 1 else "concat_heads__mha_block__sliding_block__prompt.s"
    open(path, "w").write(txt)
    print("wrote", path, len(txt), "bytes")
```

```python
from gen import *

LANE, L16, AK1, AK2, AV, IDX = 1, 2, 3, 4, 5, 6
T0 = 7
Q1 = {"A": 16, "B": 20}
Q2 = {"A": 24, "B": 26}
K1B = [28, 32]
K2B = [36, 38]
VB = [[40, 44], [48, 52]]
SS = [56, 72]
OA = 88
MF, ML = 104, 120
OBS = 136
SK1, SK2 = 144, 148
LK1, LV, LK2 = 0, 65536, 139264
VMASK = 40
LOW = 42
NEGF = 0xF1800000


def qk(e, ph, sb, kb, C):
    d = vr(SS[sb], 16)
    c = "0" if C is None else vr(C, 16)
    e(f"v_mfma_f32_32x32x16_bf16 {d}, {vr(K1B[kb],4)}, {vr(Q1[ph],4)}, {c}")
    return f"v_mfma_f32_32x32x8bf16_1k {d}, {vr(K2B[kb],2)}, {vr(Q2[ph],2)}, {d}"


def pv(vb, half, sb):
    return f"v_smfmac_f32_32x32x32_bf16 {vr(OA,16)}, {vr(VB[vb][half],4)}, {vr(SS[sb]+8*half,8)}, v{IDX}"


def rdK(e, kb, t):
    e(f"ds_read_b128 {vr(K1B[kb],4)}, v{AK1} offset:{1024*t}",
      f"ds_read_b64 {vr(K2B[kb],2)}, v{AK2} offset:{256*t}")


EXP = os.environ.get("EXP", "")


def rdV(e, vb, t):
    if "noexec" not in EXP:
        e(f"s_mov_b64 exec, s[{VMASK}:{VMASK+1}]")
    if "nov" not in EXP:
        e(f"ds_read_b128 {vr(VB[vb][0],4)}, v{AV} offset:{1152*t}",
          f"ds_read_b128 {vr(VB[vb][1],4)}, v{AV} offset:{1152*t+576}")
    if "noexec" not in EXP:
        e("s_mov_b64 exec, -1")


def tile_iter(e, ph, t, prev, nxt, nxt2, Cn):
    p = t & 1
    S = SS[p]
    ex = lambda r: e(f"v_exp_f32 v{S+r}, v{S+r}")
    ex(0); ex(1)
    if prev:
        e(pv(p ^ 1, 1, p ^ 1))
    for r in (2, 3, 4, 5):
        ex(r)
    if "nowait" not in EXP:
        e("s_waitcnt lgkmcnt(0)")
    q2 = None
    if nxt:
        q2 = qk(e, ph, p ^ 1, p ^ 1, Cn)
    for r in (6, 7, 8, 9):
        ex(r)
    fill = []
    if nxt:
        e(q2)
        if nxt2:
            fill += [f"ds_read_b128 {vr(K1B[p],4)}, v{AK1} offset:{1024*(t+2)}",
                     f"ds_read_b64 {vr(K2B[p],2)}, v{AK2} offset:{256*(t+2)}"]
        else:
            fill += ["s_nop 0", "s_nop 0"]
        vb = p ^ 1
        vfill = [f"s_mov_b64 exec, s[{VMASK}:{VMASK+1}]",
                 f"ds_read_b128 {vr(VB[vb][0],4)}, v{AV} offset:{1152*(t+1)}",
                 f"ds_read_b128 {vr(VB[vb][1],4)}, v{AV} offset:{1152*(t+1)+576}",
                 "s_mov_b64 exec, -1"]
    if nxt:
        if "noexec" in EXP:
            vfill = vfill[1:3]
        if "nords" in EXP:
            fill, vfill = [], []
        if "nov" in EXP:
            vfill = []
        if "spread" in EXP:
            ex(10); e(fill[0]); ex(11); e(fill[1]); ex(12); e(vfill[0]); e(vfill[1]); e(vfill[2]); e(vfill[3]); ex(13)
        else:
            e(*fill); e(*vfill)
            for r in (10, 11, 12, 13):
                ex(r)
    else:
        for r in (10, 11, 12, 13):
            ex(r)
    e(pv(p, 0, p))
    ex(14); ex(15)


def finish(e, ph, last_p, slow_label, done_label):
    e("s_nop 1", pv(last_p, 1, last_p), "s_nop 7", "s_nop 7")
    a, b, t = T0, T0 + 1, T0 + 2
    e(f"v_mov_b32 v{a}, v{OA+10}", f"v_mov_b32 v{b}, v{OA+10}", f"v_mov_b32 v{t}, 0", "s_nop 0",
      f"v_permlane32_swap_b32 v{a}, v{b}")
    for r in range(10):
        e(f"v_fmac_f32 v{t}, 0, v{OA+r}")
    e(f"v_add_f32 v{t}, v{a}, v{t}",
      f"s_mov_b32 s3, 0x{f2u(2.0**-100):08x}", f"v_cmp_le_f32 vcc, s3, v{t}",
      f"s_mov_b32 s3, 0x{f2u(2.0**115):08x}", f"v_cmp_ge_f32 s[44:45], s3, v{t}",
      "s_nop 3", "s_and_b64 vcc, vcc, s[44:45]", "s_cmp_eq_u64 vcc, -1", f"s_cbranch_scc0 {slow_label}")
    e.lab(done_label)


def normalize(e, dst):
    a, b = T0, T0 + 1
    e(f"v_mov_b32 v{a}, v{OA+10}", f"v_mov_b32 v{b}, v{OA+10}", "s_nop 1",
      f"v_permlane32_swap_b32 v{a}, v{b}", "s_nop 1", f"v_rcp_f32 v{a}, v{a}", "s_nop 0")
    for r in range(10):
        e(f"v_mul_f32 v{OA+r}, v{a}, v{OA+r}")
    for k in range(5):
        e(f"v_cvt_pk_bf16_f32 v{dst+k}, v{OA+2*k}, v{OA+2*k+1}")
    e("s_nop 1", f"v_permlane32_swap_b32 v{dst}, v{dst+2}", f"v_permlane32_swap_b32 v{dst+1}, v{dst+3}")


def slow_path(e, ph, P, ntiles, back):
    masked = ph == "B"
    m, t2 = T0 + 3, T0 + 4
    a1, a2, a3 = T0 + 5, T0 + 6, T0 + 7
    S = SS[0]
    e.lab(f"{P}_SLOW{ph}")
    if masked:
        e(f"v_and_b32 v{Q2[ph]+1}, 0xffff0000, v{Q2[ph]+1}")
    e(f"v_mov_b32 v{m}, 0xff7fffff")
    for r in range(16):
        e(f"v_mov_b32 v{OA+r}, 0")
    for ps in range(2):
        lab = f"{P}_SL{ph}{ps}"
        e(f"v_mov_b32 v{a1}, v{AK1}", f"v_mov_b32 v{a2}, v{AK2}", f"v_mov_b32 v{a3}, v{AV}", "s_mov_b32 s46, 0")
        e.lab(lab)
        e(f"ds_read_b128 {vr(K1B[0],4)}, v{a1}", f"ds_read_b64 {vr(K2B[0],2)}, v{a2}")
        if ps == 1:
            e(f"s_mov_b64 exec, s[{VMASK}:{VMASK+1}]",
              f"ds_read_b128 {vr(VB[0][0],4)}, v{a3}", f"ds_read_b128 {vr(VB[0][1],4)}, v{a3} offset:576",
              "s_mov_b64 exec, -1")
        e("s_waitcnt lgkmcnt(0)")
        d = vr(S, 16)
        if masked:
            e("s_cmp_eq_u32 s46, 0", f"s_cbranch_scc1 {lab}_F",
              f"s_cmp_eq_u32 s46, {ntiles-1}", f"s_cbranch_scc1 {lab}_L",
              f"v_mfma_f32_32x32x16_bf16 {d}, {vr(K1B[0],4)}, {vr(Q1[ph],4)}, 0", f"s_branch {lab}_J")
            e.lab(f"{lab}_F")
            e(f"v_mfma_f32_32x32x16_bf16 {d}, {vr(K1B[0],4)}, {vr(Q1[ph],4)}, {vr(MF,16)}", f"s_branch {lab}_J")
            e.lab(f"{lab}_L")
            e(f"v_mfma_f32_32x32x16_bf16 {d}, {vr(K1B[0],4)}, {vr(Q1[ph],4)}, {vr(ML,16)}")
            e.lab(f"{lab}_J")
        else:
            e(f"v_mfma_f32_32x32x16_bf16 {d}, {vr(K1B[0],4)}, {vr(Q1[ph],4)}, 0")
        e(f"v_mfma_f32_32x32x8bf16_1k {d}, {vr(K2B[0],2)}, {vr(Q2[ph],2)}, {d}", "s_nop 7", "s_nop 7")
        if ps == 0:
            for r in range(0, 16, 2):
                e(f"v_max3_f32 v{m}, v{S+r}, v{S+r+1}, v{m}")
        else:
            for r in range(16):
                e(f"v_sub_f32 v{S+r}, v{S+r}, v{m}")
            for r in range(16):
                e(f"v_exp_f32 v{S+r}, v{S+r}")
            e("s_nop 1", pv(0, 0, 0), pv(0, 1, 0), "s_nop 7", "s_nop 7")
        e(f"v_add_u32 v{a1}, 1024, v{a1}", f"v_add_u32 v{a2}, 256, v{a2}", f"v_add_u32 v{a3}, 1152, v{a3}",
          "s_add_u32 s46, s46, 1", f"s_cmp_lt_u32 s46, {ntiles}", f"s_cbranch_scc1 {lab}")
        if ps == 0:
            e(f"v_mov_b32 v{t2}, v{m}", "s_nop 1", f"v_permlane32_swap_b32 v{m}, v{t2}", "s_nop 1",
              f"v_max_f32 v{m}, v{m}, v{t2}")
    e(f"s_branch {back}")


def dma(e, srdreg, lds, src_s, src_c):
    ls, lc = lds
    e(f"s_add_u32 m0, s{ls}, {lc}", f"s_add_u32 s3, s{src_s}, {src_c}",
      f"buffer_load_dwordx4 v{L16}, s[{srdreg}:{srdreg+3}], s3 offen lds")


def gen_k2(e):
    P = "K2"
    e.lab("attn_kernel")
    e("s_cmp_ge_u32 s2, 256", f"s_cbranch_scc1 {P}_END")
    stamp(e, 0)
    e("s_load_dwordx2 s[32:33], s[0:1], 64")
    e("s_and_b32 s3, s2, 7", "s_lshl_b32 s3, s3, 2", "s_lshr_b32 s16, s2, 3", "s_and_b32 s16, s16, 3",
      "s_add_u32 s16, s16, s3", "s_lshr_b32 s17, s2, 5")
    e(f"v_lshrrev_b32 v{T0}, 6, v0", f"v_and_b32 v{LANE}, 63, v0", "s_nop 0", f"v_readfirstlane_b32 s19, v{T0}",
      f"v_lshlrev_b32 v{L16}, 4, v{LANE}")
    e("s_waitcnt lgkmcnt(0)")
    e(f"s_mul_i32 s3, s16, {HB}", "s_add_u32 s34, s32, s3", "s_addc_u32 s35, s33, 0")
    srd(e, 4, 34, 35, HB)
    e(f"s_add_u32 s34, s34, {32*HB}", "s_addc_u32 s35, s35, 0")
    srd(e, 8, 34, 35, HB)
    e(f"s_add_u32 s34, s32, {OO}", "s_addc_u32 s35, s33, 0")
    srd(e, 12, 34, 35, 2 * 2359296)
    e("s_lshl_b32 s18, s17, 3", "s_add_u32 s18, s18, s19", "s_lshl_b32 s20, s19, 10")
    e(f"s_mov_b32 s{VMASK}, 0x0003FFFF", f"s_mov_b32 s{VMASK+1}, 0x0003FFFF",
      f"s_mov_b32 s{LOW}, -1", f"s_mov_b32 s{LOW+1}, 0")
    e(f"v_and_b32 v{T0}, 31, v{LANE}", f"v_lshlrev_b32 v{T0+1}, 2, v{T0}",
      *[f"v_mov_b32 v{Q2[x]+k}, 0" for x in "AB" for k in range(2)],
      "s_lshl_b32 s21, s18, 10", "s_lshl_b32 s22, s18, 7", f"s_add_u32 s22, s22, {Q2O}")
    e(f"buffer_load_dwordx4 {vr(Q1['B'],4)}, v{L16}, s[8:11], s21 offen",
      f"s_mov_b64 exec, s[{LOW}:{LOW+1}]",
      f"buffer_load_dword v{Q2['B']}, v{T0+1}, s[8:11], s22 offen", "s_mov_b64 exec, -1")
    e("s_add_u32 s23, s17, 7", "s_and_b32 s23, s23, 7")
    for slot, ch in ((6, 23), (7, 17)):
        e(f"s_lshl_b32 s24, s{ch}, 13", "s_add_u32 s24, s24, s20")
        dma(e, 8, (20, LK1 + slot * 8192), 24, K1O)
        e(f"s_mul_i32 s24, s{ch}, 9216", "s_add_u32 s25, s24, s20")
        dma(e, 8, (20, LV + slot * 9216), 25, VO)
        e(f"s_cmp_eq_u32 s19, {slot-6}", f"s_cbranch_scc0 {P}_BV{slot}")
        e(f"s_mov_b32 m0, {LV + slot*9216 + 8192}", f"s_add_u32 s3, s24, {VO + 8192}",
          f"buffer_load_dwordx4 v{L16}, s[8:11], s3 offen lds")
        e.lab(f"{P}_BV{slot}")
    e("s_cmp_lt_u32 s19, 4", f"s_cbranch_scc1 {P}_BK2D")
    e("s_and_b32 s24, s19, 1", "s_lshl_b32 s24, s24, 10", "s_cmp_lt_u32 s19, 6",
      "s_cselect_b32 s25, s23, s17", "s_cselect_b32 s26, 0, 2048",
      f"s_add_u32 s26, s26, {LK2 + 6*2048}", "s_add_u32 s26, s26, s24", "s_lshl_b32 s25, s25, 11", "s_add_u32 s25, s25, s24",
      f"s_add_u32 s25, s25, {K2O}")
    e("s_cmp_lt_u32 s19, 6", "s_cselect_b32 s27, 1, 0", "s_cmp_eq_u32 s17, 0", "s_cselect_b32 s27, s27, 0",
      "s_cmp_eq_u32 s27, 1", f"s_cbranch_scc1 {P}_BK2F")
    e("s_mov_b32 m0, s26", "s_nop 0", f"buffer_load_dwordx4 v{L16}, s[8:11], s25 offen lds", f"s_branch {P}_BK2D")
    e.lab(f"{P}_BK2F")
    e(f"v_add_u32 v{T0+3}, s26, v{L16}")
    e(f"v_mov_b32 v12, 0", f"v_mov_b32 v13, 0x3F803F80", f"v_mov_b32 v14, 0", f"v_mov_b32 v15, 0x3F803F80",
      f"ds_write_b128 v{T0+3}, v[12:15]")
    e.lab(f"{P}_BK2D")
    e(f"buffer_load_dwordx4 {vr(Q1['A'],4)}, v{L16}, s[4:7], s21 offen",
      f"s_mov_b64 exec, s[{LOW}:{LOW+1}]",
      f"buffer_load_dword v{Q2['A']}, v{T0+1}, s[4:7], s22 offen", "s_mov_b64 exec, -1")
    for k in range(6):
        dma(e, 4, (20, LK1 + 8192 * k), 20, K1O + 8192 * k)
    for k in range(6):
        dma(e, 4, (20, LV + 8192 * k), 20, VO + 8192 * k)
    dma(e, 4, (20, LK2), 20, K2O)
    e("s_cmp_lt_u32 s19, 6", f"s_cbranch_scc0 {P}_AV")
    dma(e, 4, (20, LV + 8192 * 6), 20, VO + 8192 * 6)
    e.lab(f"{P}_AV")
    e("s_cmp_lt_u32 s19, 4", f"s_cbranch_scc1 {P}_AK2")
    dma(e, 4, (20, LK2 + 4096), 20, K2O + 4096)
    e.lab(f"{P}_AK2")
    hh, ii = T0 + 2, T0
    e(f"v_lshrrev_b32 v{hh}, 5, v{LANE}", f"v_mov_b32 v{IDX}, 0xDDDDDDDD")
    e(f"v_mov_b32 v{T0+3}, 0", f"v_mov_b32 v{T0+4}, 0x3F803F80", f"v_cmp_eq_u32 vcc, 18, v{ii}", "s_nop 1",
      f"v_cndmask_b32 v{T0+3}, v{T0+3}, v{T0+4}, vcc")
    for r in range(16):
        e(f"v_mov_b32 v{VB[0][0]+r}, v{T0+3}")
    e(f"v_lshlrev_b32 v{T0+3}, 2, v{hh}", f"v_sub_u32 v{T0+3}, v{ii}, v{T0+3}",
      f"v_mov_b32 v{T0+4}, 0x{NEGF:08x}", f"v_mov_b32 v{T0+5}, 0")
    for r in range(16):
        c = 8 * (r >> 2) + (r & 3)
        e(f"v_cmp_le_i32 vcc, {c}, v{T0+3}", "s_nop 1",
          f"v_cndmask_b32 v{ML+r}, v{T0+4}, v{T0+5}, vcc", f"v_cndmask_b32 v{MF+r}, v{T0+5}, v{T0+4}, vcc")
    e(f"v_lshlrev_b32 v{T0+4}, 3, v{ii}", f"v_add_u32 v{T0+4}, {LK2}, v{T0+4}",
      f"v_mul_u32_u24 v{T0+5}, 288, v{hh}", f"v_lshlrev_b32 v{T0+6}, 4, v{ii}",
      f"v_add_u32 v{T0+5}, v{T0+5}, v{T0+6}", f"v_add_u32 v{T0+5}, {LV}, v{T0+5}")
    e("s_add_u32 s24, s19, 48", "s_lshl_b32 s25, s24, 10", f"v_add_u32 v{AK1}, s25, v{L16}",
      "s_lshl_b32 s25, s24, 8", f"v_add_u32 v{AK2}, s25, v{T0+4}",
      "s_mul_i32 s25, s24, 1152", f"v_add_u32 v{AV}, s25, v{T0+5}")
    e("s_lshl_b32 s24, s18, 5", f"v_add_u32 v{T0+6}, s24, v{ii}", f"v_mul_u32_u24 v{T0+6}, 1152, v{T0+6}",
      f"v_lshlrev_b32 v{T0+7}, 4, v{hh}", f"v_add_u32 v{T0+6}, v{T0+6}, v{T0+7}",
      "s_mul_i32 s24, s16, 36", f"v_add_u32 v142, s24, v{T0+6}", f"v_add_u32 v141, 2359296, v142")
    e(f"v_mov_b32 v143, v{T0+4}", f"v_mov_b32 v150, v{T0+5}")
    for r in range(16):
        e(f"v_mov_b32 v{OA+r}, 0")
    e("s_cmp_eq_u32 s18, 0", "s_cselect_b32 s24, 8, 7", "s_lshl_b32 s25, s24, 10", f"v_add_u32 v{T0+6}, s25, v{AK1}",
      "s_lshl_b32 s25, s24, 8", f"v_add_u32 v{T0+7}, s25, v{AK2}")
    stamp(e, 1)
    e("s_waitcnt vmcnt(16) lgkmcnt(0)")
    stamp(e, 2)
    e("s_barrier")
    stamp(e, 3)
    e(f"ds_read_b128 {vr(SK1,4)}, v{T0+6}", f"ds_read_b64 {vr(SK2,2)}, v{T0+7}")
    rdK(e, 0, 0); rdK(e, 1, 1); rdV(e, 0, 0)
    e(f"s_mov_b64 exec, s[{LOW}:{LOW+1}]", f"v_mov_b32 v{Q2['B']+1}, 0x{NEGF:08x}", "s_mov_b64 exec, -1")
    e("s_waitcnt lgkmcnt(6)")
    d = vr(SS[0], 16)
    e("s_cmp_eq_u32 s18, 0", f"s_cbranch_scc1 {P}_SMPM",
      f"v_mfma_f32_32x32x16_bf16 {d}, {vr(SK1,4)}, {vr(Q1['B'],4)}, 0", f"s_branch {P}_SMPJ")
    e.lab(f"{P}_SMPM")
    e(f"v_mfma_f32_32x32x16_bf16 {d}, {vr(SK1,4)}, {vr(Q1['B'],4)}, {vr(ML,16)}")
    e.lab(f"{P}_SMPJ")
    e(f"v_mfma_f32_32x32x8bf16_1k {d}, {vr(SK2,2)}, {vr(Q2['B'],2)}, {d}", "s_nop 7", "s_nop 7")
    S = SS[0]
    m, t2 = T0 + 3, T0 + 4
    e(f"v_max3_f32 v{m}, v{S}, v{S+1}, v{S+2}")
    for r in range(3, 15, 2):
        e(f"v_max3_f32 v{m}, v{S+r}, v{S+r+1}, v{m}")
    e(f"v_max_f32 v{m}, v{S+15}, v{m}", f"v_mov_b32 v{t2}, v{m}", "s_nop 1",
      f"v_permlane32_swap_b32 v{m}, v{t2}", "s_nop 1", f"v_max_f32 v{m}, v{m}, v{t2}",
      f"v_sub_f32 v{m}, 0x{f2u(-90.0):08x}, v{m}", f"v_lshrrev_b32 v{m}, 16, v{m}",
      f"s_mov_b64 exec, s[{LOW}:{LOW+1}]", f"v_or_b32 v{Q2['B']+1}, 0x{NEGF:08x}, v{m}", "s_mov_b64 exec, -1",
      "s_waitcnt lgkmcnt(0)", "s_nop 0")
    q2 = qk(e, "B", 0, 0, MF)
    e(q2, "s_nop 7", "s_nop 7")
    stamp(e, 4)
    for t in range(9):
        tile_iter(e, "B", t, t > 0, t < 8, t < 7, ML if t == 7 else None)
    stamp(e, 5)
    finish(e, "B", 0, f"{P}_SLOWB", f"{P}_DONEB")
    normalize(e, OBS)
    stamp(e, 6)
    e("s_waitcnt vmcnt(0)")
    stamp(e, 7)
    e(f"buffer_store_dwordx4 {vr(OBS,4)}, v141, s[12:15], 0 offen",
      f"s_mov_b64 exec, s[{LOW}:{LOW+1}]", f"buffer_store_dword v{OBS+4}, v141, s[12:15], 0 offen offset:32",
      "s_mov_b64 exec, -1")
    e("s_barrier")
    stamp(e, 8)
    for k in (6, 7):
        dma(e, 4, (20, LK1 + 8192 * k), 20, K1O + 8192 * k)
    for k in range(2):
        dma(e, 4, (20, LV + 55296 + 8192 * k), 20, VO + 55296 + 8192 * k)
    e("s_cmp_lt_u32 s19, 2", f"s_cbranch_scc0 {P}_LV")
    dma(e, 4, (20, LV + 55296 + 16384), 20, VO + 55296 + 16384)
    e.lab(f"{P}_LV")
    e("s_cmp_lt_u32 s19, 4", f"s_cbranch_scc1 {P}_LK2")
    dma(e, 4, (20, LK2 + 8192), 20, K2O + 8192)
    e.lab(f"{P}_LK2")
    e(f"v_mov_b32 v{AK1}, v{L16}", f"v_mov_b32 v{AK2}, v143", f"v_mov_b32 v{AV}, v150")
    rdK(e, 0, 0); rdK(e, 1, 1); rdV(e, 0, 0)
    for r in range(16):
        e(f"v_mov_b32 v{OA+r}, 0")
    for r in range(8, 16):
        e(f"v_mov_b32 v{SS[1]+r}, 0")
    e("s_waitcnt lgkmcnt(0)")
    q2 = qk(e, "A", 0, 0, None)
    e(q2, "s_mov_b32 s47, 0", "s_nop 7", "s_nop 7")
    stamp(e, 9)
    if "prio" in EXP:
        e("s_cmp_lt_u32 s19, 4", f"s_cbranch_scc0 {P}_NOPRIO", "s_setprio 3")
        e.lab(f"{P}_NOPRIO")
    e.lab(f"{P}_ALOOP")
    e("s_cmp_eq_u32 s47, 5", f"s_cbranch_scc0 {P}_NOBAR", "s_waitcnt vmcnt(0)", "s_nop 0" if "nobar" in EXP else "s_barrier")
    e.lab(f"{P}_NOBAR")
    for t in range(8):
        tile_iter(e, "A", t, True, True, True, None)
    e(f"v_add_u32 v{AK1}, 8192, v{AK1}", f"v_add_u32 v{AK2}, 2048, v{AK2}", f"v_add_u32 v{AV}, 9216, v{AV}",
      "s_add_u32 s47, s47, 1", "s_cmp_lt_u32 s47, 8", f"s_cbranch_scc1 {P}_ALOOP")
    e("s_waitcnt lgkmcnt(0)")
    e(f"v_mov_b32 v{AK1}, v{L16}", f"v_mov_b32 v{AK2}, v143", f"v_mov_b32 v{AV}, v150")
    stamp(e, 10)
    finish(e, "A", 1, f"{P}_SLOWA", f"{P}_DONEA")
    normalize(e, OBS)
    e(f"buffer_store_dwordx4 {vr(OBS,4)}, v142, s[12:15], 0 offen",
      f"s_mov_b64 exec, s[{LOW}:{LOW+1}]", f"buffer_store_dword v{OBS+4}, v142, s[12:15], 0 offen offset:32")
    if PROF:
        e("s_mov_b64 exec, -1")
        stamp(e, 11)
        e("s_waitcnt vmcnt(0)")
        stamp(e, 12)
        stamp_dump(e, 1, 13, P)
    e.lab(f"{P}_END")
    e("s_endpgm")
    slow_path(e, "B", P, 9, f"{P}_DONEB")
    slow_path(e, "A", P, 64, f"{P}_DONEA")
    return dict(name="attn_kernel", vgpr=152, grid=256, lds=156672)


def gen_k3(e):
    P = "K3"
    SB, NB = 28928, 5
    e.lab("proj_kernel")
    e("s_cmp_ge_u32 s2, 192", f"s_cbranch_scc1 {P}_END")
    stamp(e, 0)
    e("s_load_dwordx2 s[24:25], s[0:1], 16", "s_load_dwordx2 s[26:27], s[0:1], 40",
      "s_load_dwordx2 s[28:29], s[0:1], 48", "s_load_dwordx2 s[32:33], s[0:1], 64")
    e("s_and_b32 s16, s2, 1", "s_and_b32 s3, s2, 7", "s_lshr_b32 s3, s3, 1", "s_lshl_b32 s3, s3, 2",
      "s_lshr_b32 s20, s2, 3", "s_and_b32 s17, s20, 3", "s_add_u32 s17, s17, s3", "s_lshr_b32 s18, s20, 2")
    e("v_lshrrev_b32 v1, 6, v0", "v_and_b32 v2, 63, v0", "s_nop 0", "v_readfirstlane_b32 s19, v1")
    e("s_waitcnt lgkmcnt(0)")
    e("s_mul_i32 s3, s16, 2359296", f"s_add_u32 s3, s3, {OO}", "s_add_u32 s34, s32, s3", "s_addc_u32 s35, s33, 0")
    srd(e, 4, 34, 35, 2359296)
    e("s_cmp_eq_u32 s16, 0", "s_cselect_b32 s36, s24, s26", "s_cselect_b32 s37, s25, s27")
    srd(e, 8, 36, 37, 663552)
    srd(e, 12, 28, 29, 4718592)
    g = Gemm(P, NB, SB, 3, 768, 6272, [16, 32], [48, 60], 72)
    e("s_cmp_ge_u32 s19, 4", f"s_cbranch_scc1 {P}_LOAD")
    e("s_and_b32 s20, s19, 1", "s_lshr_b32 s21, s19, 1")
    e("v_and_b32 v3, 15, v2", "v_lshrrev_b32 v4, 4, v2", "v_and_b32 v5, 7, v2", "v_xor_b32 v5, v5, v4",
      "v_lshlrev_b32 v5, 4, v5", "s_lshl_b32 s3, s20, 6", "v_add_u32 v6, s3, v3",
      "v_lshlrev_b32 v8, 7, v6", "v_add_u32 v8, v8, v5", "v_xor_b32 v9, 64, v8")
    e("v_bfe_u32 v5, v2, 2, 2", "v_lshlrev_b32 v7, 3, v4", "v_add_u32 v5, v5, v7",
      "v_mul_u32_u24 v5, 192, v5", "v_lshlrev_b32 v7, 5, v4", "v_add_u32 v5, v5, v7",
      "v_and_b32 v7, 3, v2", "v_lshlrev_b32 v7, 3, v7", "v_add_u32 v5, v5, v7",
      "s_mul_i32 s3, s21, 96", "s_add_u32 s3, s3, 16384", "v_add_u32 v10, s3, v5")
    e("v_mul_u32_u24 v11, 200, v6", "v_lshlrev_b32 v7, 3, v4", "v_add_u32 v11, v11, v7",
      "s_mul_i32 s3, s21, 96", "v_add_u32 v11, s3, v11")
    g.compute(e, [8, 9], 10)
    e("s_nop 7", "s_nop 1")
    for T in range(3):
        for i in range(4):
            a = g.acc + 4 * (4 * T + i)
            e(f"v_cvt_pk_bf16_f32 v{a}, v{a}, v{a+1}", f"v_cvt_pk_bf16_f32 v{a+1}, v{a+2}, v{a+3}",
              f"ds_write_b64 v11, {vr(a,2)} offset:{3200*i + 32*T}")
    e("s_waitcnt lgkmcnt(0)", f"s_branch {P}_OUT")
    e.lab(f"{P}_LOAD")
    e("s_sub_u32 s20, s19, 4")
    e("v_lshrrev_b32 v3, 3, v2", "v_and_b32 v4, 7, v2", "v_xor_b32 v4, v4, v3", "v_lshlrev_b32 v4, 4, v4",
      "s_lshl_b32 s3, s20, 5", "v_add_u32 v3, s3, v3", "v_mul_u32_u24 v8, 1152, v3", "v_add_u32 v8, v8, v4")
    e("v_mul_u32_u24 v3, 43, v2", "v_lshrrev_b32 v3, 9, v3", "v_mul_u32_u24 v4, 12, v3", "v_sub_u32 v4, v2, v4",
      "v_lshlrev_b32 v4, 4, v4", "v_mul_u32_u24 v9, 1152, v3", "v_add_u32 v9, v9, v4",
      "s_mul_i32 s3, s18, 192", "v_add_u32 v9, s3, v9")
    e("s_mul_i32 s40, s17, 147456", "s_lshl_b32 s41, s20, 12", "s_mul_i32 s42, s20, 3136",
      "s_add_u32 s42, s42, 16384", "s_mul_i32 s46, s20, 18432", "s_mov_b32 s44, -1", "s_mov_b32 s45, 0x0000FFFF")

    def issue(s):
        base = (s % NB) * SB
        for i in range(4):
            e(f"s_add_u32 m0, s41, {base + 1024*i}", f"s_add_u32 s43, s40, {128*s + 9216*i}",
              "buffer_load_dwordx4 v8, s[4:7], s43 offen lds")
        e("s_mov_b64 exec, s[44:45]")
        for qq in range(2):
            for hf in range(2):
                e(f"s_add_u32 m0, s42, {base + 1568*qq + 768*hf}",
                  f"s_add_u32 s43, s46, {73728*s + (8*qq + 4*hf)*1152}",
                  "buffer_load_dwordx4 v9, s[8:11], s43 offen lds")
        e("s_mov_b64 exec, -1")
    g.loader(e, issue, 8)
    e.lab(f"{P}_OUT")
    stamp(e, 11)
    e("s_barrier")
    stamp(e, 12)
    e("s_mul_i32 s3, s17, 294912", "s_mul_i32 s20, s16, 1152", "s_add_u32 s3, s3, s20",
      "s_mul_i32 s20, s18, 192", "s_add_u32 s20, s20, s3", "s_mov_b32 s21, 43691")
    for k in range(3):
        e(f"v_add_u32 v3, {512*k}, v0", "v_mul_lo_u32 v4, v3, s21", "v_lshrrev_b32 v4, 19, v4",
          "v_mul_u32_u24 v5, 12, v4", "v_sub_u32 v5, v3, v5", "v_lshlrev_b32 v5, 4, v5",
          "v_mul_u32_u24 v6, 200, v4", "v_add_u32 v6, v6, v5", f"ds_read_b128 {vr(16+4*k,4)}, v6",
          f"v_mul_u32_u24 v{12+k}, 2304, v4", f"v_add_u32 v{12+k}, v{12+k}, v5")
    for k in range(3):
        e(f"s_waitcnt lgkmcnt({2-k})", f"buffer_store_dwordx4 {vr(16+4*k,4)}, v{12+k}, s[12:15], s20 offen")
    if PROF:
        stamp(e, 13)
        e("s_waitcnt vmcnt(0)")
        stamp(e, 14)
        stamp_dump(e, 2, 15, P)
    e.lab(f"{P}_END")
    e("s_endpgm")
    return dict(name="proj_kernel", vgpr=120, grid=192, lds=NB * SB)
```

```python
from gen import *

EXP = os.environ.get("EXP", "")
SB, NB = 45056, 3
LW, LPA, LPB = 16384, 40960, 44032
XS = [16, 24]
WR = 32
ACC = 64
VX0, VX1, VW, VPA, VPB = 4, 5, 6, 10, 11
NT = 14
NDMA = 13


def acc(T, i):
    return ACC + 4 * (2 * T + i)


def wread(j, T):
    d = WR + 4 * (T % 7)
    L = []
    for h in range(2):
        if T < 12:
            a, off = VW + (T & 3), (T >> 2) * 128 + h * 1536 + j * 12288
        elif T == 12:
            a, off = VPA, h * 128 + j * 1536
        else:
            a, off = VPB, h * 64 + j * 512
        L.append(f"ds_read_b64_tr_b16 {vr(d+2*h,2)}, v{a} offset:{off}")
    return L


def xread(j):
    a = VX0 if j == 0 else VX1
    return [f"ds_read_b128 {vr(XS[j]+4*i,4)}, v{a} offset:{2048*i}" for i in range(2)]


def mfma(j, T, i, swapped):
    w, x, d = vr(WR + 4 * (T % 7), 4), vr(XS[j] + 4 * i, 4), vr(acc(T, i), 4)
    a, b = (x, w) if swapped else (w, x)
    return f"v_mfma_f32_16x16x32_bf16 {d}, {a}, {b}, {d}"


def stage_body(swA, swB):
    sw = lambda T: swA if (T < 8 or T == 12) else swB
    plan = {P: [] for P in range(28)}
    for P in range(5, 28):
        plan[P - 5] += [("W", 0, P)]
    plan[2] += [("X", 0, 1)]
    nxt = {24: [("W", 1, 0), ("W", 1, 1)], 25: [("W", 1, 2), ("W", 1, 3), ("X", 1, 0)], 26: [("W", 1, 4)]}
    for P, v in nxt.items():
        plan[P] += v
    seq = []
    waits = {}
    issued = []
    for it in range(2):
        for P in range(28):
            j, T = divmod(P, 14)
            need = [("W", it, P), ("X", it, j)]
            pos = -1
            for k, (key, n) in enumerate(issued):
                if key in need:
                    pos = k
            if pos >= 0:
                after = sum(n for key, n in issued[pos + 1:])
                waits[(it, P)] = after
            if P == 24:
                issued = []
            for kind, so, idx in plan[P]:
                issued.append(((kind, it + so, idx), 2))
    L = []
    last = None
    for P in range(28):
        j, T = divmod(P, 14)
        w = waits.get((1, P))
        if w is not None:
            L.append(f"s_waitcnt lgkmcnt({min(w, 15)})")
        L += [mfma(j, T, 0, sw(T)), mfma(j, T, 1, sw(T))]
        if P == 24:
            L += ["s_waitcnt lgkmcnt(0)", "s_barrier",
                  f"v_add_u32 v{VX0}, s50, v{VX0}", f"v_add_u32 v{VPA}, s50, v{VPA}", f"v_add_u32 v{VPB}, s50, v{VPB}"]
            L += [f"v_add_u32 v{VW+k}, s50, v{VW+k}" for k in range(4)]
        if P == 26:
            L += [f"v_add_u32 v{VX1}, s50, v{VX1}"]
        for kind, so, idx in plan[P]:
            if kind == "W":
                L += wread(idx // 14, idx % 14)
            else:
                L += xread(idx)
    return L


def epi_qk(e, T0, n, Tp, is_q, s_head, np_):
    off1, off2 = (Q1O, Q2O) if is_q else (K1O, K2O)
    for k in range(n):
        T = T0 + k
        a, b = acc(T, 0), acc(T, 1)
        if is_q:
            e(*[f"v_mul_f32 v{a+r}, s22, v{a+r}" for r in range(8)])
        e(f"v_cvt_pk_bf16_f32 v{a}, v{a}, v{a+1}", f"v_cvt_pk_bf16_f32 v{a+1}, v{a+2}, v{a+3}",
          f"v_cvt_pk_bf16_f32 v{a+2}, v{b}, v{b+1}", f"v_cvt_pk_bf16_f32 v{a+3}, v{b+2}, v{b+3}",
          f"s_add_u32 s3, s{s_head}, {k*HB + off1}", "s_add_u32 s3, s3, s23",
          f"v_permlane16_swap_b32 v{a}, v{a+2}", f"v_permlane16_swap_b32 v{a+1}, v{a+3}",
          f"buffer_store_dwordx4 {vr(a,4)}, v12, s[12:15], s3 offen")
    sh = 2 if is_q else 3
    e(f"s_lshl_b32 s3, s24, {sh}", f"s_add_u32 s3, s3, s{s_head}", f"s_add_u32 s3, s3, {off2}",
      f"v_lshlrev_b32 v14, {sh}, v3", "v_add_u32 v14, v14, v13")
    if np_ == 4:
        e("s_mov_b32 exec_hi, 0")
    for i in range(2):
        a = acc(Tp, i)
        if is_q:
            e(*[f"v_mul_f32 v{a+r}, s22, v{a+r}" for r in range(4)])
            e(f"v_cvt_pk_bf16_f32 v{a}, v{a}, v{a+1}", f"v_cvt_pk_bf16_f32 v{a+1}, v{a+2}, v{a+3}",
              f"buffer_store_dword v{a}, v14, s[12:15], s3 offen offset:{64*i}",
              f"v_add_u32 v15, {HB}, v14",
              f"buffer_store_dword v{a+1}, v15, s[12:15], s3 offen offset:{64*i}")
        else:
            e(f"v_cvt_pk_bf16_f32 v{a}, v{a}, v{a+1}", f"v_cvt_pk_bf16_f32 v{a+2}, v{a+2}, v{a+3}",
              f"v_mov_b32 v{a+1}, 0x00003F80", f"v_mov_b32 v{a+3}, 0x00003F80",
              f"v_add_u32 v15, {HB}, v14",
              f"buffer_store_dwordx2 {vr(a,2)}, v14, s[12:15], s3 offen offset:{128*i}",
              f"buffer_store_dwordx2 {vr(a+2,2)}, v15, s[12:15], s3 offen offset:{128*i}")
    if np_ == 4:
        e("s_mov_b64 exec, -1")


def epi_v(e, T0, n, Tp, s_head, np_):
    for k in list(range(n)) + ["p"]:
        T = Tp if k == "p" else T0 + k
        a, b = acc(T, 0), acc(T, 1)
        e(f"v_cvt_pk_bf16_f32 v{a}, v{a}, v{a+1}", f"v_cvt_pk_bf16_f32 v{a+1}, v{a+2}, v{a+3}",
          f"v_cvt_pk_bf16_f32 v{a+2}, v{b}, v{b+1}", f"v_cvt_pk_bf16_f32 v{a+3}, v{b+2}, v{b+3}")
        if k == "p":
            e(f"s_add_u32 s3, s{s_head}, s25", "s_nop 0")
        else:
            e(f"s_add_u32 s3, s{s_head}, {k*HB}", "s_add_u32 s3, s3, s25")
        e(f"v_permlane16_swap_b32 v{a}, v{a+2}", f"v_permlane16_swap_b32 v{a+1}, v{a+3}")
        if k == "p":
            va = 9 if np_ == 8 else 10
            e(f"buffer_store_dwordx4 {vr(a,4)}, v{va}, s[12:15], s3 offen")
        else:
            e(f"buffer_store_dwordx4 {vr(a,4)}, v8, s[12:15], s3 offen")


def gen_k1(e):
    P = "K1"
    e.lab("qkv_kernel")
    e("s_cmp_ge_u32 s2, 256", f"s_cbranch_scc1 {P}_END")
    stamp(e, 0)
    e("s_load_dwordx4 s[24:27], s[0:1], 0", "s_load_dwordx4 s[28:31], s[0:1], 24",
      "s_load_dwordx2 s[32:33], s[0:1], 64")
    e("v_lshrrev_b32 v1, 6, v0", "v_and_b32 v2, 63, v0", "s_and_b32 s16, s2, 1", "v_readfirstlane_b32 s19, v1",
      "s_lshr_b32 s3, s2, 1", "s_and_b32 s3, s3, 1", "s_lshl_b32 s3, s3, 3",
      "s_lshr_b32 s20, s2, 3", "s_and_b32 s17, s20, 7", "s_add_u32 s17, s17, s3",
      "s_lshr_b32 s3, s2, 2", "s_and_b32 s3, s3, 1", "s_lshl_b32 s3, s3, 2",
      "s_lshr_b32 s18, s20, 3", "s_add_u32 s18, s18, s3",
      "s_mul_i32 s46, s18, 432", "s_add_u32 s47, s46, 288", "s_cmp_eq_u32 s18, 5",
      "s_cselect_b32 s46, 2304, s46", "s_cselect_b32 s47, 2160, s47")
    e("s_waitcnt lgkmcnt(0)")
    e("s_cmp_eq_u32 s16, 0",
      "s_cselect_b32 s4, s24, s28", "s_cselect_b32 s5, s25, s29", "s_mov_b32 s6, 2359296", "s_mov_b32 s7, 0x00020000",
      "s_cselect_b32 s8, s26, s30", "s_cselect_b32 s9, s27, s31", "s_mov_b32 s10, 1990656", "s_mov_b32 s11, 0x00020000")
    e("s_cmp_ge_u32 s19, 4", f"s_cbranch_scc1 {P}_LOAD")
    e(f"s_mul_i32 s3, s16, {32*HB}", "s_add_u32 s38, s32, s3", "s_addc_u32 s39, s33, 0")
    srd(e, 12, 38, 39, 32 * HB)
    e("v_and_b32 v3, 15, v2", "v_lshrrev_b32 v13, 4, v2", "v_bfe_u32 v14, v2, 2, 2", "v_and_b32 v15, 3, v2")
    e("v_and_b32 v4, 7, v2", "v_xor_b32 v4, v4, v13", "v_lshlrev_b32 v4, 4, v4", "s_lshl_b32 s3, s19, 5",
      "v_add_u32 v5, s3, v3", f"v_lshl_add_u32 v{VX0}, v5, 7, v4", f"v_xor_b32 v{VX1}, 64, v{VX0}")
    e("v_lshl_add_u32 v1, v13, 3, v14", "v_mul_u32_u24 v1, 384, v1", "v_lshl_add_u32 v1, v15, 3, v1",
      f"v_add_u32 v1, {LW}, v1", "v_lshrrev_b32 v12, 1, v14", "v_and_b32 v10, 1, v13",
      "v_lshl_or_b32 v12, v10, 1, v12")
    for k in range(4):
        e(f"v_xor_b32 v10, {k}, v12", f"v_lshl_add_u32 v{VW+k}, v10, 5, v1")
    e("v_mul_u32_u24 v10, 384, v13", "v_lshl_add_u32 v10, v14, 5, v10", "v_lshl_add_u32 v10, v15, 3, v10",
      f"v_add_u32 v{VPA}, {LPA}, v10",
      "v_lshlrev_b32 v11, 7, v13", "v_lshl_add_u32 v11, v14, 4, v11", "v_lshl_add_u32 v11, v15, 3, v11",
      f"v_add_u32 v{VPB}, {LPB}, v11")
    e("v_mov_b32 v12, 0", "v_mov_b32 v1, 0", *[f"v_mov_b32 v{XS[0]+r}, 0" for r in range(4)], "s_nop 1")
    for T in range(NT):
        for i in range(2):
            e(f"v_mfma_f32_16x16x32_bf16 {vr(acc(T,i),4)}, {vr(XS[0],4)}, {vr(XS[0],4)}, 0")
    e("s_mov_b32 s48, 0", f"s_mov_b32 s50, {SB}", "s_mov_b32 s55, 0x124", f"s_mov_b32 s56, {(-2*SB) & 0xffffffff}",
      f"s_mov_b32 s57, {SB}")
    stamp(e, 1)
    e("s_barrier")
    stamp(e, 2)
    e(*xread(0))
    for T in range(5):
        e(*wread(0, T))
    e("s_waitcnt lgkmcnt(0)")
    e("s_cmp_ge_u32 s18, 6", f"s_cbranch_scc1 {P}_LSS", "s_cmp_eq_u32 s18, 5", f"s_cbranch_scc1 {P}_LSN")
    for nm, swA, swB in (("NN", False, False), ("SN", True, False), ("SS", True, True)):
        e.lab(f"{P}_L{nm}")
        e(*stage_body(swA, swB))
        e("s_add_u32 s48, s48, 1", "s_bitcmp1_b32 s55, s48", "s_cselect_b32 s50, s56, s57")
        e("s_cmp_lt_u32 s48, 9", f"s_cbranch_scc1 {P}_L{nm}")
        if nm != "SS":
            e(f"s_branch {P}_EPI")
    e.lab(f"{P}_EPI")
    stamp(e, 11)
    e("s_waitcnt lgkmcnt(0)")
    for s_col, s_h in ((46, 26), (47, 27)):
        e(f"s_cmp_ge_u32 s{s_col}, 2304", f"s_cselect_b32 s3, 2304, 0", f"s_sub_u32 s{s_h}, s{s_col}, s3",
          f"s_cmp_ge_u32 s{s_h}, 1152", "s_cselect_b32 s3, 1152, 0", f"s_sub_u32 s{s_h}, s{s_h}, s3",
          f"s_mul_i32 s{s_h}, s{s_h}, 1821", f"s_lshr_b32 s{s_h}, s{s_h}, 16", f"s_mul_i32 s{s_h}, s{s_h}, {HB}")
    e("s_lshl_b32 s23, s17, 2", "s_add_u32 s23, s23, s19", "s_lshl_b32 s24, s23, 5", "s_mul_i32 s25, s23, 1152",
      f"s_add_u32 s25, s25, {VO}", "s_lshl_b32 s23, s23, 10", f"s_mov_b32 s22, 0x{f2u(CSCALE):08x}")
    e("v_lshlrev_b32 v12, 4, v2", "v_lshrrev_b32 v14, 4, v2", "v_and_b32 v15, 1, v14", "v_mul_u32_u24 v8, 576, v15",
      "v_lshrrev_b32 v15, 1, v14", "v_mul_u32_u24 v15, 288, v15", "v_add_u32 v8, v8, v15",
      "v_lshrrev_b32 v15, 1, v3", f"s_mov_b32 s3, {HB}", "v_mul_lo_u32 v15, v15, s3", "v_add_u32 v9, v8, v15",
      "v_and_b32 v15, 1, v3", "v_lshl_add_u32 v9, v15, 4, v9", "v_add_u32 v9, 256, v9",
      "v_mov_b32 v15, 0x40000000", "v_cmp_gt_u32 vcc, 8, v3", "v_lshl_add_u32 v8, v3, 4, v8",
      f"s_mov_b32 s3, {2*HB}", "v_cndmask_b32 v10, v15, v9, vcc", "v_mul_lo_u32 v13, v14, s3")
    e("s_cmp_ge_u32 s18, 5", f"s_cbranch_scc1 {P}_AV", "s_cmp_ge_u32 s18, 3", f"s_cbranch_scc1 {P}_AK")
    epi_qk(e, 0, 8, 12, True, 26, 8)
    e(f"s_branch {P}_B")
    e.lab(f"{P}_AK")
    epi_qk(e, 0, 8, 12, False, 26, 8)
    e(f"s_branch {P}_B")
    e.lab(f"{P}_AV")
    epi_v(e, 0, 8, 12, 26, 8)
    e.lab(f"{P}_B")
    e("s_cmp_ge_u32 s18, 6", f"s_cbranch_scc1 {P}_BV", "s_cmp_ge_u32 s18, 2", f"s_cbranch_scc1 {P}_BK")
    epi_qk(e, 8, 4, 13, True, 27, 4)
    e(f"s_branch {P}_FIN")
    e.lab(f"{P}_BK")
    epi_qk(e, 8, 4, 13, False, 27, 4)
    e(f"s_branch {P}_FIN")
    e.lab(f"{P}_BV")
    epi_v(e, 8, 4, 13, 27, 4)
    e(f"s_branch {P}_FIN")
    e.lab(f"{P}_LOAD")
    e("s_sub_u32 s20, s19, 4")
    e("v_lshrrev_b32 v3, 3, v2", "v_and_b32 v4, 7, v2", "v_xor_b32 v4, v4, v3", "v_lshlrev_b32 v4, 4, v4",
      "s_lshl_b32 s3, s20, 5", "v_add_u32 v5, s3, v3", "v_mul_u32_u24 v8, 1152, v5", "v_add_u32 v8, v8, v4")
    e("s_mul_i32 s40, s17, 147456", "s_lshl_b32 s41, s20, 12")
    e("s_add_u32 m0, s41, 0", "s_add_u32 s43, s40, 0", "buffer_load_dwordx4 v8, s[4:7], s43 offen lds")
    e("s_sub_u32 s44, s47, s46", "s_sub_u32 s44, s44, 288")
    for par in range(2):
        for k in range(3):
            d = 10 + 3 * par + k
            e(f"v_add_u32 v3, {64*k}, v2", "v_mul_u32_u24 v4, 2731, v3", "v_lshrrev_b32 v4, 16, v4",
              "v_mul_u32_u24 v5, 24, v4", "v_sub_u32 v5, v3, v5",
              "v_lshrrev_b32 v6, 1, v5", "v_bfe_u32 v7, v4, 1, 1", f"v_or_b32 v7, {2*par}, v7",
              "v_xor_b32 v6, v6, v7",
              "v_mul_u32_u24 v7, 36, v6", "v_and_b32 v5, 1, v5", "v_lshl_add_u32 v7, v5, 4, v7",
              "v_mul_u32_u24 v4, 3456, v4", "v_add_u32 v7, v7, v4",
              "v_cmp_le_u32 vcc, 8, v6", "v_mov_b32 v4, s44", "v_mov_b32 v5, 0",
              "v_cndmask_b32 v5, v5, v4, vcc", "v_add_u32 v7, v7, v5", f"v_add_u32 v{d}, s46, v7")
    e("v_lshrrev_b32 v3, 3, v2", "v_mul_u32_u24 v3, 3456, v3", "v_and_b32 v4, 7, v2", "v_mul_u32_u24 v4, 36, v4",
      "v_add_u32 v3, v3, v4", "s_add_u32 s3, s46, 32", "v_add_u32 v16, s3, v3",
      "v_lshrrev_b32 v3, 2, v2", "v_mul_u32_u24 v3, 3456, v3", "v_and_b32 v4, 3, v2", "v_mul_u32_u24 v4, 36, v4",
      "v_add_u32 v3, v3, v4", "s_add_u32 s3, s47, 32", "v_add_u32 v17, s3, v3")
    e("s_mul_i32 s42, s20, 6144", f"s_add_u32 s42, s42, {LW}", "s_mul_i32 s45, s20, 55296",
      "s_mul_i32 s52, s20, 768", f"s_add_u32 s52, s52, {LPA}", "s_lshl_b32 s53, s20, 8", f"s_add_u32 s53, s53, {LPB}")

    def issue(s, skip_first=False):
        base = (s % NB) * SB
        for i in range(4):
            if skip_first and i == 0:
                continue
            e(f"s_add_u32 m0, s41, {base + 1024*i}", f"s_add_u32 s43, s40, {128*s + 9216*i}",
              "buffer_load_dwordx4 v8, s[4:7], s43 offen lds")
        for par in range(2):
            for k in range(3):
                e(f"s_add_u32 m0, s42, {base + 3072*par + 1024*k}",
                  f"s_add_u32 s43, s45, {221184*s + 27648*par}",
                  f"buffer_load_dwordx4 v{10+3*par+k}, s[8:11], s43 offen lds")
        for par in range(2):
            e(f"s_add_u32 m0, s52, {base + 384*par}", f"s_add_u32 s43, s45, {221184*s + 27648*par}",
              "buffer_load_dword v16, s[8:11], s43 offen lds")
        e(f"s_add_u32 m0, s53, {base}", f"s_add_u32 s43, s45, {221184*s}",
          "buffer_load_dword v17, s[8:11], s43 offen lds")

    issue(0, True)
    issue(1)
    stamp(e, 1)
    e(f"s_waitcnt vmcnt({NDMA})")
    stamp(e, 2)
    e("s_barrier")
    issue(2)
    for s in range(9):
        left = max(min(s + 2, 8) - (s + 1), 0)
        e(f"s_waitcnt vmcnt({left*NDMA})")
        stamp(e, 3 + s if s < 8 else 11)
        e("s_barrier")
        if s + 3 <= 8:
            issue(s + 3)
    e.lab(f"{P}_FIN")
    if PROF:
        stamp(e, 13)
        e("s_waitcnt vmcnt(0)")
        stamp(e, 14)
        stamp_dump(e, 0, 15, P)
    e.lab(f"{P}_END")
    e("s_endpgm")
    return dict(name="qkv_kernel", vgpr=176, grid=256, lds=NB * SB)
```

```python
from gen import *

EXP = os.environ.get("EXP", "")
LANE, L16, AK1, AK2, AV, IDX = 1, 2, 3, 4, 5, 6
T0 = 7
Q1A, Q1B_, Q2A, Q2B_ = [16, 20], 24, [28, 30], 32
K1B = [34, 38]
K2B = [42, 44]
AK2L, AVL = 46, 47
VB = [[48, 52], [56, 60]]
SA, SB_ = [64, 80], [96, 112]
OA, OB = 128, 144
MF, ML = 160, 176
OBS = 192
ADA, ADB = 197, 198
SK1, SK2 = 200, 204
G2, GV = 206, 207
ZZ = 208
LMSK = 155648
LK1, LV, LK2 = 0, 65536, 139264
VMASK, LOW = 40, 42
NEGF = 0xF1800000


def mf1(S, kb, Q, C):
    c = "0" if C is None else vr(C, 16)
    return f"v_mfma_f32_32x32x16_bf16 {vr(S,16)}, {vr(K1B[kb],4)}, {vr(Q,4)}, {c}"


def mf2(S, kb, Q):
    return f"v_mfma_f32_32x32x8bf16_1k {vr(S,16)}, {vr(K2B[kb],2)}, {vr(Q,2)}, {vr(S,16)}"


def pv(O, vb, half, S):
    return f"v_smfmac_f32_32x32x32_bf16 {vr(O,16)}, {vr(VB[vb][half],4)}, {vr(S+8*half,8)}, v{IDX}"


def rdK(kb, t):
    return [f"ds_read_b128 {vr(K1B[kb],4)}, v{AK1} offset:{1024*t}",
            f"ds_read_b64 {vr(K2B[kb],2)}, v{AK2} offset:{256*t}"]


def rdV(vb, t):
    return [f"s_mov_b64 exec, s[{VMASK}:{VMASK+1}]",
            f"ds_read_b128 {vr(VB[vb][0],4)}, v{AV} offset:{1152*t}",
            f"ds_read_b128 {vr(VB[vb][1],4)}, v{AV} offset:{1152*t+576}",
            "s_mov_b64 exec, -1"]


def b_iter(e, t, prev, nxt, nxt2, Cn, extra):
    p = t & 1
    S, N = SA[p], SA[p ^ 1]
    ex = lambda r: e(f"v_exp_f32 v{S+r}, v{S+r}")
    ex(0); ex(1)
    if prev:
        e(pv(OA, p ^ 1, 1, N))
    ex(2); ex(3)
    if extra:
        e(*extra[0])
    ex(4); ex(5)
    e("s_waitcnt lgkmcnt(0)")
    if nxt:
        e(mf1(N, p ^ 1, Q1B_, Cn))
    ex(6); ex(7)
    if len(extra) > 1:
        e(*extra[1])
    ex(8); ex(9)
    if nxt:
        e(mf2(N, p ^ 1, Q2B_))
        e(*(rdK(p, t + 2) if nxt2 else ["s_nop 0", "s_nop 0"]))
        e(*rdV(p ^ 1, t + 1))
    for r in (10, 11, 12, 13):
        ex(r)
    e(pv(OA, p, 0, S))
    ex(14); ex(15)


def a_step(e, s):
    p = s & 1
    n = p ^ 1
    M = [pv(OA, n, 1, SA[n]), mf1(SA[n], n, Q1A[0], None), mf2(SA[n], n, Q2A[0]), pv(OA, p, 0, SA[p]),
         pv(OB, n, 1, SB_[n]), mf1(SB_[n], n, Q1A[1], None), mf2(SB_[n], n, Q2A[1]), pv(OB, p, 0, SB_[p])]
    k = rdK(p, 2 * (s + 2))
    v = rdV(n, 2 * (s + 1))
    after = {4: ["s_waitcnt lgkmcnt(0)"], 7: [k[0]], 10: [k[1]], 18: v}
    regs = [SA[p] + r for r in range(16)] + [SB_[p] + r for r in range(16)]
    for i, r in enumerate(regs):
        if "noalt" not in EXP and i in (0, 16):
            e(f"s_setprio {1 if i == 0 else 0}")
        e(f"v_exp_f32 v{r}, v{r}")
        e(*after.get(i, []))
        if i % 4 == 1:
            e(M[i // 4])


def check(e, slow_label, done_label):
    a, b, t = T0, T0 + 1, T0 + 2
    e(f"v_mov_b32 v{a}, v{OA+10}", f"v_mov_b32 v{b}, v{OA+10}", f"v_mul_f32 v{t}, 0, v{OA}", "s_nop 0",
      f"v_permlane32_swap_b32 v{a}, v{b}")
    for r in range(1, 10):
        e(f"v_fmac_f32 v{t}, 0, v{OA+r}")
    e(f"v_add_f32 v{t}, v{a}, v{t}",
      f"s_mov_b32 s3, 0x{f2u(2.0**-100):08x}", f"v_cmp_le_f32 vcc, s3, v{t}",
      f"s_mov_b32 s3, 0x{f2u(2.0**115):08x}", f"v_cmp_ge_f32 s[44:45], s3, v{t}",
      f"v_rcp_f32 v{a}, v{a}", "s_nop 2", "s_and_b64 vcc, vcc, s[44:45]", "s_cmp_eq_u64 vcc, -1",
      f"s_cbranch_scc0 {slow_label}")
    e.lab(done_label)


def normalize(e, dst):
    a = T0
    for r in range(10):
        e(f"v_mul_f32 v{OA+r}, v{a}, v{OA+r}")
    for k in range(5):
        e(f"v_cvt_pk_bf16_f32 v{dst+k}, v{OA+2*k}, v{OA+2*k+1}")
    e("s_nop 0", f"v_permlane32_swap_b32 v{dst}, v{dst+2}", f"v_permlane32_swap_b32 v{dst+1}, v{dst+3}")


def slow_path(e, P):
    m, t2 = T0 + 3, T0 + 4
    S = SA[0]
    d = vr(S, 16)
    e.lab(f"{P}_SLOW")
    e(f"v_mov_b32 v{m}, 0xff7fffff")
    for r in range(16):
        e(f"v_mov_b32 v{OA+r}, 0")
    for ps in range(2):
        lab = f"{P}_SL{ps}"
        e("s_mov_b32 s46, s49")
        e.lab(lab)
        e("s_lshl_b32 s47, s46, 10", f"s_add_u32 s47, s47, {K1O}",
          f"buffer_load_dwordx4 {vr(K1B[0],4)}, v{L16}, s[56:59], s47 offen",
          "s_lshl_b32 s47, s46, 8", f"s_add_u32 s47, s47, {K2O}",
          f"buffer_load_dwordx2 {vr(K2B[0],2)}, v{G2}, s[56:59], s47 offen")
        if ps == 1:
            e("s_mul_i32 s47, s46, 1152", f"s_add_u32 s47, s47, {VO}",
              f"s_mov_b64 exec, s[{VMASK}:{VMASK+1}]",
              f"buffer_load_dwordx4 {vr(VB[0][0],4)}, v{GV}, s[56:59], s47 offen",
              f"buffer_load_dwordx4 {vr(VB[0][1],4)}, v{GV}, s[56:59], s47 offen offset:576",
              "s_mov_b64 exec, -1")
        e("s_waitcnt vmcnt(0)")
        e("s_cmp_eq_u32 s46, s51", f"s_cbranch_scc1 {lab}_F",
          "s_cmp_eq_u32 s46, s52", f"s_cbranch_scc1 {lab}_L",
          mf1(S, 0, Q1B_, None), f"s_branch {lab}_J")
        e.lab(f"{lab}_F")
        e(mf1(S, 0, Q1B_, MF), f"s_branch {lab}_J")
        e.lab(f"{lab}_L")
        e(mf1(S, 0, Q1B_, ML))
        e.lab(f"{lab}_J")
        e(mf2(S, 0, Q2B_), "s_nop 7", "s_nop 7")
        if ps == 0:
            for r in range(0, 16, 2):
                e(f"v_max3_f32 v{m}, v{S+r}, v{S+r+1}, v{m}")
        else:
            for r in range(16):
                e(f"v_sub_f32 v{S+r}, v{S+r}, v{m}")
            for r in range(16):
                e(f"v_exp_f32 v{S+r}, v{S+r}")
            e("s_nop 1", pv(OA, 0, 0, S), pv(OA, 0, 1, S), "s_nop 7", "s_nop 7")
        e("s_add_u32 s46, s46, 1", "s_cmp_le_u32 s46, s50", f"s_cbranch_scc1 {lab}")
        if ps == 0:
            e(f"v_mov_b32 v{t2}, v{m}", "s_nop 1", f"v_permlane32_swap_b32 v{m}, v{t2}", "s_nop 1",
              f"v_max_f32 v{m}, v{m}, v{t2}")
    a, b = T0, T0 + 1
    e(f"v_mov_b32 v{a}, v{OA+10}", f"v_mov_b32 v{b}, v{OA+10}", "s_nop 1",
      f"v_permlane32_swap_b32 v{a}, v{b}", "s_nop 1", f"v_rcp_f32 v{a}, v{a}", "s_nop 1")
    e("s_cmp_eq_u32 s48, 0", f"s_cbranch_scc1 {P}_DONEB", f"s_branch {P}_DONEA")


def dma(srdreg, lds, src_s, src_c):
    ls, lc = lds
    return [f"s_add_u32 m0, s{ls}, {lc}", f"s_add_u32 s3, s{src_s}, {src_c}",
            f"buffer_load_dwordx4 v{L16}, s[{srdreg}:{srdreg+3}], s3 offen lds"]


def gen_k2(e):
    P = "K2"
    e.lab("attn_kernel")
    e("s_cmp_ge_u32 s2, 256", f"s_cbranch_scc1 {P}_END")
    stamp(e, 0)
    e("s_setprio 3")
    e("s_load_dwordx2 s[32:33], s[0:1], 64")
    e(f"v_lshrrev_b32 v{T0}, 6, v0", f"v_and_b32 v{LANE}, 63, v0",
      "s_and_b32 s3, s2, 7", f"v_readfirstlane_b32 s19, v{T0}", "s_lshl_b32 s3, s3, 2",
      "s_lshr_b32 s16, s2, 3", "s_and_b32 s16, s16, 3", "s_add_u32 s16, s16, s3", "s_lshr_b32 s17, s2, 5",
      f"v_lshlrev_b32 v{L16}, 4, v{LANE}", f"s_mul_i32 s3, s16, {HB}",
      "s_add_u32 s23, s17, 7", "s_and_b32 s23, s23, 7", "s_lshl_b32 s20, s19, 10")
    ii, i4, hh = T0, T0 + 1, T0 + 2
    e("s_waitcnt lgkmcnt(0)")
    stamp(e, 13)
    e("s_add_u32 s34, s32, s3", "s_addc_u32 s35, s33, 0")
    e(f"s_add_u32 s8, s34, {32*HB}", "s_addc_u32 s9, s35, 0", f"s_mov_b32 s10, {HB}", "s_mov_b32 s11, 0x00020000")
    for slot, ch in ((7, 17), (6, 23)):
        e(f"s_lshl_b32 s26, s{ch}, 13", "s_add_u32 s26, s26, s20")
        e(*dma(8, (20, LK1 + slot * 8192), 26, K1O))
        e(f"s_mul_i32 s26, s{ch}, 9216", "s_add_u32 s27, s26, s20")
        e(*dma(8, (20, LV + slot * 9216), 27, VO))
        e(f"s_cmp_eq_u32 s19, {slot-6}", f"s_cbranch_scc0 {P}_BV{slot}")
        e(f"s_mov_b32 m0, {LV + slot*9216 + 8192}", f"s_add_u32 s3, s26, {VO + 8192}",
          f"buffer_load_dwordx4 v{L16}, s[8:11], s3 offen lds")
        e.lab(f"{P}_BV{slot}")
    stamp(e, 14)
    e("s_lshr_b32 s21, s19, 2", "s_and_b32 s22, s19, 3", "s_lshl_b32 s22, s22, 1", "s_add_u32 s22, s22, s21",
      "s_lshl_b32 s18, s17, 3", "s_add_u32 s18, s18, s22",
      f"v_and_b32 v{ii}, 31, v{LANE}", f"v_and_b32 v{i4}, 32, v{LANE}", f"v_lshlrev_b32 v{i4}, 26, v{i4}",
      f"v_lshl_or_b32 v{i4}, v{ii}, 2, v{i4}",
      "s_lshl_b32 s24, s18, 10", "s_lshl_b32 s25, s18, 7", f"s_add_u32 s25, s25, {Q2O}")
    e(f"buffer_load_dwordx4 {vr(Q1B_,4)}, v{L16}, s[8:11], s24 offen",
      f"buffer_load_dword v{Q2B_}, v{i4}, s[8:11], s25 offen")
    e("s_cmp_lt_u32 s19, 4", f"s_cbranch_scc1 {P}_BK2D")
    e("s_and_b32 s28, s19, 1", "s_lshl_b32 s28, s28, 10", "s_cmp_lt_u32 s19, 6",
      "s_cselect_b32 s29, s23, s17", "s_cselect_b32 s26, 0, 2048",
      f"s_add_u32 s26, s26, {LK2 + 6*2048}", "s_add_u32 s26, s26, s28", "s_lshl_b32 s29, s29, 11",
      "s_add_u32 s29, s29, s28", f"s_add_u32 s29, s29, {K2O}")
    e("s_cmp_lt_u32 s19, 6", "s_cselect_b32 s27, 1, 0", "s_cmp_eq_u32 s17, 0", "s_cselect_b32 s27, s27, 0",
      "s_cmp_eq_u32 s27, 1", f"s_cbranch_scc1 {P}_BK2F")
    e("s_mov_b32 m0, s26", "s_nop 0", f"buffer_load_dwordx4 v{L16}, s[8:11], s29 offen lds", f"s_branch {P}_BK2D")
    e.lab(f"{P}_BK2F")
    e(f"v_add_u32 v10, s26, v{L16}", "v_mov_b32 v12, 0", "v_mov_b32 v13, 0x3F803F80", "v_mov_b32 v14, 0",
      "v_mov_b32 v15, 0x3F803F80", "ds_write_b128 v10, v[12:15]")
    e.lab(f"{P}_BK2D")
    srd(e, 4, 34, 35, HB)
    stamp(e, 15)
    e("s_setprio 0")
    e(f"s_add_u32 s34, s32, {OO}", "s_addc_u32 s35, s33, 0")
    srd(e, 12, 34, 35, 2 * 2359296)
    e(f"s_mov_b32 s{VMASK}, 0x0003FFFF", f"s_mov_b32 s{VMASK+1}, 0x0003FFFF",
      f"s_mov_b32 s{LOW}, -1", f"s_mov_b32 s{LOW+1}, 0")
    e(f"v_lshrrev_b32 v{hh}, 5, v{LANE}", f"v_mov_b32 v{IDX}, 0xDDDDDDDD",
      f"v_mov_b32 v{ZZ}, 0", f"v_mov_b32 v{ZZ+1}, 0", f"v_mov_b32 v{Q2A[0]+1}, 0", f"v_mov_b32 v{Q2A[1]+1}, 0",
      f"v_mov_b32 v{Q2B_+1}, 0")
    e("s_lshr_b32 s24, s19, 1", "s_and_b32 s25, s19, 1", "s_lshl_b32 s26, s24, 3", "s_lshl_b32 s27, s25, 1",
      "s_add_u32 s26, s26, s27",
      f"v_lshlrev_b32 v{T0+3}, 2, v{hh}", f"v_sub_u32 v{T0+3}, v{ii}, v{T0+3}",
      f"v_mov_b32 v{T0+4}, 0x{NEGF:08x}",
      f"v_cmp_le_i32 vcc, s26, v{T0+3}", f"v_cmp_lt_i32 s[44:45], s26, v{T0+3}",
      "s_lshl_b32 s24, s24, 10", "s_lshl_b32 s25, s25, 3", "s_add_u32 s24, s24, s25", f"s_add_u32 s24, s24, {LMSK}",
      f"v_cndmask_b32 v12, v{T0+4}, v{ZZ}, vcc", f"v_cndmask_b32 v13, v{T0+4}, v{ZZ}, s[44:45]",
      f"v_cndmask_b32 v14, v{ZZ}, v{T0+4}, vcc", f"v_cndmask_b32 v15, v{ZZ}, v{T0+4}, s[44:45]",
      f"v_add_u32 v{T0+3}, s24, v{L16}",
      f"ds_write_b64 v{T0+3}, v[12:13]", f"ds_write_b64 v{T0+3}, v[14:15] offset:4096")
    e(f"v_mov_b32 v{T0+4}, 0x3F803F80", f"v_cmp_eq_u32 vcc, 18, v{ii}",
      f"v_lshlrev_b32 v{G2}, 3, v{ii}", f"v_add_u32 v{AK2L}, {LK2}, v{G2}",
      f"v_cndmask_b32 v{T0+3}, v{ZZ}, v{T0+4}, vcc",
      f"v_mfma_f32_32x32x8bf16_1k {vr(OA,16)}, {vr(ZZ,2)}, {vr(ZZ,2)}, 0")
    for r in range(16):
        e(f"v_mov_b32 v{VB[0][0]+r}, v{T0+3}")
    e(f"v_mul_u32_u24 v{GV}, 288, v{hh}", f"v_lshl_add_u32 v{GV}, v{ii}, 4, v{GV}", f"v_add_u32 v{AVL}, {LV}, v{GV}")
    e("s_add_u32 s24, s22, 48", "s_lshl_b32 s25, s24, 10", f"v_add_u32 v{AK1}, s25, v{L16}",
      "s_lshl_b32 s25, s24, 8", f"v_add_u32 v{AK2}, s25, v{AK2L}",
      "s_mul_i32 s25, s24, 1152", f"v_add_u32 v{AV}, s25, v{AVL}")
    e("s_lshl_b32 s24, s18, 5", f"v_add_u32 v{T0+6}, s24, v{ii}", f"v_mul_u32_u24 v{T0+6}, 1152, v{T0+6}",
      f"v_lshl_add_u32 v{T0+6}, v{hh}, 4, v{T0+6}",
      "s_mul_i32 s24, s16, 36", f"v_add_u32 v{ADA}, s24, v{T0+6}", f"v_add_u32 v{ADB}, 2359296, v{ADA}")
    e("s_cmp_eq_u32 s18, 0", "s_cselect_b32 s24, 8, 7", "s_lshl_b32 s25, s24, 10", f"v_add_u32 v{T0+6}, s25, v{AK1}",
      "s_lshl_b32 s25, s24, 8", f"v_add_u32 v{T0+7}, s25, v{AK2}", f"v_add_u32 v{T0+5}, {LMSK}, v{L16}")
    stamp(e, 1)
    e("s_waitcnt vmcnt(0) lgkmcnt(0)")
    stamp(e, 2)
    e("s_barrier")
    stamp(e, 3)
    e(f"ds_read_b128 {vr(SK1,4)}, v{T0+6}", f"ds_read_b64 {vr(SK2,2)}, v{T0+7}")
    e(*rdK(0, 0), *rdK(1, 1), *rdV(0, 0))
    for q in range(4):
        e(f"ds_read_b128 {vr(MF+4*q,4)}, v{T0+5} offset:{4096+1024*q}")
    rdML = [f"ds_read_b128 {vr(ML+4*q,4)}, v{T0+5} offset:{1024*q}" for q in range(4)]
    e("s_sub_u32 s26, s18, s21", "s_lshl_b32 s24, s26, 10", "s_lshl_b32 s25, s26, 7", f"s_add_u32 s25, s25, {Q2O}")
    e(f"buffer_load_dwordx4 {vr(Q1A[0],4)}, v{L16}, s[4:7], s24 offen",
      f"buffer_load_dwordx4 {vr(Q1A[1],4)}, v{L16}, s[4:7], s24 offen offset:1024",
      f"buffer_load_dword v{Q2A[0]}, v{i4}, s[4:7], s25 offen",
      f"buffer_load_dword v{Q2A[1]}, v{i4}, s[4:7], s25 offen offset:128")
    adma = [dma(4, (20, LK1 + 8192 * k), 20, K1O + 8192 * k) for k in range(6)]
    vdma = [dma(4, (20, LV + 8192 * k), 20, VO + 8192 * k) for k in range(6)]
    order = []
    for k in range(6):
        order += [adma[k], vdma[k]]
    order.insert(2, dma(4, (20, LK2), 20, K2O))
    e(*order[0], *order[1], *order[2])
    order = order[3:]
    e("s_waitcnt lgkmcnt(10)")
    d = vr(SA[0], 16)
    e("s_cmp_eq_u32 s18, 0", f"s_cbranch_scc1 {P}_SMPM",
      f"v_mfma_f32_32x32x16_bf16 {d}, {vr(SK1,4)}, {vr(Q1B_,4)}, 0", *rdML, f"s_branch {P}_SMPJ")
    e.lab(f"{P}_SMPM")
    e(*rdML, "s_waitcnt lgkmcnt(0)")
    e(f"v_mfma_f32_32x32x16_bf16 {d}, {vr(SK1,4)}, {vr(Q1B_,4)}, {vr(ML,16)}")
    e.lab(f"{P}_SMPJ")
    e(f"v_mfma_f32_32x32x8bf16_1k {d}, {vr(SK2,2)}, {vr(Q2B_,2)}, {d}")
    e(*order[0], *order[1])
    order = order[2:]
    e("s_nop 7", "s_nop 3")
    S = SA[0]
    m, t2 = T0 + 3, T0 + 4
    e(f"v_max3_f32 v{m}, v{S}, v{S+1}, v{S+2}")
    for r in range(3, 15, 2):
        e(f"v_max3_f32 v{m}, v{S+r}, v{S+r+1}, v{m}")
    e(f"v_max_f32 v{m}, v{S+15}, v{m}", f"v_mov_b32 v{t2}, v{m}", "s_nop 1",
      f"v_permlane32_swap_b32 v{m}, v{t2}", "s_nop 1", f"v_max_f32 v{m}, v{m}, v{t2}",
      f"v_sub_f32 v{m}, 0x{f2u(-90.0):08x}, v{m}", f"v_lshrrev_b32 v{m}, 16, v{m}",
      f"s_mov_b64 exec, s[{LOW}:{LOW+1}]", f"v_or_b32 v{Q2B_+1}, 0x{NEGF:08x}, v{m}", "s_mov_b64 exec, -1",
      "s_waitcnt lgkmcnt(0)", "s_nop 0")
    e(mf1(SA[0], 0, Q1B_, MF), mf2(SA[0], 0, Q2B_), "s_nop 7", "s_nop 7")
    stamp(e, 4)
    for t in range(9):
        extra = order[:2]
        order = order[2:]
        b_iter(e, t, t > 0, t < 8, t < 7, ML if t == 7 else None, extra)
    assert not order
    e("s_cmp_lt_u32 s19, 6", f"s_cbranch_scc0 {P}_AV")
    e(*dma(4, (20, LV + 8192 * 6), 20, VO + 8192 * 6))
    e.lab(f"{P}_AV")
    e("s_cmp_lt_u32 s19, 4", f"s_cbranch_scc1 {P}_AK2")
    e(*dma(4, (20, LK2 + 4096), 20, K2O + 4096))
    e.lab(f"{P}_AK2")
    stamp(e, 5)
    e("s_nop 1", pv(OA, 0, 1, SA[0]), "s_nop 7", "s_nop 7")
    e("s_mov_b32 s56, s8", "s_mov_b32 s57, s9", f"s_mov_b32 s58, {HB}", "s_mov_b32 s59, 0x00020000",
      "s_mov_b32 s48, 0", "s_sub_u32 s51, s18, 8", "s_max_i32 s49, s51, 0", "s_mov_b32 s50, s18",
      "s_mov_b32 s52, s18")
    check(e, f"{P}_SLOWB", f"{P}_DONEB")
    normalize(e, OBS)
    stamp(e, 6)
    e("s_waitcnt vmcnt(0)")
    stamp(e, 7)
    e(f"buffer_store_dwordx4 {vr(OBS,4)}, v{ADB}, s[12:15], 0 offen",
      f"s_mov_b64 exec, s[{LOW}:{LOW+1}]", f"buffer_store_dword v{OBS+4}, v{ADB}, s[12:15], 0 offen offset:32",
      "s_mov_b64 exec, -1")
    e("s_barrier")
    stamp(e, 8)
    for k in (6, 7):
        e(*dma(4, (20, LK1 + 8192 * k), 20, K1O + 8192 * k))
    for k in range(2):
        e(*dma(4, (20, LV + 55296 + 8192 * k), 20, VO + 55296 + 8192 * k))
    e("s_cmp_lt_u32 s19, 2", f"s_cbranch_scc0 {P}_LV")
    e(*dma(4, (20, LV + 55296 + 16384), 20, VO + 55296 + 16384))
    e.lab(f"{P}_LV")
    e("s_cmp_lt_u32 s19, 4", f"s_cbranch_scc1 {P}_LK2")
    e(*dma(4, (20, LK2 + 8192), 20, K2O + 8192))
    e.lab(f"{P}_LK2")
    e("s_lshl_b32 s24, s21, 10", f"v_add_u32 v{AK1}, s24, v{L16}", "s_lshl_b32 s24, s21, 8",
      f"v_add_u32 v{AK2}, s24, v{AK2L}", "s_mul_i32 s24, s21, 1152", f"v_add_u32 v{AV}, s24, v{AVL}")
    e(*rdK(0, 0), *rdK(1, 2), *rdV(0, 0))
    for R in (SA[1], SB_[1], OA, OB):
        e(f"v_mfma_f32_32x32x8bf16_1k {vr(R,16)}, {vr(ZZ,2)}, {vr(ZZ,2)}, 0")
    e("s_waitcnt lgkmcnt(0)")
    e(mf1(SA[0], 0, Q1A[0], None), mf1(SB_[0], 0, Q1A[1], None), mf2(SA[0], 0, Q2A[0]), mf2(SB_[0], 0, Q2A[1]),
      "s_mov_b32 s47, 0", "s_nop 7", "s_nop 7")
    stamp(e, 9)
    if "prio" in EXP:
        e("s_cmp_lt_u32 s19, 4", f"s_cbranch_scc1 {P}_NOPRIO", "s_setprio 1")
        e.lab(f"{P}_NOPRIO")
    e.lab(f"{P}_ALOOP")
    e("s_cmp_eq_u32 s47, 5", f"s_cbranch_scc0 {P}_NOBAR", "s_waitcnt vmcnt(0)", "s_nop 0" if "nobar" in EXP else "s_barrier")
    e.lab(f"{P}_NOBAR")
    for s in range(4):
        a_step(e, s)
    e(f"v_add_u32 v{AK1}, 8192, v{AK1}", f"v_add_u32 v{AK2}, 2048, v{AK2}", f"v_add_u32 v{AV}, 9216, v{AV}",
      "s_add_u32 s47, s47, 1", "s_cmp_lt_u32 s47, 8", f"s_cbranch_scc1 {P}_ALOOP")
    stamp(e, 10)
    e(pv(OA, 1, 1, SA[1]), pv(OB, 1, 1, SB_[1]), "s_setprio 0")
    e("s_mul_i32 s24, s19, 3072", f"v_add_u32 v{T0+5}, s24, v{L16}", "s_xor_b32 s25, s19, 4",
      "s_mul_i32 s25, s25, 3072", f"v_add_u32 v{T0+6}, s25, v{L16}", "s_waitcnt lgkmcnt(0)", "s_nop 7", "s_nop 3",
      "s_cmp_eq_u32 s21, 0", f"s_cbranch_scc0 {P}_XB")
    for j in range(3):
        e(f"ds_write_b128 v{T0+5}, {vr(OB+4*j,4)} offset:{1024*j}")
    e(f"s_branch {P}_XJ")
    e.lab(f"{P}_XB")
    for j in range(3):
        e(f"ds_write_b128 v{T0+5}, {vr(OA+4*j,4)} offset:{1024*j}")
    e("s_nop 2")
    for r in range(12):
        e(f"v_mov_b32 v{OA+r}, v{OB+r}")
    for r in range(4):
        e(f"v_mov_b32 v{Q1A[0]+r}, v{Q1A[1]+r}")
    e(f"v_mov_b32 v{Q2A[0]}, v{Q2A[1]}")
    e.lab(f"{P}_XJ")
    e("s_waitcnt lgkmcnt(0)", "s_barrier")
    for j in range(3):
        e(f"ds_read_b128 {vr(OB+4*j,4)}, v{T0+6} offset:{1024*j}")
    e("s_mov_b32 s56, s4", "s_mov_b32 s57, s5", f"s_mov_b32 s58, {HB}", "s_mov_b32 s59, 0x00020000",
      "s_mov_b32 s48, 1", "s_mov_b32 s49, 0", "s_mov_b32 s50, 63", "s_mov_b32 s51, -1", "s_mov_b32 s52, -1")
    e("s_waitcnt lgkmcnt(0)")
    for r in range(11):
        e(f"v_add_f32 v{OA+r}, v{OA+r}, v{OB+r}")
    check(e, f"{P}_SLOWA", f"{P}_DONEA")
    normalize(e, OBS)
    e(f"buffer_store_dwordx4 {vr(OBS,4)}, v{ADA}, s[12:15], 0 offen",
      f"s_mov_b64 exec, s[{LOW}:{LOW+1}]", f"buffer_store_dword v{OBS+4}, v{ADA}, s[12:15], 0 offen offset:32")
    if PROF:
        e("s_mov_b64 exec, -1")
        stamp(e, 11)
        e("s_waitcnt vmcnt(0)")
        stamp(e, 12)
        stamp_dump(e, 1, 16, P)
    e.lab(f"{P}_END")
    e("s_endpgm")
    e.lab(f"{P}_SLOWB")
    e(f"v_and_b32 v{Q2B_+1}, 0xffff0000, v{Q2B_+1}", f"s_branch {P}_SLOW")
    e.lab(f"{P}_SLOWA")
    for r in range(4):
        e(f"v_mov_b32 v{Q1B_+r}, v{Q1A[0]+r}")
    e(f"v_mov_b32 v{Q2B_}, v{Q2A[0]}", f"v_mov_b32 v{Q2B_+1}, 0")
    slow_path(e, P)
    return dict(name="attn_kernel", vgpr=212, grid=256, lds=163840)
```

```python
import sys, struct

HB = 229376
Q1O, Q2O, K1O, K2O, VO = 0, 65536, 73728, 139264, 155648
OO = 64 * HB
WS_BYTES = 268435456
CSCALE = 1.4426950408889634 / (18 ** 0.5)


def f2u(x):
    return struct.unpack("<I", struct.pack("<f", x))[0]


class E:
    def __init__(self):
        self.L = []

    def __call__(self, *ss):
        for s in ss:
            self.L.append("    " + s)

    def lab(self, n):
        self.L.append(n + ":")

    def text(self):
        return "\n".join(self.L) + "\n"


def vr(b, n=1):
    return f"v{b}" if n == 1 else f"v[{b}:{b+n-1}]"


def sr(b, n=1):
    return f"s{b}" if n == 1 else f"s[{b}:{b+n-1}]"


import os
PROF = int(os.environ.get("PROF", "0"))
_stamp = [0]


def stamp(e, idx):
    if PROF:
        if idx == 0:
            e("s_memrealtime s[60:61]", "s_waitcnt lgkmcnt(0)", "s_mov_b32 s94, s60")
        e("s_memtime s[60:61]", "s_waitcnt lgkmcnt(0)", f"s_mov_b32 s{64+idx}, s60")


def stamp_dump(e, kidx, n, pfx, wave_s=19):
    if not PROF:
        return
    e("s_memrealtime s[60:61]", "s_waitcnt lgkmcnt(0)", "s_mov_b32 s95, s60")
    e("s_mov_b64 exec, 1", "s_load_dwordx2 s[52:53], s[0:1], 64", "s_waitcnt lgkmcnt(0)",
      f"s_add_u32 s52, s52, {64*1024*1024 + kidx*256*8*128}", "s_addc_u32 s53, s53, 0",
      "s_mov_b32 s54, 0x100000", "s_mov_b32 s55, 0x00020000",
      "s_lshl_b32 s56, s2, 3", f"s_add_u32 s56, s56, s{wave_s}", "s_lshl_b32 s56, s56, 7")
    for i in list(range(n)) + [30, 31]:
        e(f"v_mov_b32 v250, s{64+i}", f"v_mov_b32 v251, {4*i}",
          "buffer_store_dword v250, v251, s[52:55], s56 offen", "s_nop 1")


def srd(e, d, lo, hi, size):
    e(f"s_mov_b32 s{d}, s{lo}", f"s_mov_b32 s{d+1}, s{hi}",
      f"s_mov_b32 s{d+2}, {size}", f"s_mov_b32 s{d+3}, 0x00020000")


class Gemm:
    def __init__(self, pfx, NB, stage, nct, whalf, wj, xset, wset, acc):
        self.pfx, self.NB, self.stage, self.nct = pfx, NB, stage, nct
        self.whalf, self.wj = whalf, wj
        self.xset, self.wset, self.acc = xset, wset, acc

    def reads(self, j, st, vX, vW):
        L = []
        for i in range(4):
            L.append(f"ds_read_b128 {vr(self.xset[st]+4*i,4)}, v{vX[j]} offset:{2048*i}")
        for T in range(self.nct):
            for h in range(2):
                L.append(f"ds_read_b64_tr_b16 {vr(self.wset[st]+4*T+2*h,2)}, v{vW} "
                         f"offset:{32*T + self.whalf*h + self.wj*j}")
        return L

    def mfmas(self, st, first):
        L = []
        for T in range(self.nct):
            for i in range(4):
                a = self.acc + 4 * (4 * T + i)
                c = "0" if first else vr(a, 4)
                L.append(f"v_mfma_f32_16x16x32_bf16 {vr(a,4)}, {vr(self.wset[st]+4*T,4)}, "
                         f"{vr(self.xset[st]+4*i,4)}, {c}")
        return L

    def compute(self, e, vX, vW):
        NB, SB = self.NB, self.stage
        stamp(e, 1)
        e("s_barrier")
        stamp(e, 2)
        e(*self.reads(0, 0, vX, vW))
        e("s_waitcnt lgkmcnt(0)")
        for s in range(9):
            for j in range(2):
                st = j
                M = self.mfmas(st, s == 0 and j == 0)
                if j == 0:
                    R = self.reads(1, 1, vX, vW)
                elif s < 8:
                    d = ((s + 1) % NB - s % NB) * SB
                    lit = f"0x{d & 0xffffffff:08x}"
                    R = [f"v_add_u32 v{vX[0]}, {lit}, v{vX[0]}", f"v_add_u32 v{vX[1]}, {lit}, v{vX[1]}",
                         f"v_add_u32 v{vW}, {lit}, v{vW}"] + self.reads(0, 0, vX, vW)
                else:
                    R = []
                k = 0
                for m in M:
                    e(m)
                    n = 1 if len(M) >= 2 * len(R) - 6 or True else 2
                    per = 1 if len(R) <= len(M) else 2
                    for _ in range(per):
                        if k < len(R):
                            e(R[k]); k += 1
                while k < len(R):
                    e(R[k]); k += 1
                if R:
                    e("s_waitcnt lgkmcnt(0)")
                if j == 0 and s < 8:
                    e("s_barrier")
                    stamp(e, 3 + s)

    def loader(self, e, issue, n):
        NB = self.NB
        for s in range(min(NB, 9)):
            issue(s)
        stamp(e, 1)
        e(f"s_waitcnt vmcnt({(min(NB,9)-1)*n})")
        stamp(e, 2)
        e("s_barrier")
        for s in range(8):
            issued = min(s - 1 + NB, 8)
            e(f"s_waitcnt vmcnt({max(issued-(s+1),0)*n})")
            stamp(e, 3 + s)
            e("s_barrier")
            if s + NB <= 8:
                issue(s + NB)


def gen_k1(e):
    P = "K1"
    SB, NB = 45312, 3
    e.lab("qkv_kernel")
    e("s_cmp_ge_u32 s2, 256", f"s_cbranch_scc1 {P}_END")
    stamp(e, 0)
    e("s_load_dwordx4 s[24:27], s[0:1], 0", "s_load_dwordx4 s[28:31], s[0:1], 24",
      "s_load_dwordx2 s[32:33], s[0:1], 64")
    e("s_and_b32 s16, s2, 1",
      "s_lshr_b32 s3, s2, 1", "s_and_b32 s3, s3, 1", "s_lshl_b32 s3, s3, 3",
      "s_lshr_b32 s20, s2, 3", "s_and_b32 s17, s20, 7", "s_add_u32 s17, s17, s3",
      "s_lshr_b32 s3, s2, 2", "s_and_b32 s3, s3, 1", "s_lshl_b32 s3, s3, 2",
      "s_lshr_b32 s18, s20, 3", "s_add_u32 s18, s18, s3")
    e("v_lshrrev_b32 v1, 6, v0", "v_and_b32 v2, 63, v0", "s_nop 0", "v_readfirstlane_b32 s19, v1")
    e("s_waitcnt lgkmcnt(0)")
    e("s_cmp_eq_u32 s16, 0",
      "s_cselect_b32 s34, s24, s28", "s_cselect_b32 s35, s25, s29",
      "s_cselect_b32 s36, s26, s30", "s_cselect_b32 s37, s27, s31")
    srd(e, 4, 34, 35, 2359296)
    srd(e, 8, 36, 37, 1990656)
    e("s_lshl_b32 s3, s16, 5", "s_lshl_b32 s20, s18, 2", "s_add_u32 s3, s3, s20",
      f"s_mul_i32 s3, s3, {HB}", "s_add_u32 s38, s32, s3", "s_addc_u32 s39, s33, 0")
    srd(e, 12, 38, 39, 4 * HB)
    g = Gemm(P, NB, SB, 7, 1792, 14464, [16, 32], [48, 76], 104)
    e("s_cmp_ge_u32 s19, 4", f"s_cbranch_scc1 {P}_LOAD")
    e("s_and_b32 s20, s19, 1", "s_lshr_b32 s21, s19, 1")
    e("v_and_b32 v3, 15, v2", "v_lshrrev_b32 v4, 4, v2", "v_and_b32 v5, 7, v2", "v_xor_b32 v5, v5, v4",
      "v_lshlrev_b32 v5, 4, v5", "s_lshl_b32 s3, s20, 6", "v_add_u32 v6, s3, v3",
      "v_lshlrev_b32 v8, 7, v6", "v_add_u32 v8, v8, v5", "v_xor_b32 v9, 64, v8")
    e("v_bfe_u32 v5, v2, 2, 2", "v_lshlrev_b32 v7, 3, v4", "v_add_u32 v5, v5, v7",
      "v_mul_u32_u24 v5, 448, v5", "v_lshlrev_b32 v7, 5, v4", "v_add_u32 v5, v5, v7",
      "v_and_b32 v7, 3, v2", "v_lshlrev_b32 v7, 3, v7", "v_add_u32 v5, v5, v7",
      "s_mul_i32 s3, s21, 224", "s_add_u32 s3, s3, 16384", "v_add_u32 v10, s3, v5")
    e("v_mul_u32_u24 v11, 456, v6", "v_lshlrev_b32 v7, 3, v4", "v_add_u32 v11, v11, v7",
      "s_mul_i32 s3, s21, 224", "v_add_u32 v11, s3, v11")
    e(f"s_mov_b32 s22, 0x{f2u(CSCALE):08x}", "s_cmp_eq_u32 s21, 0", "s_cselect_b32 s22, s22, 1.0",
      "v_mov_b32 v12, 1.0", "v_mov_b32 v13, s22", "v_cmp_gt_u32 vcc, 32, v2", "s_nop 1",
      "v_cndmask_b32 v12, v12, v13, vcc")
    g.compute(e, [8, 9], 10)
    e("s_nop 7", "s_nop 1")
    for T in range(7):
        for i in range(4):
            a = g.acc + 4 * (4 * T + i)
            if T < 4:
                e(*[f"v_mul_f32 v{a+r}, s22, v{a+r}" for r in range(4)])
            elif T == 4:
                e(*[f"v_mul_f32 v{a+r}, v12, v{a+r}" for r in range(4)])
            e(f"v_cvt_pk_bf16_f32 v{a}, v{a}, v{a+1}", f"v_cvt_pk_bf16_f32 v{a+1}, v{a+2}, v{a+3}",
              f"ds_write_b64 v11, {vr(a,2)} offset:{7296*i + 32*T}")
    e("s_waitcnt lgkmcnt(0)", f"s_branch {P}_OUT")
    e.lab(f"{P}_LOAD")
    e("s_sub_u32 s20, s19, 4")
    e("v_lshrrev_b32 v3, 3, v2", "v_and_b32 v4, 7, v2", "v_xor_b32 v4, v4, v3", "v_lshlrev_b32 v4, 4, v4",
      "s_lshl_b32 s3, s20, 5", "v_add_u32 v3, s3, v3", "v_mul_u32_u24 v8, 1152, v3", "v_add_u32 v8, v8, v4")
    e("v_cmp_le_u32 vcc, 28, v2", "v_mov_b32 v3, 0", "v_mov_b32 v5, 1", "v_cndmask_b32 v3, v3, v5, vcc",
      "v_mul_u32_u24 v4, 28, v3", "v_sub_u32 v4, v2, v4",
      "v_mul_u32_u24 v5, 57, v4", "v_lshrrev_b32 v5, 9, v5",
      "v_mul_u32_u24 v6, 9, v5", "v_sub_u32 v6, v4, v6", "v_lshlrev_b32 v6, 4, v6",
      "v_mul_u32_u24 v5, 1152, v5", "v_add_u32 v6, v6, v5",
      "s_lshl_b32 s3, s20, 1", "v_add_u32 v3, s3, v3", "v_mul_u32_u24 v9, 3456, v3", "v_add_u32 v9, v9, v6",
      "s_mul_i32 s3, s18, 144", "v_add_u32 v9, s3, v9")
    e("s_mul_i32 s40, s17, 147456", "s_lshl_b32 s41, s20, 12", "s_mul_i32 s42, s20, 896",
      "s_add_u32 s42, s42, 16384", "s_mov_b32 s44, 0xF7FFFFFF", "s_mov_b32 s45, 0x007FFFFF")

    def issue(s):
        base = (s % NB) * SB
        for i in range(4):
            e(f"s_add_u32 m0, s41, {base + 1024*i}", f"s_add_u32 s43, s40, {128*s + 9216*i}",
              "buffer_load_dwordx4 v8, s[4:7], s43 offen lds")
        e("s_mov_b64 exec, s[44:45]")
        for q in range(8):
            e(f"s_add_u32 m0, s42, {base + 3616*q}", f"s_mov_b32 s43, {221184*s + 27648*q}",
              "buffer_load_dwordx4 v9, s[8:11], s43 offen lds")
        e("s_mov_b64 exec, -1")
    g.loader(e, issue, 12)
    e.lab(f"{P}_OUT")
    stamp(e, 11)
    e("s_barrier")
    stamp(e, 12)
    e("s_lshr_b32 s20, s19, 2", "s_and_b32 s21, s19, 3",
      "v_and_b32 v3, 31, v2", "v_lshrrev_b32 v4, 5, v2", "v_mul_u32_u24 v5, 456, v3",
      "v_lshlrev_b32 v4, 4, v4", "v_add_u32 v5, v5, v4",
      "s_mul_i32 s3, s20, 144", "s_mul_i32 s22, s21, 36", "s_add_u32 s22, s22, s3",
      "v_add_u32 v5, s22, v5")
    for tt in range(4):
        e(f"ds_read_b128 {vr(16+4*tt,4)}, v5 offset:{32*456*tt}")
    e("v_mul_u32_u24 v6, 456, v2", "s_add_u32 s3, s22, 32", "v_add_u32 v6, s3, v6",
      "ds_read_b32 v32, v6", f"ds_read_b32 v34, v6 offset:{64*456}")
    e("v_lshrrev_b32 v7, 4, v2", "v_bfe_u32 v8, v2, 2, 2", "v_lshlrev_b32 v9, 3, v7", "v_add_u32 v8, v8, v9",
      "v_mul_u32_u24 v8, 456, v8", "v_and_b32 v9, 3, v2", "v_lshlrev_b32 v9, 3, v9", "v_add_u32 v8, v8, v9",
      "v_add_u32 v8, 288, v8")
    for k in range(3):
        e(f"s_add_u32 s23, s19, {8*k}", "s_min_u32 s23, s23, 19",
          "s_mul_i32 s24, s23, 52", "s_lshr_b32 s24, s24, 8",
          "s_mul_i32 s25, s24, 5", "s_sub_u32 s25, s23, s25",
          f"s_mov_b32 s{46+2*k}, s24", f"s_mov_b32 s{47+2*k}, s25",
          f"s_mul_i32 s26, s24, {32*456}", "s_lshl_b32 s27, s25, 5", "s_add_u32 s26, s26, s27",
          "v_add_u32 v9, s26, v8",
          f"ds_read_b64_tr_b16 {vr(40+4*k,2)}, v9", f"ds_read_b64_tr_b16 {vr(42+4*k,2)}, v9 offset:{4*456}")
    e(f"s_mul_i32 s22, s21, {HB}", f"s_mul_i32 s3, s20, {K1O}", "s_add_u32 s23, s22, s3",
      "s_lshl_b32 s3, s17, 12", "s_add_u32 s23, s23, s3", "v_lshlrev_b32 v10, 4, v2")
    e("s_waitcnt lgkmcnt(8)")
    for tt in range(4):
        e(f"s_add_u32 s3, s23, {1024*tt}", f"buffer_store_dwordx4 {vr(16+4*tt,4)}, v10, s[12:15], s3 offen")
    e("s_waitcnt lgkmcnt(6)")
    e("s_cmp_eq_u32 s20, 0", f"s_cbranch_scc0 {P}_K2")
    e("s_lshl_b32 s3, s17, 9", "s_add_u32 s3, s3, s22", f"s_add_u32 s3, s3, {Q2O}",
      "v_lshlrev_b32 v11, 2, v2",
      "buffer_store_dword v32, v11, s[12:15], s3 offen",
      "buffer_store_dword v34, v11, s[12:15], s3 offen offset:256",
      f"s_branch {P}_V")
    e.lab(f"{P}_K2")
    e("s_lshl_b32 s3, s17, 10", "s_add_u32 s3, s3, s22", f"s_add_u32 s3, s3, {K2O}",
      "v_lshlrev_b32 v11, 3, v2", "v_mov_b32 v33, 0x00003F80", "v_mov_b32 v35, 0x00003F80",
      "buffer_store_dwordx2 v[32:33], v11, s[12:15], s3 offen",
      "buffer_store_dwordx2 v[34:35], v11, s[12:15], s3 offen offset:512")
    e.lab(f"{P}_V")
    e("s_waitcnt lgkmcnt(0)")
    for k in range(3):
        e(f"s_lshl_b32 s3, s{47+2*k}, 4", "v_and_b32 v3, 15, v2", "v_add_u32 v3, s3, v3",
          "v_mul_u32_u24 v4, 57, v3", "v_lshrrev_b32 v4, 10, v4",
          "v_mul_u32_u24 v5, 18, v4", "v_sub_u32 v5, v3, v5", "v_lshlrev_b32 v5, 4, v5",
          f"s_mov_b32 s3, {HB}", "v_mul_lo_u32 v4, v4, s3", "v_add_u32 v5, v5, v4",
          "v_lshrrev_b32 v6, 5, v2", "v_mul_u32_u24 v6, 576, v6", "v_add_u32 v5, v5, v6",
          "v_bfe_u32 v6, v2, 4, 1", "v_mul_u32_u24 v6, 288, v6", "v_add_u32 v5, v5, v6",
          f"s_lshl_b32 s3, s{46+2*k}, 1", "s_lshl_b32 s24, s17, 3", "s_add_u32 s3, s3, s24",
          "s_mul_i32 s3, s3, 576", f"s_add_u32 s3, s3, {VO}",
          "v_cmp_gt_u32 vcc, 72, v3")
        if k == 2:
            e("s_cmp_ge_u32 s19, 4", f"s_cbranch_scc1 {P}_FIN")
        e("s_and_saveexec_b64 s[26:27], vcc",
          f"buffer_store_dwordx4 {vr(40+4*k,4)}, v5, s[12:15], s3 offen",
          "s_mov_b64 exec, -1")
    e.lab(f"{P}_FIN")
    if PROF:
        stamp(e, 13)
        e("s_waitcnt vmcnt(0)")
        stamp(e, 14)
        stamp_dump(e, 0, 15, P)
    e.lab(f"{P}_END")
    e("s_endpgm")
    return dict(name="qkv_kernel", vgpr=216, grid=256, lds=NB * SB)


def kd(info):
    v = 256 if PROF else (info["vgpr"] + 3) // 4 * 4
    return f""".amdhsa_kernel {info['name']}
  .amdhsa_next_free_vgpr {v}
  .amdhsa_next_free_sgpr 96
  .amdhsa_accum_offset {v}
  .amdhsa_group_segment_fixed_size 0
  .amdhsa_kernarg_size 72
  .amdhsa_user_sgpr_count 2
  .amdhsa_user_sgpr_kernarg_segment_ptr 1
  .amdhsa_system_sgpr_workgroup_id_x 1
.end_amdhsa_kernel
"""


HEADER = open("concat_heads__mha_block__sliding_block__prompt.s.ref").read().split("; Override")[0]


def build(gens):
    infos, bodies = [], []
    for gfn in gens:
        e = E()
        infos.append(gfn(e))
        bodies.append(e.text())
    out = HEADER
    for i in infos:
        out += f"; @launch kernel={i['name']} grid=({i['grid']},1,1) block=(512,1,1) lds={i['lds']}\n"
    out += '.amdgcn_target "amdgcn-amd-amdhsa--gfx950"\n.text\n'
    for i, b in zip(infos, bodies):
        out += f".globl {i['name']}\n.p2align 8\n.type {i['name']},@function\n" + b
    out += '.section .rodata,"a"\n'
    for i in infos:
        out += ".p2align 6\n" + kd(i)
    return out, infos


if __name__ == "__main__":
    from gen2 import gen_k3
    from k2 import gen_k2
    if os.environ.get("OLDK1", "0") != "1":
        from k1 import gen_k1
    txt, infos = build([gen_k1, gen_k2, gen_k3])
    path = sys.argv[1] if len(sys.argv) > 1 else "concat_heads__mha_block__sliding_block__prompt.s"
    open(path, "w").write(txt)
    print("wrote", path, len(txt), "bytes")
```

```python
from gen import *

EXP = os.environ.get("EXP", "")
SB, NB = 50176, 3
LW = 16384
XS = [16, 24]
WR = 32
ACC = 64
VX0, VX1, VWA, VWB, VPA, VPB = 4, 5, 6, 7, 10, 11
NT = 14
NDMA = 12


def acc(T, i):
    return ACC + 4 * (2 * T + i)


def wread(j, T):
    d = WR + 4 * (T % 7)
    L = []
    for h in range(2):
        off = h * 512 + j * 16896
        if T < 8:
            a, off = VWA, off + 72 * (T >> 1) + 40 * (T & 1)
        elif T < 12:
            a, off = VWB, off + 72 * ((T - 8) >> 1) + 40 * (T & 1)
        else:
            a = VPA if T == 12 else VPB
        L.append(f"ds_read_b64_tr_b16 {vr(d+2*h,2)}, v{a} offset:{off}")
    return L


def xread(j):
    a = VX0 if j == 0 else VX1
    return [f"ds_read_b128 {vr(XS[j]+4*i,4)}, v{a} offset:{2048*i}" for i in range(2)]


def mfma(j, T, i, swapped):
    w, x, d = vr(WR + 4 * (T % 7), 4), vr(XS[j] + 4 * i, 4), vr(acc(T, i), 4)
    a, b = (x, w) if swapped else (w, x)
    return f"v_mfma_f32_16x16x32_bf16 {d}, {a}, {b}, {d}"


def stage_body(swA, swB):
    sw = lambda T: swA if (T < 8 or T == 12) else swB
    plan = {P: [] for P in range(28)}
    for P in range(5, 28):
        plan[P - 5] += [("W", 0, P)]
    plan[2] += [("X", 0, 1)]
    nxt = {24: [("W", 1, 0), ("W", 1, 1)], 25: [("W", 1, 2), ("W", 1, 3), ("X", 1, 0)], 26: [("W", 1, 4)]}
    for P, v in nxt.items():
        plan[P] += v
    seq = []
    waits = {}
    issued = []
    for it in range(2):
        for P in range(28):
            j, T = divmod(P, 14)
            need = [("W", it, P), ("X", it, j)]
            pos = -1
            for k, (key, n) in enumerate(issued):
                if key in need:
                    pos = k
            if pos >= 0:
                after = sum(n for key, n in issued[pos + 1:])
                waits[(it, P)] = after
            if P == 24:
                issued = []
            for kind, so, idx in plan[P]:
                issued.append(((kind, it + so, idx), 2))
    L = []
    last = None
    for P in range(28):
        j, T = divmod(P, 14)
        w = waits.get((1, P))
        if w is not None:
            L.append(f"s_waitcnt lgkmcnt({min(w, 15)})")
        L += [mfma(j, T, 0, sw(T)), mfma(j, T, 1, sw(T))]
        if P == 24:
            L += ["s_waitcnt lgkmcnt(0)", "s_barrier",
                  f"v_add_u32 v{VX0}, s50, v{VX0}", f"v_add_u32 v{VPA}, s50, v{VPA}", f"v_add_u32 v{VPB}, s50, v{VPB}"]
            L += [f"v_add_u32 v{VWA}, s50, v{VWA}", f"v_add_u32 v{VWB}, s50, v{VWB}"]
        if P == 26:
            L += [f"v_add_u32 v{VX1}, s50, v{VX1}"]
        for kind, so, idx in plan[P]:
            if kind == "W":
                if "nords" not in EXP or (idx % 14) < 2:
                    L += wread(idx // 14, idx % 14)
            else:
                L += xread(idx)
    return L


def epi_qk(e, T0, n, Tp, is_q, s_head, np_):
    off1, off2 = (Q1O, Q2O) if is_q else (K1O, K2O)
    for k in range(n):
        T = T0 + k
        a, b = acc(T, 0), acc(T, 1)
        if is_q:
            e(*[f"v_mul_f32 v{a+r}, s22, v{a+r}" for r in range(8)])
        e(f"v_cvt_pk_bf16_f32 v{a}, v{a}, v{a+1}", f"v_cvt_pk_bf16_f32 v{a+1}, v{a+2}, v{a+3}",
          f"v_cvt_pk_bf16_f32 v{a+2}, v{b}, v{b+1}", f"v_cvt_pk_bf16_f32 v{a+3}, v{b+2}, v{b+3}",
          f"s_add_u32 s3, s{s_head}, {k*HB + off1}", "s_add_u32 s3, s3, s23",
          f"v_permlane16_swap_b32 v{a}, v{a+2}", f"v_permlane16_swap_b32 v{a+1}, v{a+3}",
          f"buffer_store_dwordx4 {vr(a,4)}, v12, s[12:15], s3 offen")
    sh = 2 if is_q else 3
    e(f"s_lshl_b32 s3, s24, {sh}", f"s_add_u32 s3, s3, s{s_head}", f"s_add_u32 s3, s3, {off2}",
      f"v_lshlrev_b32 v14, {sh}, v3", "v_add_u32 v14, v14, v13")
    if np_ == 4:
        e("s_mov_b32 exec_hi, 0")
    for i in range(2):
        a = acc(Tp, i)
        if is_q:
            e(*[f"v_mul_f32 v{a+r}, s22, v{a+r}" for r in range(4)])
            e(f"v_cvt_pk_bf16_f32 v{a}, v{a}, v{a+1}", f"v_cvt_pk_bf16_f32 v{a+1}, v{a+2}, v{a+3}",
              f"buffer_store_dword v{a}, v14, s[12:15], s3 offen offset:{64*i}",
              f"v_add_u32 v15, {HB}, v14",
              f"buffer_store_dword v{a+1}, v15, s[12:15], s3 offen offset:{64*i}")
        else:
            e(f"v_cvt_pk_bf16_f32 v{a}, v{a}, v{a+1}", f"v_cvt_pk_bf16_f32 v{a+2}, v{a+2}, v{a+3}",
              f"v_mov_b32 v{a+1}, 0x00003F80", f"v_mov_b32 v{a+3}, 0x00003F80",
              f"v_add_u32 v15, {HB}, v14",
              f"buffer_store_dwordx2 {vr(a,2)}, v14, s[12:15], s3 offen offset:{128*i}",
              f"buffer_store_dwordx2 {vr(a+2,2)}, v15, s[12:15], s3 offen offset:{128*i}")
    if np_ == 4:
        e("s_mov_b64 exec, -1")


def epi_v(e, T0, n, Tp, s_head, np_):
    for k in list(range(n)) + ["p"]:
        T = Tp if k == "p" else T0 + k
        a, b = acc(T, 0), acc(T, 1)
        e(f"v_cvt_pk_bf16_f32 v{a}, v{a}, v{a+1}", f"v_cvt_pk_bf16_f32 v{a+1}, v{a+2}, v{a+3}",
          f"v_cvt_pk_bf16_f32 v{a+2}, v{b}, v{b+1}", f"v_cvt_pk_bf16_f32 v{a+3}, v{b+2}, v{b+3}")
        if k == "p":
            e(f"s_add_u32 s3, s{s_head}, s25", "s_nop 0")
        else:
            e(f"s_add_u32 s3, s{s_head}, {k*HB + 32*(k & 1)}", "s_add_u32 s3, s3, s25")
        e(f"v_permlane16_swap_b32 v{a}, v{a+2}", f"v_permlane16_swap_b32 v{a+1}, v{a+3}")
        if k == "p":
            va = 9 if np_ == 8 else 10
            e(f"buffer_store_dwordx4 {vr(a,4)}, v{va}, s[12:15], s3 offen")
        else:
            e(f"buffer_store_dwordx4 {vr(a,4)}, v8, s[12:15], s3 offen")


def gen_k1(e):
    P = "K1"
    e.lab("qkv_kernel")
    e("s_cmp_ge_u32 s2, 256", f"s_cbranch_scc1 {P}_END")
    stamp(e, 0)
    e("s_load_dwordx4 s[24:27], s[0:1], 0", "s_load_dwordx4 s[28:31], s[0:1], 24",
      "s_load_dwordx2 s[32:33], s[0:1], 64")
    e("v_lshrrev_b32 v1, 6, v0", "v_and_b32 v2, 63, v0", "s_and_b32 s16, s2, 1", "v_readfirstlane_b32 s19, v1",
      "s_lshr_b32 s3, s2, 1", "s_and_b32 s3, s3, 1", "s_lshl_b32 s3, s3, 3",
      "s_lshr_b32 s20, s2, 3", "s_and_b32 s17, s20, 7", "s_add_u32 s17, s17, s3",
      "s_lshr_b32 s3, s2, 2", "s_and_b32 s3, s3, 1", "s_lshl_b32 s3, s3, 2",
      "s_lshr_b32 s18, s20, 3", "s_add_u32 s18, s18, s3",
      "s_mul_i32 s44, s18, 432", "s_andn2_b32 s45, s44, 63", "s_min_u32 s45, s45, 2944",
      "s_add_u32 s47, s44, 288", "s_add_u32 s46, s44, 144", "s_cmp_eq_u32 s18, 5",
      "s_cselect_b32 s46, s46, s44", "s_cselect_b32 s47, s44, s47")
    e("s_waitcnt lgkmcnt(0)")
    e("s_cmp_eq_u32 s16, 0",
      "s_cselect_b32 s4, s24, s28", "s_cselect_b32 s5, s25, s29", "s_mov_b32 s6, 2359296", "s_mov_b32 s7, 0x00020000",
      "s_cselect_b32 s8, s26, s30", "s_cselect_b32 s9, s27, s31", "s_mov_b32 s10, 1990656", "s_mov_b32 s11, 0x00020000")
    e("s_cmp_ge_u32 s19, 4", f"s_cbranch_scc1 {P}_LOAD")
    e(f"s_mul_i32 s3, s16, {32*HB}", "s_add_u32 s38, s32, s3", "s_addc_u32 s39, s33, 0")
    srd(e, 12, 38, 39, 32 * HB)
    e("v_and_b32 v3, 15, v2", "v_lshrrev_b32 v13, 4, v2", "v_bfe_u32 v14, v2, 2, 2", "v_and_b32 v15, 3, v2")
    e("v_and_b32 v4, 7, v2", "v_xor_b32 v4, v4, v13", "v_lshlrev_b32 v4, 4, v4", "s_lshl_b32 s3, s19, 5",
      "v_add_u32 v5, s3, v3", f"v_lshl_add_u32 v{VX0}, v5, 7, v4", f"v_xor_b32 v{VX1}, 64, v{VX0}")
    e("v_lshl_add_u32 v1, v13, 2, v14", "v_mul_u32_u24 v1, 1056, v1", f"v_add_u32 v1, {LW}, v1",
      "s_sub_u32 s20, s46, s45", "s_sub_u32 s21, s47, s45",
      "v_lshl_add_u32 v10, v15, 3, v1", f"v_add_u32 v{VWA}, s20, v10", f"v_add_u32 v{VWB}, s21, v10",
      "v_mul_u32_u24 v10, 72, v15", "v_add_u32 v10, v10, v1", "s_add_u32 s20, s20, 32", f"v_add_u32 v{VPA}, s20, v10",
      "v_and_b32 v11, 1, v15", "v_mul_u32_u24 v11, 72, v11", "v_add_u32 v11, v11, v1", "s_add_u32 s21, s21, 32",
      f"v_add_u32 v{VPB}, s21, v11")
    e("v_mov_b32 v12, 0", "v_mov_b32 v1, 0", *[f"v_mov_b32 v{XS[0]+r}, 0" for r in range(4)], "s_nop 1")
    for T in range(NT):
        for i in range(2):
            e(f"v_mfma_f32_16x16x32_bf16 {vr(acc(T,i),4)}, {vr(XS[0],4)}, {vr(XS[0],4)}, 0")
    e("s_mov_b32 s48, 0", f"s_mov_b32 s50, {SB}", "s_mov_b32 s55, 0x124", f"s_mov_b32 s56, {(-2*SB) & 0xffffffff}",
      f"s_mov_b32 s57, {SB}")
    stamp(e, 1)
    e("s_barrier")
    stamp(e, 2)
    e(*xread(0))
    for T in range(5):
        e(*wread(0, T))
    e("s_waitcnt lgkmcnt(0)")
    e("s_cmp_ge_u32 s18, 6", f"s_cbranch_scc1 {P}_LSS", "s_cmp_eq_u32 s18, 5", f"s_cbranch_scc1 {P}_LSN")
    for nm, swA, swB in (("NN", False, False), ("SN", True, False), ("SS", True, True)):
        e.lab(f"{P}_L{nm}")
        e(*stage_body(swA, swB))
        e("s_add_u32 s48, s48, 1", "s_bitcmp1_b32 s55, s48", "s_cselect_b32 s50, s56, s57")
        e("s_cmp_lt_u32 s48, 9", f"s_cbranch_scc1 {P}_L{nm}")
        if nm != "SS":
            e(f"s_branch {P}_EPI")
    e.lab(f"{P}_EPI")
    stamp(e, 11)
    e("s_waitcnt lgkmcnt(0)")
    for s_col, s_h in ((46, 26), (47, 27)):
        e(f"s_cmp_ge_u32 s{s_col}, 2304", f"s_cselect_b32 s3, 2304, 0", f"s_sub_u32 s{s_h}, s{s_col}, s3",
          f"s_cmp_ge_u32 s{s_h}, 1152", "s_cselect_b32 s3, 1152, 0", f"s_sub_u32 s{s_h}, s{s_h}, s3",
          f"s_mul_i32 s{s_h}, s{s_h}, 1821", f"s_lshr_b32 s{s_h}, s{s_h}, 16", f"s_mul_i32 s{s_h}, s{s_h}, {HB}")
    e("s_lshl_b32 s23, s17, 2", "s_add_u32 s23, s23, s19", "s_lshl_b32 s24, s23, 5", "s_mul_i32 s25, s23, 1152",
      f"s_add_u32 s25, s25, {VO}", "s_lshl_b32 s23, s23, 10", f"s_mov_b32 s22, 0x{f2u(CSCALE):08x}")
    e("v_lshlrev_b32 v12, 4, v2", "v_lshrrev_b32 v14, 4, v2", "v_and_b32 v15, 1, v14", "v_mul_u32_u24 v8, 576, v15",
      "v_lshrrev_b32 v15, 1, v14", "v_mul_u32_u24 v15, 288, v15", "v_add_u32 v8, v8, v15",
      "v_lshrrev_b32 v15, 1, v3", f"s_mov_b32 s3, {HB}", "v_mul_lo_u32 v15, v15, s3", "v_add_u32 v9, v8, v15",
      "v_and_b32 v15, 1, v3", "v_lshl_add_u32 v9, v15, 4, v9",
      "v_bfe_u32 v15, v3, 1, 1", "v_xor_b32 v15, 1, v15", "v_lshl_add_u32 v9, v15, 8, v9",
      "v_mov_b32 v15, 0x40000000", "v_cmp_gt_u32 vcc, 8, v3", "v_lshl_add_u32 v8, v3, 4, v8",
      f"s_mov_b32 s3, {2*HB}", "v_cndmask_b32 v10, v15, v9, vcc", "v_mul_lo_u32 v13, v14, s3")
    e("s_cmp_ge_u32 s18, 5", f"s_cbranch_scc1 {P}_AV", "s_cmp_ge_u32 s18, 3", f"s_cbranch_scc1 {P}_AK")
    epi_qk(e, 0, 8, 12, True, 26, 8)
    e(f"s_branch {P}_B")
    e.lab(f"{P}_AK")
    epi_qk(e, 0, 8, 12, False, 26, 8)
    e(f"s_branch {P}_B")
    e.lab(f"{P}_AV")
    epi_v(e, 0, 8, 12, 26, 8)
    e.lab(f"{P}_B")
    e("s_cmp_ge_u32 s18, 6", f"s_cbranch_scc1 {P}_BV", "s_cmp_ge_u32 s18, 2", f"s_cbranch_scc1 {P}_BK")
    epi_qk(e, 8, 4, 13, True, 27, 4)
    e(f"s_branch {P}_FIN")
    e.lab(f"{P}_BK")
    epi_qk(e, 8, 4, 13, False, 27, 4)
    e(f"s_branch {P}_FIN")
    e.lab(f"{P}_BV")
    epi_v(e, 8, 4, 13, 27, 4)
    e(f"s_branch {P}_FIN")
    e.lab(f"{P}_LOAD")
    e("s_sub_u32 s20, s19, 4")
    e("v_lshrrev_b32 v3, 3, v2", "v_and_b32 v4, 7, v2", "v_xor_b32 v4, v4, v3", "v_lshlrev_b32 v4, 4, v4",
      "s_lshl_b32 s3, s20, 5", "v_add_u32 v5, s3, v3", "v_mul_u32_u24 v8, 1152, v5", "v_add_u32 v8, v8, v4")
    e("s_mul_i32 s40, s17, 147456", "s_lshl_b32 s41, s20, 12")
    e("s_add_u32 m0, s41, 0", "s_add_u32 s43, s40, 0", "buffer_load_dwordx4 v8, s[4:7], s43 offen lds")
    e("v_lshrrev_b32 v3, 5, v2", "v_mul_u32_u24 v3, 13824, v3", "v_and_b32 v4, 31, v2", "v_lshl_add_u32 v3, v4, 4, v3",
      "v_add_u32 v9, s45, v3")
    e("s_mul_i32 s42, s20, 8448", f"s_add_u32 s42, s42, {LW}", "s_mul_i32 s44, s20, 55296")

    def issue(s, skip_first=False):
        base = (s % NB) * SB
        for i in range(4):
            if skip_first and i == 0:
                continue
            e(f"s_add_u32 m0, s41, {base + 1024*i}", f"s_add_u32 s43, s40, {128*s + 9216*i}",
              "buffer_load_dwordx4 v8, s[4:7], s43 offen lds")
        for u in range(8):
            if "halfw" in EXP and s >= 2 and u >= 4:
                e("buffer_load_dword v20, v9, s[8:11], s43 offen")
                continue
            e(f"s_add_u32 m0, s42, {base + 1056*u}",
              f"s_add_u32 s43, s44, {221184*s + 27648*(u >> 2) + 3456*(u & 3)}",
              "buffer_load_dwordx4 v9, s[8:11], s43 offen lds")

    issue(0, True)
    issue(1)
    stamp(e, 1)
    e(f"s_waitcnt vmcnt({NDMA})")
    stamp(e, 2)
    e("s_barrier")
    issue(2)
    for s in range(9):
        left = max(min(s + 2, 8) - (s + 1), 0)
        e(f"s_waitcnt vmcnt({left*NDMA})")
        stamp(e, 3 + s if s < 8 else 11)
        e("s_barrier")
        if s + 3 <= 8:
            issue(s + 3)
    e.lab(f"{P}_FIN")
    if PROF:
        stamp(e, 13)
        e("s_waitcnt vmcnt(0)")
        stamp(e, 14)
        stamp_dump(e, 0, 15, P)
    e.lab(f"{P}_END")
    e("s_endpgm")
    return dict(name="qkv_kernel", vgpr=176, grid=256, lds=NB * SB)
```

```python
from gen import *

EXP = os.environ.get("EXP", "")
SB, NB = 50176, 3
LW = 16384
XS = [16, 24]
WR = 32
ACC = 64
VX0, VX1, VWA, VWB, VPA, VPB = 4, 5, 6, 7, 10, 11
NT = 14
NDMA = 12
RK = int(os.environ.get("RK", "1"))


def acc(T, i):
    return ACC + 4 * (2 * T + i)


def wread(j, T):
    d = WR + 4 * (T % 7)
    L = []
    for h in range(2):
        off = h * 512 + j * 16896
        if T < 8:
            a, off = VWA, off + 72 * (T >> 1) + 40 * (T & 1)
        elif T < 12:
            a, off = VWB, off + 72 * ((T - 8) >> 1) + 40 * (T & 1)
        else:
            a = VPA if T == 12 else VPB
        L.append(f"ds_read_b64_tr_b16 {vr(d+2*h,2)}, v{a} offset:{off}")
    return L


def xread(j):
    a = VX0 if j == 0 else VX1
    return [f"ds_read_b128 {vr(XS[j]+4*i,4)}, v{a} offset:{2048*i}" for i in range(2)]


def mfma(j, T, i, swapped):
    w, x, d = vr(WR + 4 * (T % 7), 4), vr(XS[j] + 4 * i, 4), vr(acc(T, i), 4)
    a, b = (x, w) if swapped else (w, x)
    return f"v_mfma_f32_16x16x32_bf16 {d}, {a}, {b}, {d}"


def stage_body(swA, swB):
    sw = lambda T: swA if (T < 8 or T == 12) else swB
    plan = {P: [] for P in range(28)}
    for P in range(5, 28):
        plan[P - 5] += [("W", 0, P)]
    plan[2] += [("X", 0, 1)]
    nxt = {24: [("W", 1, 0), ("W", 1, 1)], 25: [("W", 1, 2), ("W", 1, 3), ("X", 1, 0)], 26: [("W", 1, 4)]}
    for P, v in nxt.items():
        plan[P] += v
    seq = []
    waits = {}
    issued = []
    for it in range(2):
        for P in range(28):
            j, T = divmod(P, 14)
            need = [("W", it, P), ("X", it, j)]
            pos = -1
            for k, (key, n) in enumerate(issued):
                if key in need:
                    pos = k
            if pos >= 0:
                after = sum(n for key, n in issued[pos + 1:])
                waits[(it, P)] = after
            if P == 24:
                issued = []
            for kind, so, idx in plan[P]:
                issued.append(((kind, it + so, idx), 2))
    L = []
    last = None
    for P in range(28):
        j, T = divmod(P, 14)
        w = waits.get((1, P))
        if w is not None:
            L.append(f"s_waitcnt lgkmcnt({min(w, 15)})")
        L += [mfma(j, T, 0, sw(T)), mfma(j, T, 1, sw(T))]
        if P == 24:
            L += ["s_waitcnt lgkmcnt(0)", "s_barrier",
                  f"v_add_u32 v{VX0}, s50, v{VX0}", f"v_add_u32 v{VPA}, s50, v{VPA}", f"v_add_u32 v{VPB}, s50, v{VPB}"]
            L += [f"v_add_u32 v{VWA}, s50, v{VWA}", f"v_add_u32 v{VWB}, s50, v{VWB}"]
        if P == 26:
            L += [f"v_add_u32 v{VX1}, s50, v{VX1}"]
        for kind, so, idx in plan[P]:
            if kind == "W":
                if "nords" not in EXP or (idx % 14) < 2:
                    L += wread(idx // 14, idx % 14)
            else:
                L += xread(idx)
    return L


def epi_qk(e, T0, n, Tp, is_q, s_head, np_):
    off1, off2 = (Q1O, Q2O) if is_q else (K1O, K2O)
    for k in range(n):
        T = T0 + k
        a, b = acc(T, 0), acc(T, 1)
        if is_q:
            e(*[f"v_mul_f32 v{a+r}, s22, v{a+r}" for r in range(8)])
        e(f"v_cvt_pk_bf16_f32 v{a}, v{a}, v{a+1}", f"v_cvt_pk_bf16_f32 v{a+1}, v{a+2}, v{a+3}",
          f"v_cvt_pk_bf16_f32 v{a+2}, v{b}, v{b+1}", f"v_cvt_pk_bf16_f32 v{a+3}, v{b+2}, v{b+3}",
          f"s_add_u32 s3, s{s_head}, {k*HB + off1}", "s_add_u32 s3, s3, s23",
          f"v_permlane16_swap_b32 v{a}, v{a+2}", f"v_permlane16_swap_b32 v{a+1}, v{a+3}",
          f"buffer_store_dwordx4 {vr(a,4)}, v12, s[12:15], s3 offen")
    sh = 2 if is_q else 3
    e(f"s_lshl_b32 s3, s24, {sh}", f"s_add_u32 s3, s3, s{s_head}", f"s_add_u32 s3, s3, {off2}",
      f"v_lshlrev_b32 v14, {sh}, v3", "v_add_u32 v14, v14, v13")
    if np_ == 4:
        e("s_mov_b32 exec_hi, 0")
    for i in range(2):
        a = acc(Tp, i)
        if is_q:
            e(*[f"v_mul_f32 v{a+r}, s22, v{a+r}" for r in range(4)])
            e(f"v_cvt_pk_bf16_f32 v{a}, v{a}, v{a+1}", f"v_cvt_pk_bf16_f32 v{a+1}, v{a+2}, v{a+3}",
              f"buffer_store_dword v{a}, v14, s[12:15], s3 offen offset:{64*i}",
              f"v_add_u32 v15, {HB}, v14",
              f"buffer_store_dword v{a+1}, v15, s[12:15], s3 offen offset:{64*i}")
        else:
            e(f"v_cvt_pk_bf16_f32 v{a}, v{a}, v{a+1}", f"v_cvt_pk_bf16_f32 v{a+2}, v{a+2}, v{a+3}",
              f"v_mov_b32 v{a+1}, 0x00003F80", f"v_mov_b32 v{a+3}, 0x00003F80",
              f"v_add_u32 v15, {HB}, v14",
              f"buffer_store_dwordx2 {vr(a,2)}, v14, s[12:15], s3 offen offset:{128*i}",
              f"buffer_store_dwordx2 {vr(a+2,2)}, v15, s[12:15], s3 offen offset:{128*i}")
    if np_ == 4:
        e("s_mov_b64 exec, -1")


def epi_v(e, T0, n, Tp, s_head, np_):
    for k in list(range(n)) + ["p"]:
        T = Tp if k == "p" else T0 + k
        a, b = acc(T, 0), acc(T, 1)
        e(f"v_cvt_pk_bf16_f32 v{a}, v{a}, v{a+1}", f"v_cvt_pk_bf16_f32 v{a+1}, v{a+2}, v{a+3}",
          f"v_cvt_pk_bf16_f32 v{a+2}, v{b}, v{b+1}", f"v_cvt_pk_bf16_f32 v{a+3}, v{b+2}, v{b+3}")
        if k == "p":
            e(f"s_add_u32 s3, s{s_head}, s25", "s_nop 0")
        else:
            e(f"s_add_u32 s3, s{s_head}, {k*HB + 32*(k & 1)}", "s_add_u32 s3, s3, s25")
        e(f"v_permlane16_swap_b32 v{a}, v{a+2}", f"v_permlane16_swap_b32 v{a+1}, v{a+3}")
        if k == "p":
            va = 9 if np_ == 8 else 10
            e(f"buffer_store_dwordx4 {vr(a,4)}, v{va}, s[12:15], s3 offen")
        else:
            e(f"buffer_store_dwordx4 {vr(a,4)}, v8, s[12:15], s3 offen")


def gen_k1(e):
    P = "K1"
    e.lab("qkv_kernel")
    e("s_cmp_ge_u32 s2, 256", f"s_cbranch_scc1 {P}_END")
    stamp(e, 0)
    e("s_load_dwordx4 s[24:27], s[0:1], 0", "s_load_dwordx4 s[28:31], s[0:1], 24",
      "s_load_dwordx2 s[32:33], s[0:1], 64")
    e("v_lshrrev_b32 v1, 6, v0", "v_and_b32 v2, 63, v0", "s_and_b32 s16, s2, 1", "v_readfirstlane_b32 s19, v1",
      "s_lshr_b32 s3, s2, 1", "s_and_b32 s3, s3, 1", "s_lshl_b32 s3, s3, 3",
      "s_lshr_b32 s20, s2, 3", "s_and_b32 s17, s20, 7", "s_add_u32 s17, s17, s3",
      "s_lshr_b32 s3, s2, 2", "s_and_b32 s3, s3, 1", "s_lshl_b32 s3, s3, 2",
      "s_lshr_b32 s18, s20, 3", "s_add_u32 s18, s18, s3",
      "s_mul_i32 s44, s18, 432", "s_andn2_b32 s45, s44, 127", "s_sub_u32 s3, s44, s45", "s_cmp_gt_u32 s3, 80",
      "s_cselect_b32 s3, 64, 0", "s_add_u32 s45, s45, s3",
      "s_add_u32 s47, s44, 288", "s_add_u32 s46, s44, 144", "s_cmp_eq_u32 s18, 5",
      "s_cselect_b32 s46, s46, s44", "s_cselect_b32 s47, s44, s47")
    e("s_waitcnt lgkmcnt(0)")
    e("s_cmp_eq_u32 s16, 0",
      "s_cselect_b32 s4, s24, s28", "s_cselect_b32 s5, s25, s29", "s_mov_b32 s6, 2359296", "s_mov_b32 s7, 0x00020000",
      "s_cselect_b32 s8, s26, s30", "s_cselect_b32 s9, s27, s31", "s_mov_b32 s10, 1990656", "s_mov_b32 s11, 0x00020000")
    e("s_cmp_ge_u32 s19, 4", f"s_cbranch_scc1 {P}_LOAD")
    e(f"s_mul_i32 s3, s16, {32*HB}", "s_add_u32 s38, s32, s3", "s_addc_u32 s39, s33, 0")
    srd(e, 12, 38, 39, 32 * HB)
    e("v_and_b32 v3, 15, v2", "v_lshrrev_b32 v13, 4, v2", "v_bfe_u32 v14, v2, 2, 2", "v_and_b32 v15, 3, v2")
    e("v_and_b32 v4, 7, v2", "v_xor_b32 v4, v4, v13", "v_lshlrev_b32 v4, 4, v4", "s_lshl_b32 s3, s19, 5",
      "v_add_u32 v5, s3, v3", f"v_lshl_add_u32 v{VX0}, v5, 7, v4", f"v_xor_b32 v{VX1}, 64, v{VX0}")
    e("v_lshl_add_u32 v1, v13, 2, v14", "v_mul_u32_u24 v1, 1056, v1", f"v_add_u32 v1, {LW}, v1",
      "s_sub_u32 s20, s46, s45", "s_sub_u32 s21, s47, s45",
      "v_lshl_add_u32 v10, v15, 3, v1", f"v_add_u32 v{VWA}, s20, v10", f"v_add_u32 v{VWB}, s21, v10",
      "v_mul_u32_u24 v10, 72, v15", "v_add_u32 v10, v10, v1", "s_add_u32 s20, s20, 32", f"v_add_u32 v{VPA}, s20, v10",
      "v_and_b32 v11, 1, v15", "v_mul_u32_u24 v11, 72, v11", "v_add_u32 v11, v11, v1", "s_add_u32 s21, s21, 32",
      f"v_add_u32 v{VPB}, s21, v11")
    e("v_mov_b32 v12, 0", "v_mov_b32 v1, 0", *[f"v_mov_b32 v{XS[0]+r}, 0" for r in range(4)], "s_nop 1")
    for T in range(NT):
        for i in range(2):
            e(f"v_mfma_f32_16x16x32_bf16 {vr(acc(T,i),4)}, {vr(XS[0],4)}, {vr(XS[0],4)}, 0")
    if "pf" in EXP:
        e("s_lshl_b32 s3, s19, 1", "s_add_u32 s3, s3, 2", "v_lshrrev_b32 v14, 5, v2", "v_add_u32 v14, s3, v14",
          "v_min_u32 v14, 8, v14",
          "s_lshr_b32 s3, s2, 6", "s_lshl_b32 s3, s3, 5", "s_lshl_b32 s20, s17, 7", "s_add_u32 s3, s3, s20",
          "v_and_b32 v15, 31, v2", "v_add_u32 v15, s3, v15", "v_mul_u32_u24 v15, 1152, v15",
          "v_lshl_add_u32 v15, v14, 7, v15", "buffer_load_dword v176, v15, s[4:7], 0 offen",
          "s_lshr_b32 s3, s2, 3", "s_and_b32 s3, s3, 7", "s_lshl_b32 s3, s3, 3",
          "v_bfe_u32 v15, v2, 2, 3", "v_lshl_add_u32 v15, v14, 6, v15", "v_add_u32 v15, s3, v15",
          "v_mul_u32_u24 v15, 3456, v15", "s_andn2_b32 s3, s45, 127", "v_add_u32 v15, s3, v15",
          "v_and_b32 v14, 3, v2", "v_lshl_add_u32 v14, v14, 7, v15",
          "buffer_load_dword v177, v14, s[8:11], 0 offen",
          "s_bitcmp1_b32 s45, 6", f"s_cbranch_scc0 {P}_NOPF5",
          "buffer_load_dword v178, v15, s[8:11], 0 offen offset:512")
        e.lab(f"{P}_NOPF5")
    e("s_mov_b32 s48, 0", f"s_mov_b32 s50, {SB}", "s_mov_b32 s55, 0x124", f"s_mov_b32 s56, {(-2*SB) & 0xffffffff}",
      f"s_mov_b32 s57, {SB}")
    stamp(e, 1)
    e("s_barrier")
    stamp(e, 2)
    e(*xread(0))
    for T in range(5):
        e(*wread(0, T))
    e("s_waitcnt lgkmcnt(0)")
    e("s_cmp_ge_u32 s18, 6", f"s_cbranch_scc1 {P}_LSS", "s_cmp_eq_u32 s18, 5", f"s_cbranch_scc1 {P}_LSN")
    for nm, swA, swB in (("NN", False, False), ("SN", True, False), ("SS", True, True)):
        e.lab(f"{P}_L{nm}")
        e(*stage_body(swA, swB))
        e("s_add_u32 s48, s48, 1", "s_bitcmp1_b32 s55, s48", "s_cselect_b32 s50, s56, s57")
        e("s_cmp_lt_u32 s48, 9", f"s_cbranch_scc1 {P}_L{nm}")
        if nm != "SS":
            e(f"s_branch {P}_EPI")
    e.lab(f"{P}_EPI")
    stamp(e, 11)
    e("s_waitcnt lgkmcnt(0)")
    for s_col, s_h in ((46, 26), (47, 27)):
        e(f"s_cmp_ge_u32 s{s_col}, 2304", f"s_cselect_b32 s3, 2304, 0", f"s_sub_u32 s{s_h}, s{s_col}, s3",
          f"s_cmp_ge_u32 s{s_h}, 1152", "s_cselect_b32 s3, 1152, 0", f"s_sub_u32 s{s_h}, s{s_h}, s3",
          f"s_mul_i32 s{s_h}, s{s_h}, 1821", f"s_lshr_b32 s{s_h}, s{s_h}, 16", f"s_mul_i32 s{s_h}, s{s_h}, {HB}")
    e("s_lshl_b32 s23, s17, 2", "s_add_u32 s23, s23, s19", "s_lshl_b32 s24, s23, 5", "s_mul_i32 s25, s23, 1152",
      f"s_add_u32 s25, s25, {VO}", "s_lshl_b32 s23, s23, 10", f"s_mov_b32 s22, 0x{f2u(CSCALE):08x}")
    e("v_lshlrev_b32 v12, 4, v2", "v_lshrrev_b32 v14, 4, v2", "v_and_b32 v15, 1, v14", "v_mul_u32_u24 v8, 576, v15",
      "v_lshrrev_b32 v15, 1, v14", "v_mul_u32_u24 v15, 288, v15", "v_add_u32 v8, v8, v15",
      "v_lshrrev_b32 v15, 1, v3", f"s_mov_b32 s3, {HB}", "v_mul_lo_u32 v15, v15, s3", "v_add_u32 v9, v8, v15",
      "v_and_b32 v15, 1, v3", "v_lshl_add_u32 v9, v15, 4, v9",
      "v_bfe_u32 v15, v3, 1, 1", "v_xor_b32 v15, 1, v15", "v_lshl_add_u32 v9, v15, 8, v9",
      "v_mov_b32 v15, 0x40000000", "v_cmp_gt_u32 vcc, 8, v3", "v_lshl_add_u32 v8, v3, 4, v8",
      f"s_mov_b32 s3, {2*HB}", "v_cndmask_b32 v10, v15, v9, vcc", "v_mul_lo_u32 v13, v14, s3")
    e("s_cmp_ge_u32 s18, 5", f"s_cbranch_scc1 {P}_AV", "s_cmp_ge_u32 s18, 3", f"s_cbranch_scc1 {P}_AK")
    epi_qk(e, 0, 8, 12, True, 26, 8)
    e(f"s_branch {P}_B")
    e.lab(f"{P}_AK")
    epi_qk(e, 0, 8, 12, False, 26, 8)
    e(f"s_branch {P}_B")
    e.lab(f"{P}_AV")
    epi_v(e, 0, 8, 12, 26, 8)
    e.lab(f"{P}_B")
    e("s_cmp_ge_u32 s18, 6", f"s_cbranch_scc1 {P}_BV", "s_cmp_ge_u32 s18, 2", f"s_cbranch_scc1 {P}_BK")
    epi_qk(e, 8, 4, 13, True, 27, 4)
    e(f"s_branch {P}_FIN")
    e.lab(f"{P}_BK")
    epi_qk(e, 8, 4, 13, False, 27, 4)
    e(f"s_branch {P}_FIN")
    e.lab(f"{P}_BV")
    epi_v(e, 8, 4, 13, 27, 4)
    e(f"s_branch {P}_FIN")
    e.lab(f"{P}_LOAD")
    e("s_sub_u32 s20, s19, 4")
    e("v_lshrrev_b32 v3, 3, v2", "v_and_b32 v4, 7, v2", "v_xor_b32 v4, v4, v3", "v_lshlrev_b32 v4, 4, v4",
      "s_lshl_b32 s3, s20, 5", "v_add_u32 v5, s3, v3", "v_mul_u32_u24 v8, 1152, v5", "v_add_u32 v8, v8, v4")
    e("s_mul_i32 s40, s17, 147456", "s_lshl_b32 s41, s20, 12")
    e("s_lshr_b32 s37, s2, 3", "s_and_b32 s37, s37, 7", "s_lshr_b32 s3, s2, 6", "s_lshl_b32 s3, s3, 1",
      "s_add_u32 s37, s37, s3")
    for _ in range(13 // (9 - RK) if RK < 9 else 0):
        e(f"s_cmp_ge_u32 s37, {9 - RK}", f"s_cselect_b32 s3, {9 - RK}, 0", "s_sub_u32 s37, s37, s3")
    e(f"s_add_u32 s37, s37, {RK}", "s_mov_b32 s34, s37" if RK == 0 else "s_mov_b32 s34, 0")
    e("s_lshl_b32 s35, s34, 7", "s_add_u32 s35, s35, s40",
      "s_add_u32 m0, s41, 0", "s_mul_i32 s36, s34, 221184", "buffer_load_dwordx4 v8, s[4:7], s35 offen lds")
    e("v_lshrrev_b32 v3, 5, v2", "v_mul_u32_u24 v3, 13824, v3", "v_and_b32 v4, 31, v2", "v_lshl_add_u32 v3, v4, 4, v3",
      "v_add_u32 v9, s45, v3")
    e("s_mul_i32 s42, s20, 8448", f"s_add_u32 s42, s42, {LW}", "s_mul_i32 s44, s20, 55296", "s_add_u32 s36, s36, s44")

    def issue(s, skip_first=False):
        base = (s % NB) * SB
        for i in range(4):
            if skip_first and i == 0:
                continue
            e(f"s_add_u32 m0, s41, {base + 1024*i}", f"s_add_u32 s43, s35, {9216*i}",
              "buffer_load_dwordx4 v8, s[4:7], s43 offen lds")
        for u in range(8):
            e(f"s_add_u32 m0, s42, {base + 1056*u}",
              f"s_add_u32 s43, s36, {27648*(u >> 2) + 3456*(u & 3)}",
              "buffer_load_dwordx4 v9, s[8:11], s43 offen lds")
        if s < 8:
            if s + 1 < RK:
                e(f"s_mov_b32 s34, {s + 1}")
            elif s + 1 == RK:
                e("s_mov_b32 s34, s37")
            else:
                e("s_add_u32 s34, s34, 1", "s_cmp_eq_u32 s34, 9", f"s_cselect_b32 s34, {RK}, s34")
            e("s_lshl_b32 s35, s34, 7", "s_add_u32 s35, s35, s40", "s_mul_i32 s36, s34, 221184", "s_add_u32 s36, s36, s44")

    issue(0, True)
    issue(1)
    stamp(e, 1)
    e(f"s_waitcnt vmcnt({NDMA})")
    stamp(e, 2)
    e("s_barrier")
    issue(2)
    for s in range(9):
        left = max(min(s + 2, 8) - (s + 1), 0)
        e(f"s_waitcnt vmcnt({left*NDMA})")
        stamp(e, 3 + s if s < 8 else 11)
        e("s_barrier")
        if s + 3 <= 8:
            issue(s + 3)
    e.lab(f"{P}_FIN")
    if PROF:
        stamp(e, 13)
        e("s_waitcnt vmcnt(0)")
        stamp(e, 14)
        stamp_dump(e, 0, 15, P)
    e.lab(f"{P}_END")
    e("s_endpgm")
    return dict(name="qkv_kernel", vgpr=180, grid=256, lds=NB * SB)
```

```python
from gen import *

EXP = os.environ.get("EXP", "")
SB, NB = 50176, 3
LW = 16384
XS = [16, 24]
WR = 32
ACC = 64
VX0, VX1, VWA, VWB, VPA, VPB = 4, 5, 6, 7, 10, 11
NT = 14
NDMA = 12
RK = int(os.environ.get("RK", "2"))


def acc(T, i):
    return ACC + 4 * (2 * T + i)


def wread(j, T):
    d = WR + 4 * (T % 7)
    L = []
    for h in range(2):
        off = h * 512 + j * 16896
        if T < 8:
            a, off = VWA, off + 72 * (T >> 1) + 40 * (T & 1)
        elif T < 12:
            a, off = VWB, off + 72 * ((T - 8) >> 1) + 40 * (T & 1)
        else:
            a = VPA if T == 12 else VPB
        L.append(f"ds_read_b64_tr_b16 {vr(d+2*h,2)}, v{a} offset:{off}")
    return L


def xread(j):
    a = VX0 if j == 0 else VX1
    return [f"ds_read_b128 {vr(XS[j]+4*i,4)}, v{a} offset:{2048*i}" for i in range(2)]


def mfma(j, T, i, swapped):
    w, x, d = vr(WR + 4 * (T % 7), 4), vr(XS[j] + 4 * i, 4), vr(acc(T, i), 4)
    a, b = (x, w) if swapped else (w, x)
    return f"v_mfma_f32_16x16x32_bf16 {d}, {a}, {b}, {d}"


def stage_body(swA, swB):
    sw = lambda T: swA if (T < 8 or T == 12) else swB
    plan = {P: [] for P in range(28)}
    for P in range(5, 28):
        plan[P - 5] += [("W", 0, P)]
    plan[2] += [("X", 0, 1)]
    nxt = {24: [("W", 1, 0), ("W", 1, 1)], 25: [("W", 1, 2), ("W", 1, 3), ("X", 1, 0)], 26: [("W", 1, 4)]}
    for P, v in nxt.items():
        plan[P] += v
    seq = []
    waits = {}
    issued = []
    for it in range(2):
        for P in range(28):
            j, T = divmod(P, 14)
            need = [("W", it, P), ("X", it, j)]
            pos = -1
            for k, (key, n) in enumerate(issued):
                if key in need:
                    pos = k
            if pos >= 0:
                after = sum(n for key, n in issued[pos + 1:])
                waits[(it, P)] = after
            if P == 24:
                issued = []
            for kind, so, idx in plan[P]:
                issued.append(((kind, it + so, idx), 2))
    L = []
    for P in range(28):
        j, T = divmod(P, 14)
        w = waits.get((1, P))
        R = []
        for kind, so, idx in plan[P]:
            if kind == "W":
                if "nords" not in EXP or (idx % 14) < 2:
                    R += wread(idx // 14, idx % 14)
            else:
                R += xread(idx)
        if w is not None:
            L.append(f"s_waitcnt lgkmcnt({min(w, 15)})")
        if P == 24:
            L += [mfma(j, T, 0, sw(T)), mfma(j, T, 1, sw(T))]
            L += ["s_waitcnt lgkmcnt(0)", "s_barrier",
                  f"v_add_u32 v{VX0}, s50, v{VX0}", f"v_add_u32 v{VPA}, s50, v{VPA}", f"v_add_u32 v{VPB}, s50, v{VPB}"]
            L += [f"v_add_u32 v{VWA}, s50, v{VWA}", f"v_add_u32 v{VWB}, s50, v{VWB}"]
            L += R
            continue
        h = (len(R) + 1) // 2 if "noil" not in EXP else 0
        L += [mfma(j, T, 0, sw(T))] + R[:h] + [mfma(j, T, 1, sw(T))]
        if P == 26:
            L += [f"v_add_u32 v{VX1}, s50, v{VX1}"]
        L += R[h:]
    return L


def epi_qk(e, T0, n, Tp, is_q, s_head, np_):
    off1, off2 = (Q1O, Q2O) if is_q else (K1O, K2O)
    for k in range(n):
        T = T0 + k
        a, b = acc(T, 0), acc(T, 1)
        if is_q:
            e(*[f"v_mul_f32 v{a+r}, s22, v{a+r}" for r in range(8)])
        e(f"v_cvt_pk_bf16_f32 v{a}, v{a}, v{a+1}", f"v_cvt_pk_bf16_f32 v{a+1}, v{a+2}, v{a+3}",
          f"v_cvt_pk_bf16_f32 v{a+2}, v{b}, v{b+1}", f"v_cvt_pk_bf16_f32 v{a+3}, v{b+2}, v{b+3}",
          f"s_add_u32 s3, s{s_head}, {k*HB + off1}", "s_add_u32 s3, s3, s23",
          f"v_permlane16_swap_b32 v{a}, v{a+2}", f"v_permlane16_swap_b32 v{a+1}, v{a+3}",
          f"buffer_store_dwordx4 {vr(a,4)}, v12, s[12:15], s3 offen{SC(1)}")
    sh = 2 if is_q else 3
    e(f"s_lshl_b32 s3, s24, {sh}", f"s_add_u32 s3, s3, s{s_head}", f"s_add_u32 s3, s3, {off2}",
      f"v_lshlrev_b32 v14, {sh}, v3", "v_add_u32 v14, v14, v13")
    if np_ == 4:
        e("s_mov_b32 exec_hi, 0")
    for i in range(2):
        a = acc(Tp, i)
        if is_q:
            e(*[f"v_mul_f32 v{a+r}, s22, v{a+r}" for r in range(4)])
            e(f"v_cvt_pk_bf16_f32 v{a}, v{a}, v{a+1}", f"v_cvt_pk_bf16_f32 v{a+1}, v{a+2}, v{a+3}",
              f"buffer_store_dword v{a}, v14, s[12:15], s3 offen offset:{64*i}",
              f"v_add_u32 v15, {HB}, v14",
              f"buffer_store_dword v{a+1}, v15, s[12:15], s3 offen offset:{64*i}")
        else:
            e(f"v_cvt_pk_bf16_f32 v{a}, v{a}, v{a+1}", f"v_cvt_pk_bf16_f32 v{a+2}, v{a+2}, v{a+3}",
              f"v_mov_b32 v{a+1}, 0x00003F80", f"v_mov_b32 v{a+3}, 0x00003F80",
              f"v_add_u32 v15, {HB}, v14",
              f"buffer_store_dwordx2 {vr(a,2)}, v14, s[12:15], s3 offen offset:{128*i}",
              f"buffer_store_dwordx2 {vr(a+2,2)}, v15, s[12:15], s3 offen offset:{128*i}")
    if np_ == 4:
        e("s_mov_b64 exec, -1")


def epi_v(e, T0, n, Tp, s_head, np_):
    for k in list(range(n)) + ["p"]:
        T = Tp if k == "p" else T0 + k
        a, b = acc(T, 0), acc(T, 1)
        e(f"v_cvt_pk_bf16_f32 v{a}, v{a}, v{a+1}", f"v_cvt_pk_bf16_f32 v{a+1}, v{a+2}, v{a+3}",
          f"v_cvt_pk_bf16_f32 v{a+2}, v{b}, v{b+1}", f"v_cvt_pk_bf16_f32 v{a+3}, v{b+2}, v{b+3}")
        if k == "p":
            e(f"s_add_u32 s3, s{s_head}, s25", "s_nop 0")
        else:
            e(f"s_add_u32 s3, s{s_head}, {k*HB + 32*(k & 1)}", "s_add_u32 s3, s3, s25")
        e(f"v_permlane16_swap_b32 v{a}, v{a+2}", f"v_permlane16_swap_b32 v{a+1}, v{a+3}")
        if k == "p":
            va = 9 if np_ == 8 else 10
            e(f"buffer_store_dwordx4 {vr(a,4)}, v{va}, s[12:15], s3 offen")
        else:
            e(f"buffer_store_dwordx4 {vr(a,4)}, v8, s[12:15], s3 offen{SC(1)}")


def gen_k1(e):
    P = "K1"
    e.lab("qkv_kernel")
    e("s_cmp_ge_u32 s2, 256", f"s_cbranch_scc1 {P}_END")
    stamp(e, 0)
    e("s_load_dwordx4 s[24:27], s[0:1], 0", "s_load_dwordx4 s[28:31], s[0:1], 24",
      "s_load_dwordx2 s[32:33], s[0:1], 64")
    e("v_lshrrev_b32 v1, 6, v0", "v_and_b32 v2, 63, v0", "s_and_b32 s16, s2, 1", "v_readfirstlane_b32 s19, v1",
      "s_lshr_b32 s3, s2, 1", "s_and_b32 s3, s3, 1", "s_lshl_b32 s3, s3, 3",
      "s_lshr_b32 s20, s2, 3", "s_and_b32 s17, s20, 7", "s_add_u32 s17, s17, s3",
      "s_lshr_b32 s3, s2, 2", "s_and_b32 s3, s3, 1", "s_lshl_b32 s3, s3, 2",
      "s_lshr_b32 s18, s20, 3", "s_add_u32 s18, s18, s3",
      "s_mul_i32 s44, s18, 432", "s_andn2_b32 s45, s44, 127", "s_sub_u32 s3, s44, s45", "s_cmp_gt_u32 s3, 80",
      "s_cselect_b32 s3, 64, 0", "s_add_u32 s45, s45, s3",
      "s_add_u32 s47, s44, 288", "s_add_u32 s46, s44, 144", "s_cmp_eq_u32 s18, 5",
      "s_cselect_b32 s46, s46, s44", "s_cselect_b32 s47, s44, s47")
    e("s_waitcnt lgkmcnt(0)")
    e("s_cmp_eq_u32 s16, 0",
      "s_cselect_b32 s4, s24, s28", "s_cselect_b32 s5, s25, s29", "s_mov_b32 s6, 2359296", "s_mov_b32 s7, 0x00020000",
      "s_cselect_b32 s8, s26, s30", "s_cselect_b32 s9, s27, s31", "s_mov_b32 s10, 1990656", "s_mov_b32 s11, 0x00020000")
    e("s_cmp_ge_u32 s19, 4", f"s_cbranch_scc1 {P}_LOAD")
    e(f"s_mul_i32 s3, s16, {32*HB}", "s_add_u32 s38, s32, s3", "s_addc_u32 s39, s33, 0")
    srd(e, 12, 38, 39, 32 * HB)
    e("v_and_b32 v3, 15, v2", "v_lshrrev_b32 v13, 4, v2", "v_bfe_u32 v14, v2, 2, 2", "v_and_b32 v15, 3, v2")
    e("v_and_b32 v4, 7, v2", "v_xor_b32 v4, v4, v13", "v_lshlrev_b32 v4, 4, v4", "s_lshl_b32 s3, s19, 5",
      "v_add_u32 v5, s3, v3", f"v_lshl_add_u32 v{VX0}, v5, 7, v4", f"v_xor_b32 v{VX1}, 64, v{VX0}")
    e("v_lshl_add_u32 v1, v13, 2, v14", "v_mul_u32_u24 v1, 1056, v1", f"v_add_u32 v1, {LW}, v1",
      "s_sub_u32 s20, s46, s45", "s_sub_u32 s21, s47, s45",
      "v_lshl_add_u32 v10, v15, 3, v1", f"v_add_u32 v{VWA}, s20, v10", f"v_add_u32 v{VWB}, s21, v10",
      "v_mul_u32_u24 v10, 72, v15", "v_add_u32 v10, v10, v1", "s_add_u32 s20, s20, 32", f"v_add_u32 v{VPA}, s20, v10",
      "v_and_b32 v11, 1, v15", "v_mul_u32_u24 v11, 72, v11", "v_add_u32 v11, v11, v1", "s_add_u32 s21, s21, 32",
      f"v_add_u32 v{VPB}, s21, v11")
    e("v_mov_b32 v12, 0", "v_mov_b32 v1, 0", *[f"v_mov_b32 v{XS[0]+r}, 0" for r in range(4)], "s_nop 1")
    for T in range(NT):
        for i in range(2):
            e(f"v_mfma_f32_16x16x32_bf16 {vr(acc(T,i),4)}, {vr(XS[0],4)}, {vr(XS[0],4)}, 0")
    if "pf" in EXP:
        e("s_lshl_b32 s3, s19, 1", "s_add_u32 s3, s3, 2", "v_lshrrev_b32 v14, 5, v2", "v_add_u32 v14, s3, v14",
          "v_min_u32 v14, 8, v14",
          "s_lshr_b32 s3, s2, 6", "s_lshl_b32 s3, s3, 5", "s_lshl_b32 s20, s17, 7", "s_add_u32 s3, s3, s20",
          "v_and_b32 v15, 31, v2", "v_add_u32 v15, s3, v15", "v_mul_u32_u24 v15, 1152, v15",
          "v_lshl_add_u32 v15, v14, 7, v15", "buffer_load_dword v176, v15, s[4:7], 0 offen",
          "s_lshr_b32 s3, s2, 3", "s_and_b32 s3, s3, 7", "s_lshl_b32 s3, s3, 3",
          "v_bfe_u32 v15, v2, 2, 3", "v_lshl_add_u32 v15, v14, 6, v15", "v_add_u32 v15, s3, v15",
          "v_mul_u32_u24 v15, 3456, v15", "s_andn2_b32 s3, s45, 127", "v_add_u32 v15, s3, v15",
          "v_and_b32 v14, 3, v2", "v_lshl_add_u32 v14, v14, 7, v15",
          "buffer_load_dword v177, v14, s[8:11], 0 offen",
          "s_bitcmp1_b32 s45, 6", f"s_cbranch_scc0 {P}_NOPF5",
          "buffer_load_dword v178, v15, s[8:11], 0 offen offset:512")
        e.lab(f"{P}_NOPF5")
    e("s_mov_b32 s48, 0", f"s_mov_b32 s50, {SB}", "s_mov_b32 s55, 0x124", f"s_mov_b32 s56, {(-2*SB) & 0xffffffff}",
      f"s_mov_b32 s57, {SB}")
    stamp(e, 1)
    e("s_barrier")
    stamp(e, 2)
    e(*xread(0))
    for T in range(5):
        e(*wread(0, T))
    e("s_waitcnt lgkmcnt(0)")
    e("s_cmp_ge_u32 s18, 6", f"s_cbranch_scc1 {P}_LSS", "s_cmp_eq_u32 s18, 5", f"s_cbranch_scc1 {P}_LSN")
    for nm, swA, swB in (("NN", False, False), ("SN", True, False), ("SS", True, True)):
        e.lab(f"{P}_L{nm}")
        e(*stage_body(swA, swB))
        e("s_add_u32 s48, s48, 1", "s_bitcmp1_b32 s55, s48", "s_cselect_b32 s50, s56, s57")
        e("s_cmp_lt_u32 s48, 9", f"s_cbranch_scc1 {P}_L{nm}")
        if nm != "SS":
            e(f"s_branch {P}_EPI")
    e.lab(f"{P}_EPI")
    stamp(e, 11)
    e("s_waitcnt lgkmcnt(0)")
    for s_col, s_h in ((46, 26), (47, 27)):
        e(f"s_cmp_ge_u32 s{s_col}, 2304", f"s_cselect_b32 s3, 2304, 0", f"s_sub_u32 s{s_h}, s{s_col}, s3",
          f"s_cmp_ge_u32 s{s_h}, 1152", "s_cselect_b32 s3, 1152, 0", f"s_sub_u32 s{s_h}, s{s_h}, s3",
          f"s_mul_i32 s{s_h}, s{s_h}, 1821", f"s_lshr_b32 s{s_h}, s{s_h}, 16", f"s_mul_i32 s{s_h}, s{s_h}, {HB}")
    e("s_lshl_b32 s23, s17, 2", "s_add_u32 s23, s23, s19", "s_lshl_b32 s24, s23, 5", "s_mul_i32 s25, s23, 1152",
      f"s_add_u32 s25, s25, {VO}", "s_lshl_b32 s23, s23, 10", f"s_mov_b32 s22, 0x{f2u(CSCALE):08x}")
    e("v_lshlrev_b32 v12, 4, v2", "v_lshrrev_b32 v14, 4, v2", "v_and_b32 v15, 1, v14", "v_mul_u32_u24 v8, 576, v15",
      "v_lshrrev_b32 v15, 1, v14", "v_mul_u32_u24 v15, 288, v15", "v_add_u32 v8, v8, v15",
      "v_lshrrev_b32 v15, 1, v3", f"s_mov_b32 s3, {HB}", "v_mul_lo_u32 v15, v15, s3", "v_add_u32 v9, v8, v15",
      "v_and_b32 v15, 1, v3", "v_lshl_add_u32 v9, v15, 4, v9",
      "v_bfe_u32 v15, v3, 1, 1", "v_xor_b32 v15, 1, v15", "v_lshl_add_u32 v9, v15, 8, v9",
      "v_mov_b32 v15, 0x40000000", "v_cmp_gt_u32 vcc, 8, v3", "v_lshl_add_u32 v8, v3, 4, v8",
      f"s_mov_b32 s3, {2*HB}", "v_cndmask_b32 v10, v15, v9, vcc", "v_mul_lo_u32 v13, v14, s3")
    e("s_cmp_ge_u32 s18, 5", f"s_cbranch_scc1 {P}_AV", "s_cmp_ge_u32 s18, 3", f"s_cbranch_scc1 {P}_AK")
    epi_qk(e, 0, 8, 12, True, 26, 8)
    e(f"s_branch {P}_B")
    e.lab(f"{P}_AK")
    epi_qk(e, 0, 8, 12, False, 26, 8)
    e(f"s_branch {P}_B")
    e.lab(f"{P}_AV")
    epi_v(e, 0, 8, 12, 26, 8)
    e.lab(f"{P}_B")
    e("s_cmp_ge_u32 s18, 6", f"s_cbranch_scc1 {P}_BV", "s_cmp_ge_u32 s18, 2", f"s_cbranch_scc1 {P}_BK")
    epi_qk(e, 8, 4, 13, True, 27, 4)
    e(f"s_branch {P}_FIN")
    e.lab(f"{P}_BK")
    epi_qk(e, 8, 4, 13, False, 27, 4)
    e(f"s_branch {P}_FIN")
    e.lab(f"{P}_BV")
    epi_v(e, 8, 4, 13, 27, 4)
    e(f"s_branch {P}_FIN")
    e.lab(f"{P}_LOAD")
    e("s_sub_u32 s20, s19, 4")
    e("v_lshrrev_b32 v3, 3, v2", "v_and_b32 v4, 7, v2", "v_xor_b32 v4, v4, v3", "v_lshlrev_b32 v4, 4, v4",
      "s_lshl_b32 s3, s20, 5", "v_add_u32 v5, s3, v3", "v_mul_u32_u24 v8, 1152, v5", "v_add_u32 v8, v8, v4")
    e("s_mul_i32 s40, s17, 147456", "s_lshl_b32 s41, s20, 12")
    e("s_lshr_b32 s37, s2, 3", "s_and_b32 s37, s37, 7", "s_lshr_b32 s3, s2, 6", "s_lshl_b32 s3, s3, 1",
      "s_add_u32 s37, s37, s3")
    for _ in range(13 // (9 - RK) if RK < 9 else 0):
        e(f"s_cmp_ge_u32 s37, {9 - RK}", f"s_cselect_b32 s3, {9 - RK}, 0", "s_sub_u32 s37, s37, s3")
    e(f"s_add_u32 s37, s37, {RK}", "s_mov_b32 s34, s37" if RK == 0 else "s_mov_b32 s34, 0")
    e("s_lshl_b32 s35, s34, 7", "s_add_u32 s35, s35, s40",
      "s_add_u32 m0, s41, 0", "s_mul_i32 s36, s34, 221184", "buffer_load_dwordx4 v8, s[4:7], s35 offen lds")
    e("v_lshrrev_b32 v3, 5, v2", "v_mul_u32_u24 v3, 13824, v3", "v_and_b32 v4, 31, v2", "v_lshl_add_u32 v3, v4, 4, v3",
      "v_add_u32 v9, s45, v3")
    e("s_mul_i32 s42, s20, 8448", f"s_add_u32 s42, s42, {LW}", "s_mul_i32 s44, s20, 55296", "s_add_u32 s36, s36, s44")

    def issue(s, skip_first=False):
        base = (s % NB) * SB
        for i in range(4):
            if skip_first and i == 0:
                continue
            e(f"s_add_u32 m0, s41, {base + 1024*i}", f"s_add_u32 s43, s35, {9216*i}",
              "buffer_load_dwordx4 v8, s[4:7], s43 offen lds")
        for u in range(8):
            e(f"s_add_u32 m0, s42, {base + 1056*u}",
              f"s_add_u32 s43, s36, {27648*(u >> 2) + 3456*(u & 3)}",
              "buffer_load_dwordx4 v9, s[8:11], s43 offen lds")
        if s < 8:
            if s + 1 < RK:
                e(f"s_mov_b32 s34, {s + 1}")
            elif s + 1 == RK:
                e("s_mov_b32 s34, s37")
            else:
                e("s_add_u32 s34, s34, 1", "s_cmp_eq_u32 s34, 9", f"s_cselect_b32 s34, {RK}, s34")
            e("s_lshl_b32 s35, s34, 7", "s_add_u32 s35, s35, s40", "s_mul_i32 s36, s34, 221184", "s_add_u32 s36, s36, s44")

    issue(0, True)
    issue(1)
    stamp(e, 1)
    e(f"s_waitcnt vmcnt({NDMA})")
    stamp(e, 2)
    e("s_barrier")
    issue(2)
    for s in range(9):
        left = max(min(s + 2, 8) - (s + 1), 0)
        e(f"s_waitcnt vmcnt({left*NDMA})")
        stamp(e, 3 + s if s < 8 else 11)
        e("s_barrier")
        if s + 3 <= 8:
            issue(s + 3)
    e.lab(f"{P}_FIN")
    if PROF:
        stamp(e, 13)
        e("s_waitcnt vmcnt(0)")
        stamp(e, 14)
        stamp_dump(e, 0, 15, P)
    e.lab(f"{P}_END")
    e("s_endpgm")
    return dict(name="qkv_kernel", vgpr=180, grid=256, lds=NB * SB)
```

```python
from gen import *

EXP = os.environ.get("EXP", "")
LANE, L16, AK1, AK2, AV, IDX = 1, 2, 3, 4, 5, 6
T0 = 7
Q1A, Q1B_, Q2A, Q2B_ = [16, 20], 24, [28, 30], 32
K1B = [34, 38]
K2B = [42, 44]
AK2L, AVL = 46, 47
VB = [[48, 52], [56, 60]]
SA, SB_ = [64, 80], [96, 112]
OA, OB = 128, 144
MF, ML = 160, 176
OBS = 192
ADA, ADB = 197, 198
SK1, SK2 = 200, 204
G2, GV = 206, 207
ZZ = 208
LMSK = 155648
LK1, LV, LK2 = 0, 65536, 139264
VMASK, LOW = 40, 42
NEGF = 0xF1800000


def mf1(S, kb, Q, C):
    c = "0" if C is None else vr(C, 16)
    return f"v_mfma_f32_32x32x16_bf16 {vr(S,16)}, {vr(K1B[kb],4)}, {vr(Q,4)}, {c}"


def mf2(S, kb, Q):
    return f"v_mfma_f32_32x32x8bf16_1k {vr(S,16)}, {vr(K2B[kb],2)}, {vr(Q,2)}, {vr(S,16)}"


def pv(O, vb, half, S):
    return f"v_smfmac_f32_32x32x32_bf16 {vr(O,16)}, {vr(VB[vb][half],4)}, {vr(S+8*half,8)}, v{IDX}"


def rdK(kb, t):
    return [f"ds_read_b128 {vr(K1B[kb],4)}, v{AK1} offset:{1024*t}",
            f"ds_read_b64 {vr(K2B[kb],2)}, v{AK2} offset:{256*t}"]


def rdV(vb, t):
    return [f"s_mov_b64 exec, s[{VMASK}:{VMASK+1}]",
            f"ds_read_b128 {vr(VB[vb][0],4)}, v{AV} offset:{1152*t}",
            f"ds_read_b128 {vr(VB[vb][1],4)}, v{AV} offset:{1152*t+576}",
            "s_mov_b64 exec, -1"]


def b_iter(e, t, prev, nxt, nxt2, Cn, extra):
    p = t & 1
    S, N = SA[p], SA[p ^ 1]
    ex = lambda r: e(f"v_exp_f32 v{S+r}, v{S+r}")
    ex(0); ex(1)
    if prev:
        e(pv(OA, p ^ 1, 1, N))
    ex(2); ex(3)
    if extra:
        e(*extra[0])
    ex(4); ex(5)
    e("s_waitcnt lgkmcnt(0)")
    if nxt:
        e(mf1(N, p ^ 1, Q1B_, Cn))
    ex(6); ex(7)
    if len(extra) > 1:
        e(*extra[1])
    ex(8); ex(9)
    if nxt:
        e(mf2(N, p ^ 1, Q2B_))
        e(*(rdK(p, t + 2) if nxt2 else ["s_nop 0", "s_nop 0"]))
        e(*rdV(p ^ 1, t + 1))
    for r in (10, 11, 12, 13):
        ex(r)
    e(pv(OA, p, 0, S))
    ex(14); ex(15)


def a_step(e, s):
    p = s & 1
    n = p ^ 1
    M = [pv(OA, n, 1, SA[n]), mf1(SA[n], n, Q1A[0], None), mf2(SA[n], n, Q2A[0]), pv(OA, p, 0, SA[p]),
         pv(OB, n, 1, SB_[n]), mf1(SB_[n], n, Q1A[1], None), mf2(SB_[n], n, Q2A[1]), pv(OB, p, 0, SB_[p])]
    k = rdK(p, 2 * (s + 2))
    v = rdV(n, 2 * (s + 1))
    after = {4: ["s_waitcnt lgkmcnt(0)"], 7: [k[0]], 10: [k[1]], 18: v}
    regs = [SA[p] + r for r in range(16)] + [SB_[p] + r for r in range(16)]
    for i, r in enumerate(regs):
        if "noalt" not in EXP and i in (0, 16):
            e(f"s_setprio {1 if i == 0 else 0}")
        e(f"v_exp_f32 v{r}, v{r}")
        e(*after.get(i, []))
        if i % 4 == 1:
            e(M[i // 4])


def check(e, slow_label, done_label):
    a, b, t = T0, T0 + 1, T0 + 2
    e(f"v_mov_b32 v{a}, v{OA+10}", f"v_mov_b32 v{b}, v{OA+10}", f"v_mul_f32 v{t}, 0, v{OA}", "s_nop 0",
      f"v_permlane32_swap_b32 v{a}, v{b}")
    for r in range(1, 10):
        e(f"v_fmac_f32 v{t}, 0, v{OA+r}")
    e(f"v_add_f32 v{t}, v{a}, v{t}",
      f"s_mov_b32 s3, 0x{f2u(2.0**-100):08x}", f"v_cmp_le_f32 vcc, s3, v{t}",
      f"s_mov_b32 s3, 0x{f2u(2.0**115):08x}", f"v_cmp_ge_f32 s[44:45], s3, v{t}",
      f"v_rcp_f32 v{a}, v{a}", "s_nop 2", "s_and_b64 vcc, vcc, s[44:45]", "s_cmp_eq_u64 vcc, -1",
      f"s_cbranch_scc0 {slow_label}")
    e.lab(done_label)


def normalize(e, dst):
    a = T0
    for r in range(10):
        e(f"v_mul_f32 v{OA+r}, v{a}, v{OA+r}")
    for k in range(5):
        e(f"v_cvt_pk_bf16_f32 v{dst+k}, v{OA+2*k}, v{OA+2*k+1}")
    e("s_nop 0", f"v_permlane32_swap_b32 v{dst}, v{dst+2}", f"v_permlane32_swap_b32 v{dst+1}, v{dst+3}")


def slow_path(e, P):
    m, t2 = T0 + 3, T0 + 4
    S = SA[0]
    d = vr(S, 16)
    e.lab(f"{P}_SLOW")
    e(f"v_mov_b32 v{m}, 0xff7fffff")
    for r in range(16):
        e(f"v_mov_b32 v{OA+r}, 0")
    for ps in range(2):
        lab = f"{P}_SL{ps}"
        e("s_mov_b32 s46, s49")
        e.lab(lab)
        e("s_lshl_b32 s47, s46, 10", f"s_add_u32 s47, s47, {K1O}",
          f"buffer_load_dwordx4 {vr(K1B[0],4)}, v{L16}, s[56:59], s47 offen",
          "s_lshl_b32 s47, s46, 8", f"s_add_u32 s47, s47, {K2O}",
          f"buffer_load_dwordx2 {vr(K2B[0],2)}, v{G2}, s[56:59], s47 offen")
        if ps == 1:
            e("s_mul_i32 s47, s46, 1152", f"s_add_u32 s47, s47, {VO}",
              f"s_mov_b64 exec, s[{VMASK}:{VMASK+1}]",
              f"buffer_load_dwordx4 {vr(VB[0][0],4)}, v{GV}, s[56:59], s47 offen",
              f"buffer_load_dwordx4 {vr(VB[0][1],4)}, v{GV}, s[56:59], s47 offen offset:576",
              "s_mov_b64 exec, -1")
        e("s_waitcnt vmcnt(0)")
        e("s_cmp_eq_u32 s46, s51", f"s_cbranch_scc1 {lab}_F",
          "s_cmp_eq_u32 s46, s52", f"s_cbranch_scc1 {lab}_L",
          mf1(S, 0, Q1B_, None), f"s_branch {lab}_J")
        e.lab(f"{lab}_F")
        e(mf1(S, 0, Q1B_, MF), f"s_branch {lab}_J")
        e.lab(f"{lab}_L")
        e(mf1(S, 0, Q1B_, ML))
        e.lab(f"{lab}_J")
        e(mf2(S, 0, Q2B_), "s_nop 7", "s_nop 7")
        if ps == 0:
            for r in range(0, 16, 2):
                e(f"v_max3_f32 v{m}, v{S+r}, v{S+r+1}, v{m}")
        else:
            for r in range(16):
                e(f"v_sub_f32 v{S+r}, v{S+r}, v{m}")
            for r in range(16):
                e(f"v_exp_f32 v{S+r}, v{S+r}")
            e("s_nop 1", pv(OA, 0, 0, S), pv(OA, 0, 1, S), "s_nop 7", "s_nop 7")
        e("s_add_u32 s46, s46, 1", "s_cmp_le_u32 s46, s50", f"s_cbranch_scc1 {lab}")
        if ps == 0:
            e(f"v_mov_b32 v{t2}, v{m}", "s_nop 1", f"v_permlane32_swap_b32 v{m}, v{t2}", "s_nop 1",
              f"v_max_f32 v{m}, v{m}, v{t2}")
    a, b = T0, T0 + 1
    e(f"v_mov_b32 v{a}, v{OA+10}", f"v_mov_b32 v{b}, v{OA+10}", "s_nop 1",
      f"v_permlane32_swap_b32 v{a}, v{b}", "s_nop 1", f"v_rcp_f32 v{a}, v{a}", "s_nop 1")
    e("s_cmp_eq_u32 s48, 0", f"s_cbranch_scc1 {P}_DONEB", f"s_branch {P}_DONEA")


def dma(srdreg, lds, src_s, src_c):
    ls, lc = lds
    return [f"s_add_u32 m0, s{ls}, {lc}", f"s_add_u32 s3, s{src_s}, {src_c}",
            f"buffer_load_dwordx4 v{L16}, s[{srdreg}:{srdreg+3}], s3 offen lds"]


def gen_k2(e):
    P = "K2"
    e.lab("attn_kernel")
    e("s_cmp_ge_u32 s2, 256", f"s_cbranch_scc1 {P}_END")
    stamp(e, 0)
    e("s_setprio 3")
    e("s_load_dwordx2 s[32:33], s[0:1], 64")
    e(f"v_lshrrev_b32 v{T0}, 6, v0", f"v_and_b32 v{LANE}, 63, v0",
      "s_and_b32 s3, s2, 7", f"v_readfirstlane_b32 s19, v{T0}", "s_lshl_b32 s3, s3, 2",
      "s_lshr_b32 s16, s2, 3", "s_and_b32 s16, s16, 3", "s_add_u32 s16, s16, s3", "s_lshr_b32 s17, s2, 5",
      f"v_lshlrev_b32 v{L16}, 4, v{LANE}", f"s_mul_i32 s3, s16, {HB}",
      "s_add_u32 s23, s17, 7", "s_and_b32 s23, s23, 7", "s_lshl_b32 s20, s19, 10")
    ii, i4, hh = T0, T0 + 1, T0 + 2
    e("s_waitcnt lgkmcnt(0)")
    stamp(e, 13)
    e("s_add_u32 s34, s32, s3", "s_addc_u32 s35, s33, 0")
    e(f"s_add_u32 s8, s34, {32*HB}", "s_addc_u32 s9, s35, 0", f"s_mov_b32 s10, {HB}", "s_mov_b32 s11, 0x00020000")
    for slot, ch in ((7, 17), (6, 23)):
        e(f"s_lshl_b32 s26, s{ch}, 13", "s_add_u32 s26, s26, s20")
        e(*dma(8, (20, LK1 + slot * 8192), 26, K1O))
        e(f"s_mul_i32 s26, s{ch}, 9216", "s_add_u32 s27, s26, s20")
        e(*dma(8, (20, LV + slot * 9216), 27, VO))
        e(f"s_cmp_eq_u32 s19, {slot-6}", f"s_cbranch_scc0 {P}_BV{slot}")
        e(f"s_mov_b32 m0, {LV + slot*9216 + 8192}", f"s_add_u32 s3, s26, {VO + 8192}",
          f"buffer_load_dwordx4 v{L16}, s[8:11], s3 offen lds")
        e.lab(f"{P}_BV{slot}")
    stamp(e, 14)
    e("s_lshr_b32 s21, s19, 2", "s_and_b32 s22, s19, 3", "s_lshl_b32 s22, s22, 1", "s_add_u32 s22, s22, s21",
      "s_lshl_b32 s18, s17, 3", "s_add_u32 s18, s18, s22",
      f"v_and_b32 v{ii}, 31, v{LANE}", f"v_and_b32 v{i4}, 32, v{LANE}", f"v_lshlrev_b32 v{i4}, 26, v{i4}",
      f"v_lshl_or_b32 v{i4}, v{ii}, 2, v{i4}",
      "s_lshl_b32 s24, s18, 10", "s_lshl_b32 s25, s18, 7", f"s_add_u32 s25, s25, {Q2O}")
    e(f"buffer_load_dwordx4 {vr(Q1B_,4)}, v{L16}, s[8:11], s24 offen",
      f"buffer_load_dword v{Q2B_}, v{i4}, s[8:11], s25 offen")
    e("s_cmp_lt_u32 s19, 4", f"s_cbranch_scc1 {P}_BK2D")
    e("s_and_b32 s28, s19, 1", "s_lshl_b32 s28, s28, 10", "s_cmp_lt_u32 s19, 6",
      "s_cselect_b32 s29, s23, s17", "s_cselect_b32 s26, 0, 2048",
      f"s_add_u32 s26, s26, {LK2 + 6*2048}", "s_add_u32 s26, s26, s28", "s_lshl_b32 s29, s29, 11",
      "s_add_u32 s29, s29, s28", f"s_add_u32 s29, s29, {K2O}")
    e("s_cmp_lt_u32 s19, 6", "s_cselect_b32 s27, 1, 0", "s_cmp_eq_u32 s17, 0", "s_cselect_b32 s27, s27, 0",
      "s_cmp_eq_u32 s27, 1", f"s_cbranch_scc1 {P}_BK2F")
    e("s_mov_b32 m0, s26", "s_nop 0", f"buffer_load_dwordx4 v{L16}, s[8:11], s29 offen lds", f"s_branch {P}_BK2D")
    e.lab(f"{P}_BK2F")
    e(f"v_add_u32 v10, s26, v{L16}", "v_mov_b32 v12, 0", "v_mov_b32 v13, 0x3F803F80", "v_mov_b32 v14, 0",
      "v_mov_b32 v15, 0x3F803F80", "ds_write_b128 v10, v[12:15]")
    e.lab(f"{P}_BK2D")
    srd(e, 4, 34, 35, HB)
    stamp(e, 15)
    e("s_setprio 0")
    e(f"s_add_u32 s34, s32, {OO}", "s_addc_u32 s35, s33, 0")
    srd(e, 12, 34, 35, 2 * 2359296)
    e(f"s_mov_b32 s{VMASK}, 0x0003FFFF", f"s_mov_b32 s{VMASK+1}, 0x0003FFFF",
      f"s_mov_b32 s{LOW}, -1", f"s_mov_b32 s{LOW+1}, 0")
    e(f"v_lshrrev_b32 v{hh}, 5, v{LANE}", f"v_mov_b32 v{IDX}, 0xDDDDDDDD",
      f"v_mov_b32 v{ZZ}, 0", f"v_mov_b32 v{ZZ+1}, 0", f"v_mov_b32 v{Q2A[0]+1}, 0", f"v_mov_b32 v{Q2A[1]+1}, 0",
      f"v_mov_b32 v{Q2B_+1}, 0")
    e("s_lshr_b32 s24, s19, 1", "s_and_b32 s25, s19, 1", "s_lshl_b32 s26, s24, 3", "s_lshl_b32 s27, s25, 1",
      "s_add_u32 s26, s26, s27",
      f"v_lshlrev_b32 v{T0+3}, 2, v{hh}", f"v_sub_u32 v{T0+3}, v{ii}, v{T0+3}",
      f"v_mov_b32 v{T0+4}, 0x{NEGF:08x}",
      f"v_cmp_le_i32 vcc, s26, v{T0+3}", f"v_cmp_lt_i32 s[44:45], s26, v{T0+3}",
      "s_lshl_b32 s24, s24, 10", "s_lshl_b32 s25, s25, 3", "s_add_u32 s24, s24, s25", f"s_add_u32 s24, s24, {LMSK}",
      f"v_cndmask_b32 v12, v{T0+4}, v{ZZ}, vcc", f"v_cndmask_b32 v13, v{T0+4}, v{ZZ}, s[44:45]",
      f"v_cndmask_b32 v14, v{ZZ}, v{T0+4}, vcc", f"v_cndmask_b32 v15, v{ZZ}, v{T0+4}, s[44:45]",
      f"v_add_u32 v{T0+3}, s24, v{L16}",
      f"ds_write_b64 v{T0+3}, v[12:13]", f"ds_write_b64 v{T0+3}, v[14:15] offset:4096")
    e(f"v_mov_b32 v{T0+4}, 0x3F803F80", f"v_cmp_eq_u32 vcc, 18, v{ii}",
      f"v_lshlrev_b32 v{G2}, 3, v{ii}", f"v_add_u32 v{AK2L}, {LK2}, v{G2}",
      f"v_cndmask_b32 v{T0+3}, v{ZZ}, v{T0+4}, vcc",
      f"v_mfma_f32_32x32x8bf16_1k {vr(OA,16)}, {vr(ZZ,2)}, {vr(ZZ,2)}, 0")
    for r in range(16):
        e(f"v_mov_b32 v{VB[0][0]+r}, v{T0+3}")
    e(f"v_mul_u32_u24 v{GV}, 288, v{hh}", f"v_lshl_add_u32 v{GV}, v{ii}, 4, v{GV}", f"v_add_u32 v{AVL}, {LV}, v{GV}")
    e("s_add_u32 s24, s22, 48", "s_lshl_b32 s25, s24, 10", f"v_add_u32 v{AK1}, s25, v{L16}",
      "s_lshl_b32 s25, s24, 8", f"v_add_u32 v{AK2}, s25, v{AK2L}",
      "s_mul_i32 s25, s24, 1152", f"v_add_u32 v{AV}, s25, v{AVL}")
    e("s_lshl_b32 s24, s18, 5", f"v_add_u32 v{T0+6}, s24, v{ii}", f"v_mul_u32_u24 v{T0+6}, 1152, v{T0+6}",
      f"v_lshl_add_u32 v{T0+6}, v{hh}, 4, v{T0+6}",
      "s_mul_i32 s24, s16, 36", f"v_add_u32 v{ADA}, s24, v{T0+6}", f"v_add_u32 v{ADB}, 2359296, v{ADA}")
    e("s_cmp_eq_u32 s18, 0", "s_cselect_b32 s24, 8, 7", "s_lshl_b32 s25, s24, 10", f"v_add_u32 v{T0+6}, s25, v{AK1}",
      "s_lshl_b32 s25, s24, 8", f"v_add_u32 v{T0+7}, s25, v{AK2}", f"v_add_u32 v{T0+5}, {LMSK}, v{L16}")
    stamp(e, 1)
    e("s_waitcnt vmcnt(0) lgkmcnt(0)")
    stamp(e, 2)
    e("s_barrier")
    stamp(e, 3)
    e(f"ds_read_b128 {vr(SK1,4)}, v{T0+6}", f"ds_read_b64 {vr(SK2,2)}, v{T0+7}")
    e(*rdK(0, 0), *rdK(1, 1), *rdV(0, 0))
    for q in range(4):
        e(f"ds_read_b128 {vr(MF+4*q,4)}, v{T0+5} offset:{4096+1024*q}")
    rdML = [f"ds_read_b128 {vr(ML+4*q,4)}, v{T0+5} offset:{1024*q}" for q in range(4)]
    e("s_sub_u32 s26, s18, s21", "s_lshl_b32 s24, s26, 10", "s_lshl_b32 s25, s26, 7", f"s_add_u32 s25, s25, {Q2O}")
    e(f"buffer_load_dwordx4 {vr(Q1A[0],4)}, v{L16}, s[4:7], s24 offen",
      f"buffer_load_dwordx4 {vr(Q1A[1],4)}, v{L16}, s[4:7], s24 offen offset:1024",
      f"buffer_load_dword v{Q2A[0]}, v{i4}, s[4:7], s25 offen",
      f"buffer_load_dword v{Q2A[1]}, v{i4}, s[4:7], s25 offen offset:128")
    kd_ = lambda c: dma(4, (20, LK1 + 8192 * c), 20, K1O + 8192 * c)
    vd_ = lambda c: dma(4, (20, LV + 8192 * c), 20, VO + 8192 * c)
    order = [kd_(0), vd_(0), dma(4, (20, LK2), 20, K2O), kd_(1), vd_(1), vd_(2), kd_(2), vd_(3), kd_(3), vd_(4)]
    e("s_waitcnt lgkmcnt(10)")
    d = vr(SA[0], 16)
    e("s_cmp_eq_u32 s18, 0", f"s_cbranch_scc1 {P}_SMPM",
      f"v_mfma_f32_32x32x16_bf16 {d}, {vr(SK1,4)}, {vr(Q1B_,4)}, 0", *rdML, f"s_branch {P}_SMPJ")
    e.lab(f"{P}_SMPM")
    e(*rdML, "s_waitcnt lgkmcnt(0)")
    e(f"v_mfma_f32_32x32x16_bf16 {d}, {vr(SK1,4)}, {vr(Q1B_,4)}, {vr(ML,16)}")
    e.lab(f"{P}_SMPJ")
    e(f"v_mfma_f32_32x32x8bf16_1k {d}, {vr(SK2,2)}, {vr(Q2B_,2)}, {d}")
    e(*order[0])
    order = order[1:]
    e("s_nop 7", "s_nop 3")
    S = SA[0]
    m, t2 = T0 + 3, T0 + 4
    e(f"v_max3_f32 v{m}, v{S}, v{S+1}, v{S+2}")
    for r in range(3, 15, 2):
        e(f"v_max3_f32 v{m}, v{S+r}, v{S+r+1}, v{m}")
    e(f"v_max_f32 v{m}, v{S+15}, v{m}", f"v_mov_b32 v{t2}, v{m}", "s_nop 1",
      f"v_permlane32_swap_b32 v{m}, v{t2}", "s_nop 1", f"v_max_f32 v{m}, v{m}, v{t2}",
      f"v_sub_f32 v{m}, 0x{f2u(-90.0):08x}, v{m}", f"v_lshrrev_b32 v{m}, 16, v{m}",
      f"s_mov_b64 exec, s[{LOW}:{LOW+1}]", f"v_or_b32 v{Q2B_+1}, 0x{NEGF:08x}, v{m}", "s_mov_b64 exec, -1",
      "s_waitcnt lgkmcnt(0)", "s_nop 0")
    e(mf1(SA[0], 0, Q1B_, MF), mf2(SA[0], 0, Q2B_), "s_nop 7", "s_nop 7")
    stamp(e, 4)
    for t in range(9):
        extra = order[:1]
        order = order[1:]
        b_iter(e, t, t > 0, t < 8, t < 7, ML if t == 7 else None, extra)
    assert not order
    stamp(e, 5)
    e("s_nop 1", pv(OA, 0, 1, SA[0]), "s_nop 7", "s_nop 7")
    e("s_mov_b32 s56, s8", "s_mov_b32 s57, s9", f"s_mov_b32 s58, {HB}", "s_mov_b32 s59, 0x00020000",
      "s_mov_b32 s48, 0", "s_sub_u32 s51, s18, 8", "s_max_i32 s49, s51, 0", "s_mov_b32 s50, s18",
      "s_mov_b32 s52, s18")
    check(e, f"{P}_SLOWB", f"{P}_DONEB")
    normalize(e, OBS)
    stamp(e, 6)
    e("s_waitcnt vmcnt(0)")
    stamp(e, 7)
    e(f"buffer_store_dwordx4 {vr(OBS,4)}, v{ADB}, s[12:15], 0 offen",
      f"s_mov_b64 exec, s[{LOW}:{LOW+1}]", f"buffer_store_dword v{OBS+4}, v{ADB}, s[12:15], 0 offen offset:32",
      "s_mov_b64 exec, -1")
    e("s_barrier")
    stamp(e, 8)
    e("s_lshl_b32 s24, s21, 10", f"v_add_u32 v{AK1}, s24, v{L16}", "s_lshl_b32 s24, s21, 8",
      f"v_add_u32 v{AK2}, s24, v{AK2L}", "s_mul_i32 s24, s21, 1152", f"v_add_u32 v{AV}, s24, v{AVL}")
    e(*rdK(0, 0), *rdK(1, 2), *rdV(0, 0))
    for R in (SA[1], SB_[1], OA, OB):
        e(f"v_mfma_f32_32x32x8bf16_1k {vr(R,16)}, {vr(ZZ,2)}, {vr(ZZ,2)}, 0")
    e("s_waitcnt lgkmcnt(0)")
    e(mf1(SA[0], 0, Q1A[0], None), mf1(SB_[0], 0, Q1A[1], None), mf2(SA[0], 0, Q2A[0]), mf2(SB_[0], 0, Q2A[1]),
      "s_mov_b32 s47, 0", "s_nop 3")
    e(f"s_add_u32 s53, s20, {4*8192}")
    e(*dma(4, (20, LK2 + 8192), 20, K2O + 8192))
    e("s_mov_b32 m0, s53", f"s_add_u32 s3, s53, {K1O}", f"buffer_load_dwordx4 v{L16}, s[4:7], s3 offen lds",
      f"s_add_u32 m0, s53, {LV + 8192}", f"s_add_u32 s3, s53, {VO + 8192}",
      f"buffer_load_dwordx4 v{L16}, s[4:7], s3 offen lds", "s_add_u32 s53, s53, 8192")
    stamp(e, 9)
    if "prio" in EXP:
        e("s_cmp_lt_u32 s19, 4", f"s_cbranch_scc1 {P}_NOPRIO", "s_setprio 1")
        e.lab(f"{P}_NOPRIO")
    rnd = ["s_mov_b32 m0, s53", f"s_add_u32 s3, s53, {K1O}", f"buffer_load_dwordx4 v{L16}, s[4:7], s3 offen lds",
           f"s_add_u32 m0, s53, {LV + 8192}", f"s_add_u32 s3, s53, {VO + 8192}",
           f"buffer_load_dwordx4 v{L16}, s[4:7], s3 offen lds", "s_add_u32 s53, s53, 8192"]
    e.lab(f"{P}_ALOOP")
    e("s_cmp_lt_u32 s47, 3", f"s_cbranch_scc0 {P}_NODMA", *rnd, f"s_branch {P}_NOBAR")
    e.lab(f"{P}_NODMA")
    e("s_cmp_eq_u32 s47, 3", f"s_cbranch_scc0 {P}_NOBAR", "s_waitcnt vmcnt(0)", "s_barrier")
    e.lab(f"{P}_NOBAR")
    for s in range(4):
        a_step(e, s)
    e(f"v_add_u32 v{AK1}, 8192, v{AK1}", f"v_add_u32 v{AK2}, 2048, v{AK2}", f"v_add_u32 v{AV}, 9216, v{AV}",
      "s_add_u32 s47, s47, 1", "s_cmp_lt_u32 s47, 8", f"s_cbranch_scc1 {P}_ALOOP")
    stamp(e, 10)
    e(pv(OA, 1, 1, SA[1]), pv(OB, 1, 1, SB_[1]), "s_setprio 0")
    e("s_mul_i32 s24, s19, 3072", f"v_add_u32 v{T0+5}, s24, v{L16}", "s_xor_b32 s25, s19, 4",
      "s_mul_i32 s25, s25, 3072", f"v_add_u32 v{T0+6}, s25, v{L16}", "s_waitcnt lgkmcnt(0)", "s_nop 7", "s_nop 3",
      "s_cmp_eq_u32 s21, 0", f"s_cbranch_scc0 {P}_XB")
    for j in range(3):
        e(f"ds_write_b128 v{T0+5}, {vr(OB+4*j,4)} offset:{1024*j}")
    e(f"s_branch {P}_XJ")
    e.lab(f"{P}_XB")
    for j in range(3):
        e(f"ds_write_b128 v{T0+5}, {vr(OA+4*j,4)} offset:{1024*j}")
    e("s_nop 2")
    for r in range(12):
        e(f"v_mov_b32 v{OA+r}, v{OB+r}")
    for r in range(4):
        e(f"v_mov_b32 v{Q1A[0]+r}, v{Q1A[1]+r}")
    e(f"v_mov_b32 v{Q2A[0]}, v{Q2A[1]}")
    e.lab(f"{P}_XJ")
    e("s_waitcnt lgkmcnt(0)", "s_barrier")
    for j in range(3):
        e(f"ds_read_b128 {vr(OB+4*j,4)}, v{T0+6} offset:{1024*j}")
    e("s_mov_b32 s56, s4", "s_mov_b32 s57, s5", f"s_mov_b32 s58, {HB}", "s_mov_b32 s59, 0x00020000",
      "s_mov_b32 s48, 1", "s_mov_b32 s49, 0", "s_mov_b32 s50, 63", "s_mov_b32 s51, -1", "s_mov_b32 s52, -1")
    e("s_waitcnt lgkmcnt(0)")
    for r in range(11):
        e(f"v_add_f32 v{OA+r}, v{OA+r}, v{OB+r}")
    check(e, f"{P}_SLOWA", f"{P}_DONEA")
    normalize(e, OBS)
    e(f"buffer_store_dwordx4 {vr(OBS,4)}, v{ADA}, s[12:15], 0 offen",
      f"s_mov_b64 exec, s[{LOW}:{LOW+1}]", f"buffer_store_dword v{OBS+4}, v{ADA}, s[12:15], 0 offen offset:32")
    if PROF:
        e("s_mov_b64 exec, -1")
        stamp(e, 11)
        e("s_waitcnt vmcnt(0)")
        stamp(e, 12)
        stamp_dump(e, 1, 16, P)
    e.lab(f"{P}_END")
    e("s_endpgm")
    e.lab(f"{P}_SLOWB")
    e(f"v_and_b32 v{Q2B_+1}, 0xffff0000, v{Q2B_+1}", f"s_branch {P}_SLOW")
    e.lab(f"{P}_SLOWA")
    for r in range(4):
        e(f"v_mov_b32 v{Q1B_+r}, v{Q1A[0]+r}")
    e(f"v_mov_b32 v{Q2B_}, v{Q2A[0]}", f"v_mov_b32 v{Q2B_+1}, 0")
    slow_path(e, P)
    return dict(name="attn_kernel", vgpr=212, grid=256, lds=163840)
```

```python
from gen import *

SB, NB = 28800, int(os.environ.get("NB3", "4"))


def gen_k3(e):
    P = "K3"
    e.lab("proj_kernel")
    e("s_cmp_ge_u32 s2, 192", f"s_cbranch_scc1 {P}_END")
    stamp(e, 0)
    e("s_load_dwordx2 s[24:25], s[0:1], 16", "s_load_dwordx2 s[26:27], s[0:1], 40",
      "s_load_dwordx2 s[28:29], s[0:1], 48", "s_load_dwordx2 s[32:33], s[0:1], 64")
    e("v_lshrrev_b32 v1, 6, v0", "v_and_b32 v2, 63, v0",
      "s_and_b32 s16, s2, 1", "s_and_b32 s3, s2, 7", "v_readfirstlane_b32 s19, v1",
      "s_lshr_b32 s3, s3, 1", "s_lshl_b32 s3, s3, 2",
      "s_lshr_b32 s20, s2, 3", "s_and_b32 s17, s20, 3", "s_add_u32 s17, s17, s3", "s_lshr_b32 s18, s20, 2")
    e("s_waitcnt lgkmcnt(0)")
    e("s_mul_i32 s3, s16, 2359296", f"s_add_u32 s3, s3, {OO}", "s_add_u32 s34, s32, s3", "s_addc_u32 s35, s33, 0")
    srd(e, 4, 34, 35, 2359296)
    e("s_cmp_eq_u32 s16, 0", "s_cselect_b32 s36, s24, s26", "s_cselect_b32 s37, s25, s27")
    srd(e, 8, 36, 37, 663552)
    g = Gemm(P, NB, SB, 3, 768, 6208, [16, 32], [48, 60], 72)
    e("s_cmp_ge_u32 s19, 4", f"s_cbranch_scc1 {P}_LOAD")
    srd(e, 12, 28, 29, 4718592)
    e("s_and_b32 s20, s19, 1", "s_lshr_b32 s21, s19, 1")
    e("v_and_b32 v3, 15, v2", "v_lshrrev_b32 v4, 4, v2", "v_and_b32 v5, 7, v2", "v_xor_b32 v5, v5, v4",
      "v_lshlrev_b32 v5, 4, v5", "s_lshl_b32 s3, s20, 6", "v_add_u32 v6, s3, v3",
      "v_lshlrev_b32 v8, 7, v6", "v_add_u32 v8, v8, v5", "v_xor_b32 v9, 64, v8")
    e("v_and_b32 v5, 1, v4", "v_mul_u32_u24 v5, 3104, v5", "v_lshrrev_b32 v7, 1, v4", "v_mul_u32_u24 v7, 1536, v7",
      "v_add_u32 v5, v5, v7", "v_bfe_u32 v7, v2, 2, 2", "v_mul_u32_u24 v7, 192, v7", "v_add_u32 v5, v5, v7",
      "v_and_b32 v7, 3, v2", "v_lshl_add_u32 v5, v7, 3, v5",
      "s_mul_i32 s3, s21, 96", "s_add_u32 s3, s3, 16384", "v_add_u32 v10, s3, v5")
    e("v_and_b32 v5, 31, v2", "v_mul_u32_u24 v11, 2304, v5", "v_lshrrev_b32 v5, 5, v2", "v_lshl_add_u32 v11, v5, 4, v11",
      "s_lshl_b32 s22, s17, 1", "s_add_u32 s22, s22, s20", "s_mul_i32 s22, s22, 147456",
      "s_mul_i32 s3, s16, 1152", "s_add_u32 s22, s22, s3", "s_mul_i32 s3, s18, 192", "s_add_u32 s22, s22, s3",
      "s_mul_i32 s3, s21, 96", "s_add_u32 s22, s22, s3")
    g.compute(e, [8, 9], 10)
    stamp(e, 11)
    e("s_nop 7")
    for p in range(2):
        for T in range(3):
            a = g.acc + 4 * (4 * T + 2 * p)
            b = a + 4
            e(f"v_cvt_pk_bf16_f32 v{a}, v{a}, v{a+1}", f"v_cvt_pk_bf16_f32 v{a+1}, v{a+2}, v{a+3}",
              f"v_cvt_pk_bf16_f32 v{a+2}, v{b}, v{b+1}", f"v_cvt_pk_bf16_f32 v{a+3}, v{b+2}, v{b+3}",
              f"s_add_u32 s3, s22, {73728*p + 32*T}", "s_nop 0",
              f"v_permlane16_swap_b32 v{a}, v{a+2}", f"v_permlane16_swap_b32 v{a+1}, v{a+3}",
              f"buffer_store_dwordx4 {vr(a,4)}, v11, s[12:15], s3 offen")
    e(f"s_branch {P}_FIN")
    e.lab(f"{P}_LOAD")
    e("s_sub_u32 s20, s19, 4")
    e("v_lshrrev_b32 v3, 3, v2", "v_and_b32 v4, 7, v2", "v_xor_b32 v4, v4, v3", "v_lshlrev_b32 v4, 4, v4",
      "s_lshl_b32 s3, s20, 5", "v_add_u32 v3, s3, v3", "v_mul_u32_u24 v8, 1152, v3", "v_add_u32 v8, v8, v4")
    e("s_mul_i32 s40, s17, 147456", "s_lshl_b32 s41, s20, 12")
    e("s_add_u32 m0, s41, 0", "s_nop 0", "buffer_load_dwordx4 v8, s[4:7], s40 offen lds")
    for k in range(3):
        e(f"v_add_u32 v3, {64*k}, v2", "v_mul_u32_u24 v4, 5462, v3", "v_lshrrev_b32 v4, 16, v4",
          "v_mul_u32_u24 v5, 12, v4", "v_sub_u32 v5, v3, v5", "v_lshrrev_b32 v6, 3, v4", "v_and_b32 v4, 7, v4",
          "v_lshl_add_u32 v4, v6, 4, v4", "v_mul_u32_u24 v4, 1152, v4", f"v_lshl_add_u32 v{10+k}, v5, 4, v4")
    e("s_lshr_b32 s3, s20, 1", "s_lshl_b32 s3, s3, 5", "s_and_b32 s46, s20, 1", "s_lshl_b32 s46, s46, 3",
      "s_add_u32 s46, s46, s3", "s_mul_i32 s46, s46, 1152", "s_mul_i32 s3, s18, 192", "s_add_u32 s46, s46, s3",
      "s_mul_i32 s42, s20, 3104", "s_add_u32 s42, s42, 16384")
    first = [True]

    def issue(s):
        base = (s % NB) * SB
        for i in range(4):
            if first[0] and i == 0:
                first[0] = False
                continue
            e(f"s_add_u32 m0, s41, {base + 1024*i}", f"s_add_u32 s43, s40, {128*s + 9216*i}",
              "buffer_load_dwordx4 v8, s[4:7], s43 offen lds")
        for k in range(3):
            e(f"s_add_u32 m0, s42, {base + 1024*k}", f"s_add_u32 s43, s46, {73728*s}",
              f"buffer_load_dwordx4 v{10+k}, s[8:11], s43 offen lds")
    g.loader(e, issue, 7)
    e.lab(f"{P}_FIN")
    if PROF:
        stamp(e, 13)
        e("s_waitcnt vmcnt(0)")
        stamp(e, 14)
        stamp_dump(e, 2, 15, P)
    e.lab(f"{P}_END")
    e("s_endpgm")
    return dict(name="proj_kernel", vgpr=120, grid=192, lds=NB * SB)
```

```python
import sys, struct

HB = 229376
Q1O, Q2O, K1O, K2O, VO = 0, 65536, 73728, 139264, 155648
OO = 64 * HB
WS_BYTES = 268435456
CSCALE = 1.4426950408889634 / (18 ** 0.5)


def f2u(x):
    return struct.unpack("<I", struct.pack("<f", x))[0]


class E:
    def __init__(self):
        self.L = []

    def __call__(self, *ss):
        for s in ss:
            self.L.append("    " + s)

    def lab(self, n):
        self.L.append(n + ":")

    def text(self):
        return "\n".join(self.L) + "\n"


def vr(b, n=1):
    return f"v{b}" if n == 1 else f"v[{b}:{b+n-1}]"


def sr(b, n=1):
    return f"s{b}" if n == 1 else f"s[{b}:{b+n-1}]"


import os
PROF = int(os.environ.get("PROF", "0"))
_stamp = [0]


def stamp(e, idx):
    if PROF:
        if idx == 0:
            e("s_memrealtime s[60:61]", "s_waitcnt lgkmcnt(0)", "s_mov_b32 s94, s60")
        e("s_memtime s[60:61]", "s_waitcnt lgkmcnt(0)", f"s_mov_b32 s{64+idx}, s60")


def stamp_dump(e, kidx, n, pfx, wave_s=19):
    if not PROF:
        return
    e("s_memrealtime s[60:61]", "s_waitcnt lgkmcnt(0)", "s_mov_b32 s95, s60")
    e("s_mov_b64 exec, 1", "s_load_dwordx2 s[52:53], s[0:1], 64", "s_waitcnt lgkmcnt(0)",
      f"s_add_u32 s52, s52, {64*1024*1024 + kidx*256*8*128}", "s_addc_u32 s53, s53, 0",
      "s_mov_b32 s54, 0x100000", "s_mov_b32 s55, 0x00020000",
      "s_lshl_b32 s56, s2, 3", f"s_add_u32 s56, s56, s{wave_s}", "s_lshl_b32 s56, s56, 7")
    for i in list(range(n)) + [30, 31]:
        e(f"v_mov_b32 v250, s{64+i}", f"v_mov_b32 v251, {4*i}",
          "buffer_store_dword v250, v251, s[52:55], s56 offen", "s_nop 1")


def srd(e, d, lo, hi, size):
    e(f"s_mov_b32 s{d}, s{lo}", f"s_mov_b32 s{d+1}, s{hi}",
      f"s_mov_b32 s{d+2}, {size}", f"s_mov_b32 s{d+3}, 0x00020000")


class Gemm:
    def __init__(self, pfx, NB, stage, nct, whalf, wj, xset, wset, acc):
        self.pfx, self.NB, self.stage, self.nct = pfx, NB, stage, nct
        self.whalf, self.wj = whalf, wj
        self.xset, self.wset, self.acc = xset, wset, acc

    def reads(self, j, st, vX, vW):
        L = []
        for i in range(4):
            L.append(f"ds_read_b128 {vr(self.xset[st]+4*i,4)}, v{vX[j]} offset:{2048*i}")
        for T in range(self.nct):
            for h in range(2):
                L.append(f"ds_read_b64_tr_b16 {vr(self.wset[st]+4*T+2*h,2)}, v{vW} "
                         f"offset:{32*T + self.whalf*h + self.wj*j}")
        return L

    def mfmas(self, st, first):
        L = []
        for T in range(self.nct):
            for i in range(4):
                a = self.acc + 4 * (4 * T + i)
                c = "0" if first else vr(a, 4)
                L.append(f"v_mfma_f32_16x16x32_bf16 {vr(a,4)}, {vr(self.wset[st]+4*T,4)}, "
                         f"{vr(self.xset[st]+4*i,4)}, {c}")
        return L

    def compute(self, e, vX, vW):
        NB, SB = self.NB, self.stage
        stamp(e, 1)
        e("s_barrier")
        stamp(e, 2)
        e(*self.reads(0, 0, vX, vW))
        e("s_waitcnt lgkmcnt(0)")
        for s in range(9):
            for j in range(2):
                st = j
                M = self.mfmas(st, s == 0 and j == 0)
                if j == 0:
                    R = self.reads(1, 1, vX, vW)
                elif s < 8:
                    d = ((s + 1) % NB - s % NB) * SB
                    lit = f"0x{d & 0xffffffff:08x}"
                    R = [f"v_add_u32 v{vX[0]}, {lit}, v{vX[0]}", f"v_add_u32 v{vX[1]}, {lit}, v{vX[1]}",
                         f"v_add_u32 v{vW}, {lit}, v{vW}"] + self.reads(0, 0, vX, vW)
                else:
                    R = []
                k = 0
                for m in M:
                    e(m)
                    n = 1 if len(M) >= 2 * len(R) - 6 or True else 2
                    per = int(os.environ.get("PER3", "2"))
                    for _ in range(per):
                        if k < len(R):
                            e(R[k]); k += 1
                while k < len(R):
                    e(R[k]); k += 1
                if R:
                    e("s_waitcnt lgkmcnt(0)")
                if j == 0 and s < 8:
                    e("s_barrier")
                    stamp(e, 3 + s)

    def loader(self, e, issue, n):
        LA = min(int(os.environ.get("LA3", "2")), self.NB - 1)
        for s in range(LA):
            issue(s)
        stamp(e, 1)
        e(f"s_waitcnt vmcnt({(LA-1)*n})")
        stamp(e, 2)
        e("s_barrier")
        issue(LA)
        for s in range(8):
            issued = min(s + LA, 8)
            e(f"s_waitcnt vmcnt({max(issued-(s+1),0)*n})")
            stamp(e, 3 + s)
            e("s_barrier")
            if s + LA + 1 <= 8:
                issue(s + LA + 1)


def gen_k1(e):
    P = "K1"
    SB, NB = 45312, 3
    e.lab("qkv_kernel")
    e("s_cmp_ge_u32 s2, 256", f"s_cbranch_scc1 {P}_END")
    stamp(e, 0)
    e("s_load_dwordx4 s[24:27], s[0:1], 0", "s_load_dwordx4 s[28:31], s[0:1], 24",
      "s_load_dwordx2 s[32:33], s[0:1], 64")
    e("s_and_b32 s16, s2, 1",
      "s_lshr_b32 s3, s2, 1", "s_and_b32 s3, s3, 1", "s_lshl_b32 s3, s3, 3",
      "s_lshr_b32 s20, s2, 3", "s_and_b32 s17, s20, 7", "s_add_u32 s17, s17, s3",
      "s_lshr_b32 s3, s2, 2", "s_and_b32 s3, s3, 1", "s_lshl_b32 s3, s3, 2",
      "s_lshr_b32 s18, s20, 3", "s_add_u32 s18, s18, s3")
    e("v_lshrrev_b32 v1, 6, v0", "v_and_b32 v2, 63, v0", "s_nop 0", "v_readfirstlane_b32 s19, v1")
    e("s_waitcnt lgkmcnt(0)")
    e("s_cmp_eq_u32 s16, 0",
      "s_cselect_b32 s34, s24, s28", "s_cselect_b32 s35, s25, s29",
      "s_cselect_b32 s36, s26, s30", "s_cselect_b32 s37, s27, s31")
    srd(e, 4, 34, 35, 2359296)
    srd(e, 8, 36, 37, 1990656)
    e("s_lshl_b32 s3, s16, 5", "s_lshl_b32 s20, s18, 2", "s_add_u32 s3, s3, s20",
      f"s_mul_i32 s3, s3, {HB}", "s_add_u32 s38, s32, s3", "s_addc_u32 s39, s33, 0")
    srd(e, 12, 38, 39, 4 * HB)
    g = Gemm(P, NB, SB, 7, 1792, 14464, [16, 32], [48, 76], 104)
    e("s_cmp_ge_u32 s19, 4", f"s_cbranch_scc1 {P}_LOAD")
    e("s_and_b32 s20, s19, 1", "s_lshr_b32 s21, s19, 1")
    e("v_and_b32 v3, 15, v2", "v_lshrrev_b32 v4, 4, v2", "v_and_b32 v5, 7, v2", "v_xor_b32 v5, v5, v4",
      "v_lshlrev_b32 v5, 4, v5", "s_lshl_b32 s3, s20, 6", "v_add_u32 v6, s3, v3",
      "v_lshlrev_b32 v8, 7, v6", "v_add_u32 v8, v8, v5", "v_xor_b32 v9, 64, v8")
    e("v_bfe_u32 v5, v2, 2, 2", "v_lshlrev_b32 v7, 3, v4", "v_add_u32 v5, v5, v7",
      "v_mul_u32_u24 v5, 448, v5", "v_lshlrev_b32 v7, 5, v4", "v_add_u32 v5, v5, v7",
      "v_and_b32 v7, 3, v2", "v_lshlrev_b32 v7, 3, v7", "v_add_u32 v5, v5, v7",
      "s_mul_i32 s3, s21, 224", "s_add_u32 s3, s3, 16384", "v_add_u32 v10, s3, v5")
    e("v_mul_u32_u24 v11, 456, v6", "v_lshlrev_b32 v7, 3, v4", "v_add_u32 v11, v11, v7",
      "s_mul_i32 s3, s21, 224", "v_add_u32 v11, s3, v11")
    e(f"s_mov_b32 s22, 0x{f2u(CSCALE):08x}", "s_cmp_eq_u32 s21, 0", "s_cselect_b32 s22, s22, 1.0",
      "v_mov_b32 v12, 1.0", "v_mov_b32 v13, s22", "v_cmp_gt_u32 vcc, 32, v2", "s_nop 1",
      "v_cndmask_b32 v12, v12, v13, vcc")
    g.compute(e, [8, 9], 10)
    e("s_nop 7", "s_nop 1")
    for T in range(7):
        for i in range(4):
            a = g.acc + 4 * (4 * T + i)
            if T < 4:
                e(*[f"v_mul_f32 v{a+r}, s22, v{a+r}" for r in range(4)])
            elif T == 4:
                e(*[f"v_mul_f32 v{a+r}, v12, v{a+r}" for r in range(4)])
            e(f"v_cvt_pk_bf16_f32 v{a}, v{a}, v{a+1}", f"v_cvt_pk_bf16_f32 v{a+1}, v{a+2}, v{a+3}",
              f"ds_write_b64 v11, {vr(a,2)} offset:{7296*i + 32*T}")
    e("s_waitcnt lgkmcnt(0)", f"s_branch {P}_OUT")
    e.lab(f"{P}_LOAD")
    e("s_sub_u32 s20, s19, 4")
    e("v_lshrrev_b32 v3, 3, v2", "v_and_b32 v4, 7, v2", "v_xor_b32 v4, v4, v3", "v_lshlrev_b32 v4, 4, v4",
      "s_lshl_b32 s3, s20, 5", "v_add_u32 v3, s3, v3", "v_mul_u32_u24 v8, 1152, v3", "v_add_u32 v8, v8, v4")
    e("v_cmp_le_u32 vcc, 28, v2", "v_mov_b32 v3, 0", "v_mov_b32 v5, 1", "v_cndmask_b32 v3, v3, v5, vcc",
      "v_mul_u32_u24 v4, 28, v3", "v_sub_u32 v4, v2, v4",
      "v_mul_u32_u24 v5, 57, v4", "v_lshrrev_b32 v5, 9, v5",
      "v_mul_u32_u24 v6, 9, v5", "v_sub_u32 v6, v4, v6", "v_lshlrev_b32 v6, 4, v6",
      "v_mul_u32_u24 v5, 1152, v5", "v_add_u32 v6, v6, v5",
      "s_lshl_b32 s3, s20, 1", "v_add_u32 v3, s3, v3", "v_mul_u32_u24 v9, 3456, v3", "v_add_u32 v9, v9, v6",
      "s_mul_i32 s3, s18, 144", "v_add_u32 v9, s3, v9")
    e("s_mul_i32 s40, s17, 147456", "s_lshl_b32 s41, s20, 12", "s_mul_i32 s42, s20, 896",
      "s_add_u32 s42, s42, 16384", "s_mov_b32 s44, 0xF7FFFFFF", "s_mov_b32 s45, 0x007FFFFF")

    def issue(s):
        base = (s % NB) * SB
        for i in range(4):
            e(f"s_add_u32 m0, s41, {base + 1024*i}", f"s_add_u32 s43, s40, {128*s + 9216*i}",
              "buffer_load_dwordx4 v8, s[4:7], s43 offen lds")
        e("s_mov_b64 exec, s[44:45]")
        for q in range(8):
            e(f"s_add_u32 m0, s42, {base + 3616*q}", f"s_mov_b32 s43, {221184*s + 27648*q}",
              "buffer_load_dwordx4 v9, s[8:11], s43 offen lds")
        e("s_mov_b64 exec, -1")
    g.loader(e, issue, 12)
    e.lab(f"{P}_OUT")
    stamp(e, 11)
    e("s_barrier")
    stamp(e, 12)
    e("s_lshr_b32 s20, s19, 2", "s_and_b32 s21, s19, 3",
      "v_and_b32 v3, 31, v2", "v_lshrrev_b32 v4, 5, v2", "v_mul_u32_u24 v5, 456, v3",
      "v_lshlrev_b32 v4, 4, v4", "v_add_u32 v5, v5, v4",
      "s_mul_i32 s3, s20, 144", "s_mul_i32 s22, s21, 36", "s_add_u32 s22, s22, s3",
      "v_add_u32 v5, s22, v5")
    for tt in range(4):
        e(f"ds_read_b128 {vr(16+4*tt,4)}, v5 offset:{32*456*tt}")
    e("v_mul_u32_u24 v6, 456, v2", "s_add_u32 s3, s22, 32", "v_add_u32 v6, s3, v6",
      "ds_read_b32 v32, v6", f"ds_read_b32 v34, v6 offset:{64*456}")
    e("v_lshrrev_b32 v7, 4, v2", "v_bfe_u32 v8, v2, 2, 2", "v_lshlrev_b32 v9, 3, v7", "v_add_u32 v8, v8, v9",
      "v_mul_u32_u24 v8, 456, v8", "v_and_b32 v9, 3, v2", "v_lshlrev_b32 v9, 3, v9", "v_add_u32 v8, v8, v9",
      "v_add_u32 v8, 288, v8")
    for k in range(3):
        e(f"s_add_u32 s23, s19, {8*k}", "s_min_u32 s23, s23, 19",
          "s_mul_i32 s24, s23, 52", "s_lshr_b32 s24, s24, 8",
          "s_mul_i32 s25, s24, 5", "s_sub_u32 s25, s23, s25",
          f"s_mov_b32 s{46+2*k}, s24", f"s_mov_b32 s{47+2*k}, s25",
          f"s_mul_i32 s26, s24, {32*456}", "s_lshl_b32 s27, s25, 5", "s_add_u32 s26, s26, s27",
          "v_add_u32 v9, s26, v8",
          f"ds_read_b64_tr_b16 {vr(40+4*k,2)}, v9", f"ds_read_b64_tr_b16 {vr(42+4*k,2)}, v9 offset:{4*456}")
    e(f"s_mul_i32 s22, s21, {HB}", f"s_mul_i32 s3, s20, {K1O}", "s_add_u32 s23, s22, s3",
      "s_lshl_b32 s3, s17, 12", "s_add_u32 s23, s23, s3", "v_lshlrev_b32 v10, 4, v2")
    e("s_waitcnt lgkmcnt(8)")
    for tt in range(4):
        e(f"s_add_u32 s3, s23, {1024*tt}", f"buffer_store_dwordx4 {vr(16+4*tt,4)}, v10, s[12:15], s3 offen")
    e("s_waitcnt lgkmcnt(6)")
    e("s_cmp_eq_u32 s20, 0", f"s_cbranch_scc0 {P}_K2")
    e("s_lshl_b32 s3, s17, 9", "s_add_u32 s3, s3, s22", f"s_add_u32 s3, s3, {Q2O}",
      "v_lshlrev_b32 v11, 2, v2",
      "buffer_store_dword v32, v11, s[12:15], s3 offen",
      "buffer_store_dword v34, v11, s[12:15], s3 offen offset:256",
      f"s_branch {P}_V")
    e.lab(f"{P}_K2")
    e("s_lshl_b32 s3, s17, 10", "s_add_u32 s3, s3, s22", f"s_add_u32 s3, s3, {K2O}",
      "v_lshlrev_b32 v11, 3, v2", "v_mov_b32 v33, 0x00003F80", "v_mov_b32 v35, 0x00003F80",
      "buffer_store_dwordx2 v[32:33], v11, s[12:15], s3 offen",
      "buffer_store_dwordx2 v[34:35], v11, s[12:15], s3 offen offset:512")
    e.lab(f"{P}_V")
    e("s_waitcnt lgkmcnt(0)")
    for k in range(3):
        e(f"s_lshl_b32 s3, s{47+2*k}, 4", "v_and_b32 v3, 15, v2", "v_add_u32 v3, s3, v3",
          "v_mul_u32_u24 v4, 57, v3", "v_lshrrev_b32 v4, 10, v4",
          "v_mul_u32_u24 v5, 18, v4", "v_sub_u32 v5, v3, v5", "v_lshlrev_b32 v5, 4, v5",
          f"s_mov_b32 s3, {HB}", "v_mul_lo_u32 v4, v4, s3", "v_add_u32 v5, v5, v4",
          "v_lshrrev_b32 v6, 5, v2", "v_mul_u32_u24 v6, 576, v6", "v_add_u32 v5, v5, v6",
          "v_bfe_u32 v6, v2, 4, 1", "v_mul_u32_u24 v6, 288, v6", "v_add_u32 v5, v5, v6",
          f"s_lshl_b32 s3, s{46+2*k}, 1", "s_lshl_b32 s24, s17, 3", "s_add_u32 s3, s3, s24",
          "s_mul_i32 s3, s3, 576", f"s_add_u32 s3, s3, {VO}",
          "v_cmp_gt_u32 vcc, 72, v3")
        if k == 2:
            e("s_cmp_ge_u32 s19, 4", f"s_cbranch_scc1 {P}_FIN")
        e("s_and_saveexec_b64 s[26:27], vcc",
          f"buffer_store_dwordx4 {vr(40+4*k,4)}, v5, s[12:15], s3 offen",
          "s_mov_b64 exec, -1")
    e.lab(f"{P}_FIN")
    if PROF:
        stamp(e, 13)
        e("s_waitcnt vmcnt(0)")
        stamp(e, 14)
        stamp_dump(e, 0, 15, P)
    e.lab(f"{P}_END")
    e("s_endpgm")
    return dict(name="qkv_kernel", vgpr=216, grid=256, lds=NB * SB)


def kd(info):
    v = 256 if PROF else (info["vgpr"] + 3) // 4 * 4
    return f""".amdhsa_kernel {info['name']}
  .amdhsa_next_free_vgpr {v}
  .amdhsa_next_free_sgpr 96
  .amdhsa_accum_offset {v}
  .amdhsa_group_segment_fixed_size 0
  .amdhsa_kernarg_size 72
  .amdhsa_user_sgpr_count 2
  .amdhsa_user_sgpr_kernarg_segment_ptr 1
  .amdhsa_system_sgpr_workgroup_id_x 1
.end_amdhsa_kernel
"""


HEADER = open("concat_heads__mha_block__sliding_block__prompt.s.ref").read().split("; Override")[0]


def build(gens):
    infos, bodies = [], []
    for gfn in gens:
        e = E()
        infos.append(gfn(e))
        bodies.append(e.text())
    out = HEADER
    for i in infos:
        out += f"; @launch kernel={i['name']} grid=({i['grid']},1,1) block=(512,1,1) lds={i['lds']}\n"
    out += '.amdgcn_target "amdgcn-amd-amdhsa--gfx950"\n.text\n'
    for i, b in zip(infos, bodies):
        out += f".globl {i['name']}\n.p2align 8\n.type {i['name']},@function\n" + b
    out += '.section .rodata,"a"\n'
    for i in infos:
        out += ".p2align 6\n" + kd(i)
    return out, infos


if __name__ == "__main__":
    if os.environ.get("OLDK3", "0") == "1":
        from gen2 import gen_k3
    else:
        from k3 import gen_k3
    from k2 import gen_k2
    if os.environ.get("OLDK1", "0") != "1":
        from k1 import gen_k1
    txt, infos = build([gen_k1, gen_k2, gen_k3])
    path = sys.argv[1] if len(sys.argv) > 1 else "concat_heads__mha_block__sliding_block__prompt.s"
    open(path, "w").write(txt)
    print("wrote", path, len(txt), "bytes")
```

```python
from gen import *

EXP = os.environ.get("EXP", "")
LANE, L16, AK1, AK2, AV, IDX = 1, 2, 3, 4, 5, 6
T0 = 7
Q1A, Q1B_, Q2A, Q2B_ = [16, 20], 24, [28, 30], 32
K1B = [34, 38]
K2B = [42, 44]
AK2L, AVL = 46, 47
VB = [[48, 52], [56, 60]]
SA, SB_ = [64, 80], [96, 112]
OA, OB = 128, 144
MF, ML = 160, 176
OBS = 192
ADA, ADB = 197, 198
SK1, SK2 = 200, 204
G2, GV = 206, 207
ZZ = 208
LMSK = 155648
LK1, LV, LK2 = 0, 65536, 139264
VMASK, LOW = 40, 42
NEGF = 0xF1800000


def mf1(S, kb, Q, C):
    c = "0" if C is None else vr(C, 16)
    return f"v_mfma_f32_32x32x16_bf16 {vr(S,16)}, {vr(K1B[kb],4)}, {vr(Q,4)}, {c}"


def mf2(S, kb, Q):
    return f"v_mfma_f32_32x32x8bf16_1k {vr(S,16)}, {vr(K2B[kb],2)}, {vr(Q,2)}, {vr(S,16)}"


def pv(O, vb, half, S):
    return f"v_smfmac_f32_32x32x32_bf16 {vr(O,16)}, {vr(VB[vb][half],4)}, {vr(S+8*half,8)}, v{IDX}"


def rdK(kb, t):
    return [f"ds_read_b128 {vr(K1B[kb],4)}, v{AK1} offset:{1024*t}",
            f"ds_read_b64 {vr(K2B[kb],2)}, v{AK2} offset:{256*t}"]


def rdV(vb, t):
    return [f"s_mov_b64 exec, s[{VMASK}:{VMASK+1}]",
            f"ds_read_b128 {vr(VB[vb][0],4)}, v{AV} offset:{1152*t}",
            f"ds_read_b128 {vr(VB[vb][1],4)}, v{AV} offset:{1152*t+576}",
            "s_mov_b64 exec, -1"]


def b_iter(e, t, prev, nxt, nxt2, Cn, extra):
    p = t & 1
    S, N = SA[p], SA[p ^ 1]
    ex = lambda r: e(f"v_exp_f32 v{S+r}, v{S+r}")
    ex(0); ex(1)
    if prev:
        e(pv(OA, p ^ 1, 1, N))
    ex(2); ex(3)
    if extra:
        e(*extra[0])
    ex(4); ex(5)
    e("s_waitcnt lgkmcnt(0)")
    if nxt:
        e(mf1(N, p ^ 1, Q1B_, Cn))
    ex(6); ex(7)
    if len(extra) > 1:
        e(*extra[1])
    ex(8); ex(9)
    if nxt:
        e(mf2(N, p ^ 1, Q2B_))
        e(*(rdK(p, t + 2) if nxt2 else ["s_nop 0", "s_nop 0"]))
        e(*rdV(p ^ 1, t + 1))
    for r in (10, 11, 12, 13):
        ex(r)
    e(pv(OA, p, 0, S))
    ex(14); ex(15)


def a_step(e, s):
    p = s & 1
    n = p ^ 1
    M = [pv(OA, n, 1, SA[n]), mf1(SA[n], n, Q1A[0], None), mf2(SA[n], n, Q2A[0]), pv(OA, p, 0, SA[p]),
         pv(OB, n, 1, SB_[n]), mf1(SB_[n], n, Q1A[1], None), mf2(SB_[n], n, Q2A[1]), pv(OB, p, 0, SB_[p])]
    k = rdK(p, 2 * (s + 2))
    v = rdV(n, 2 * (s + 1))
    after = {4: ["s_waitcnt lgkmcnt(0)"], 7: [k[0]], 10: [k[1]], 18: v}
    regs = [SA[p] + r for r in range(16)] + [SB_[p] + r for r in range(16)]
    for i, r in enumerate(regs):
        if "noalt" not in EXP and i in (0, 16):
            e(f"s_setprio {1 if i == 0 else 0}")
        e(f"v_exp_f32 v{r}, v{r}")
        e(*after.get(i, []))
        if i % 4 == 1:
            e(M[i // 4])


def check(e, slow_label, done_label):
    a, b, t = T0, T0 + 1, T0 + 2
    e(f"v_mov_b32 v{a}, v{OA+10}", f"v_mov_b32 v{b}, v{OA+10}", f"v_mul_f32 v{t}, 0, v{OA}", "s_nop 0",
      f"v_permlane32_swap_b32 v{a}, v{b}")
    for r in range(1, 10):
        e(f"v_fmac_f32 v{t}, 0, v{OA+r}")
    e(f"v_add_f32 v{t}, v{a}, v{t}",
      f"s_mov_b32 s3, 0x{f2u(2.0**-100):08x}", f"v_cmp_le_f32 vcc, s3, v{t}",
      f"s_mov_b32 s3, 0x{f2u(2.0**115):08x}", f"v_cmp_ge_f32 s[44:45], s3, v{t}",
      f"v_rcp_f32 v{a}, v{a}", "s_nop 2", "s_and_b64 vcc, vcc, s[44:45]", "s_cmp_eq_u64 vcc, -1",
      f"s_cbranch_scc0 {slow_label}")
    e.lab(done_label)


def normalize(e, dst):
    a = T0
    for r in range(10):
        e(f"v_mul_f32 v{OA+r}, v{a}, v{OA+r}")
    for k in range(5):
        e(f"v_cvt_pk_bf16_f32 v{dst+k}, v{OA+2*k}, v{OA+2*k+1}")
    e("s_nop 0", f"v_permlane32_swap_b32 v{dst}, v{dst+2}", f"v_permlane32_swap_b32 v{dst+1}, v{dst+3}")


def slow_path(e, P):
    m, t2 = T0 + 3, T0 + 4
    S = SA[0]
    d = vr(S, 16)
    e.lab(f"{P}_SLOW")
    e(f"v_mov_b32 v{m}, 0xff7fffff")
    for r in range(16):
        e(f"v_mov_b32 v{OA+r}, 0")
    for ps in range(2):
        lab = f"{P}_SL{ps}"
        e("s_mov_b32 s46, s49")
        e.lab(lab)
        e("s_lshl_b32 s47, s46, 10", f"s_add_u32 s47, s47, {K1O}",
          f"buffer_load_dwordx4 {vr(K1B[0],4)}, v{L16}, s[56:59], s47 offen",
          "s_lshl_b32 s47, s46, 8", f"s_add_u32 s47, s47, {K2O}",
          f"buffer_load_dwordx2 {vr(K2B[0],2)}, v{G2}, s[56:59], s47 offen")
        if ps == 1:
            e("s_mul_i32 s47, s46, 1152", f"s_add_u32 s47, s47, {VO}",
              f"s_mov_b64 exec, s[{VMASK}:{VMASK+1}]",
              f"buffer_load_dwordx4 {vr(VB[0][0],4)}, v{GV}, s[56:59], s47 offen",
              f"buffer_load_dwordx4 {vr(VB[0][1],4)}, v{GV}, s[56:59], s47 offen offset:576",
              "s_mov_b64 exec, -1")
        e("s_waitcnt vmcnt(0)")
        e("s_cmp_eq_u32 s46, s51", f"s_cbranch_scc1 {lab}_F",
          "s_cmp_eq_u32 s46, s52", f"s_cbranch_scc1 {lab}_L",
          mf1(S, 0, Q1B_, None), f"s_branch {lab}_J")
        e.lab(f"{lab}_F")
        e(mf1(S, 0, Q1B_, MF), f"s_branch {lab}_J")
        e.lab(f"{lab}_L")
        e(mf1(S, 0, Q1B_, ML))
        e.lab(f"{lab}_J")
        e(mf2(S, 0, Q2B_), "s_nop 7", "s_nop 7")
        if ps == 0:
            for r in range(0, 16, 2):
                e(f"v_max3_f32 v{m}, v{S+r}, v{S+r+1}, v{m}")
        else:
            for r in range(16):
                e(f"v_sub_f32 v{S+r}, v{S+r}, v{m}")
            for r in range(16):
                e(f"v_exp_f32 v{S+r}, v{S+r}")
            e("s_nop 1", pv(OA, 0, 0, S), pv(OA, 0, 1, S), "s_nop 7", "s_nop 7")
        e("s_add_u32 s46, s46, 1", "s_cmp_le_u32 s46, s50", f"s_cbranch_scc1 {lab}")
        if ps == 0:
            e(f"v_mov_b32 v{t2}, v{m}", "s_nop 1", f"v_permlane32_swap_b32 v{m}, v{t2}", "s_nop 1",
              f"v_max_f32 v{m}, v{m}, v{t2}")
    a, b = T0, T0 + 1
    e(f"v_mov_b32 v{a}, v{OA+10}", f"v_mov_b32 v{b}, v{OA+10}", "s_nop 1",
      f"v_permlane32_swap_b32 v{a}, v{b}", "s_nop 1", f"v_rcp_f32 v{a}, v{a}", "s_nop 1")
    e("s_cmp_eq_u32 s48, 0", f"s_cbranch_scc1 {P}_DONEB", f"s_branch {P}_DONEA")


def dma(srdreg, lds, src_s, src_c):
    ls, lc = lds
    return [f"s_add_u32 m0, s{ls}, {lc}", f"s_add_u32 s3, s{src_s}, {src_c}",
            f"buffer_load_dwordx4 v{L16}, s[{srdreg}:{srdreg+3}], s3 offen lds"]


def gen_k2(e):
    P = "K2"
    e.lab("attn_kernel")
    e("s_cmp_ge_u32 s2, 256", f"s_cbranch_scc1 {P}_END")
    stamp(e, 0)
    e("s_setprio 3")
    e("s_load_dwordx2 s[32:33], s[0:1], 64", "s_load_dwordx2 s[36:37], s[0:1], 16", "s_load_dwordx2 s[38:39], s[0:1], 40")
    e(f"v_lshrrev_b32 v{T0}, 6, v0", f"v_and_b32 v{LANE}, 63, v0",
      "s_and_b32 s3, s2, 7", f"v_readfirstlane_b32 s19, v{T0}", "s_lshl_b32 s3, s3, 2",
      "s_lshr_b32 s16, s2, 3", "s_and_b32 s16, s16, 3", "s_add_u32 s16, s16, s3", "s_lshr_b32 s17, s2, 5",
      f"v_lshlrev_b32 v{L16}, 4, v{LANE}", f"s_mul_i32 s3, s16, {HB}",
      "s_add_u32 s23, s17, 7", "s_and_b32 s23, s23, 7", "s_lshl_b32 s20, s19, 10")
    ii, i4, hh = T0, T0 + 1, T0 + 2
    e("s_waitcnt lgkmcnt(0)")
    stamp(e, 13)
    e("s_add_u32 s34, s32, s3", "s_addc_u32 s35, s33, 0")
    e(f"s_add_u32 s8, s34, {32*HB}", "s_addc_u32 s9, s35, 0", f"s_mov_b32 s10, {HB}", "s_mov_b32 s11, 0x00020000")
    for slot, ch in ((7, 17), (6, 23)):
        e(f"s_lshl_b32 s26, s{ch}, 13", "s_add_u32 s26, s26, s20")
        e(*dma(8, (20, LK1 + slot * 8192), 26, K1O))
        e(f"s_mul_i32 s26, s{ch}, 9216", "s_add_u32 s27, s26, s20")
        e(*dma(8, (20, LV + slot * 9216), 27, VO))
        e(f"s_cmp_eq_u32 s19, {slot-6}", f"s_cbranch_scc0 {P}_BV{slot}")
        e(f"s_mov_b32 m0, {LV + slot*9216 + 8192}", f"s_add_u32 s3, s26, {VO + 8192}",
          f"buffer_load_dwordx4 v{L16}, s[8:11], s3 offen lds")
        e.lab(f"{P}_BV{slot}")
    stamp(e, 14)
    e("s_lshr_b32 s21, s19, 2", "s_and_b32 s22, s19, 3", "s_lshl_b32 s22, s22, 1", "s_add_u32 s22, s22, s21",
      "s_lshl_b32 s18, s17, 3", "s_add_u32 s18, s18, s22",
      f"v_and_b32 v{ii}, 31, v{LANE}", f"v_and_b32 v{i4}, 32, v{LANE}", f"v_lshlrev_b32 v{i4}, 26, v{i4}",
      f"v_lshl_or_b32 v{i4}, v{ii}, 2, v{i4}",
      "s_lshl_b32 s24, s18, 10", "s_lshl_b32 s25, s18, 7", f"s_add_u32 s25, s25, {Q2O}")
    e(f"buffer_load_dwordx4 {vr(Q1B_,4)}, v{L16}, s[8:11], s24 offen",
      f"buffer_load_dword v{Q2B_}, v{i4}, s[8:11], s25 offen")
    e("s_cmp_lt_u32 s19, 4", f"s_cbranch_scc1 {P}_BK2D")
    e("s_and_b32 s28, s19, 1", "s_lshl_b32 s28, s28, 10", "s_cmp_lt_u32 s19, 6",
      "s_cselect_b32 s29, s23, s17", "s_cselect_b32 s26, 0, 2048",
      f"s_add_u32 s26, s26, {LK2 + 6*2048}", "s_add_u32 s26, s26, s28", "s_lshl_b32 s29, s29, 11",
      "s_add_u32 s29, s29, s28", f"s_add_u32 s29, s29, {K2O}")
    e("s_cmp_lt_u32 s19, 6", "s_cselect_b32 s27, 1, 0", "s_cmp_eq_u32 s17, 0", "s_cselect_b32 s27, s27, 0",
      "s_cmp_eq_u32 s27, 1", f"s_cbranch_scc1 {P}_BK2F")
    e("s_mov_b32 m0, s26", "s_nop 0", f"buffer_load_dwordx4 v{L16}, s[8:11], s29 offen lds", f"s_branch {P}_BK2D")
    e.lab(f"{P}_BK2F")
    e(f"v_add_u32 v10, s26, v{L16}", "v_mov_b32 v12, 0", "v_mov_b32 v13, 0x3F803F80", "v_mov_b32 v14, 0",
      "v_mov_b32 v15, 0x3F803F80", "ds_write_b128 v10, v[12:15]")
    e.lab(f"{P}_BK2D")
    srd(e, 4, 34, 35, HB)
    stamp(e, 15)
    e("s_setprio 0")
    e(f"s_add_u32 s34, s32, {OO}", "s_addc_u32 s35, s33, 0")
    srd(e, 12, 34, 35, 2 * 2359296)
    e(f"s_mov_b32 s{VMASK}, 0x0003FFFF", f"s_mov_b32 s{VMASK+1}, 0x0003FFFF",
      f"s_mov_b32 s{LOW}, -1", f"s_mov_b32 s{LOW+1}, 0")
    e(f"v_lshrrev_b32 v{hh}, 5, v{LANE}", f"v_mov_b32 v{IDX}, 0xDDDDDDDD",
      f"v_mov_b32 v{ZZ}, 0", f"v_mov_b32 v{ZZ+1}, 0", f"v_mov_b32 v{Q2A[0]+1}, 0", f"v_mov_b32 v{Q2A[1]+1}, 0",
      f"v_mov_b32 v{Q2B_+1}, 0")
    e("s_lshr_b32 s24, s19, 1", "s_and_b32 s25, s19, 1", "s_lshl_b32 s26, s24, 3", "s_lshl_b32 s27, s25, 1",
      "s_add_u32 s26, s26, s27",
      f"v_lshlrev_b32 v{T0+3}, 2, v{hh}", f"v_sub_u32 v{T0+3}, v{ii}, v{T0+3}",
      f"v_mov_b32 v{T0+4}, 0x{NEGF:08x}",
      f"v_cmp_le_i32 vcc, s26, v{T0+3}", f"v_cmp_lt_i32 s[44:45], s26, v{T0+3}",
      "s_lshl_b32 s24, s24, 10", "s_lshl_b32 s25, s25, 3", "s_add_u32 s24, s24, s25", f"s_add_u32 s24, s24, {LMSK}",
      f"v_cndmask_b32 v12, v{T0+4}, v{ZZ}, vcc", f"v_cndmask_b32 v13, v{T0+4}, v{ZZ}, s[44:45]",
      f"v_cndmask_b32 v14, v{ZZ}, v{T0+4}, vcc", f"v_cndmask_b32 v15, v{ZZ}, v{T0+4}, s[44:45]",
      f"v_add_u32 v{T0+3}, s24, v{L16}",
      f"ds_write_b64 v{T0+3}, v[12:13]", f"ds_write_b64 v{T0+3}, v[14:15] offset:4096")
    e(f"v_mov_b32 v{T0+4}, 0x3F803F80", f"v_cmp_eq_u32 vcc, 18, v{ii}",
      f"v_lshlrev_b32 v{G2}, 3, v{ii}", f"v_add_u32 v{AK2L}, {LK2}, v{G2}",
      f"v_cndmask_b32 v{T0+3}, v{ZZ}, v{T0+4}, vcc",
      f"v_mfma_f32_32x32x8bf16_1k {vr(OA,16)}, {vr(ZZ,2)}, {vr(ZZ,2)}, 0")
    for r in range(16):
        e(f"v_mov_b32 v{VB[0][0]+r}, v{T0+3}")
    e(f"v_mul_u32_u24 v{GV}, 288, v{hh}", f"v_lshl_add_u32 v{GV}, v{ii}, 4, v{GV}", f"v_add_u32 v{AVL}, {LV}, v{GV}")
    e("s_add_u32 s24, s22, 48", "s_lshl_b32 s25, s24, 10", f"v_add_u32 v{AK1}, s25, v{L16}",
      "s_lshl_b32 s25, s24, 8", f"v_add_u32 v{AK2}, s25, v{AK2L}",
      "s_mul_i32 s25, s24, 1152", f"v_add_u32 v{AV}, s25, v{AVL}")
    e("s_lshl_b32 s24, s18, 5", f"v_add_u32 v{T0+6}, s24, v{ii}", f"v_mul_u32_u24 v{T0+6}, 1152, v{T0+6}",
      f"v_lshl_add_u32 v{T0+6}, v{hh}, 4, v{T0+6}",
      "s_mul_i32 s24, s16, 36", f"v_add_u32 v{ADA}, s24, v{T0+6}", f"v_add_u32 v{ADB}, 2359296, v{ADA}")
    e("s_cmp_eq_u32 s18, 0", "s_cselect_b32 s24, 8, 7", "s_lshl_b32 s25, s24, 10", f"v_add_u32 v{T0+6}, s25, v{AK1}",
      "s_lshl_b32 s25, s24, 8", f"v_add_u32 v{T0+7}, s25, v{AK2}", f"v_add_u32 v{T0+5}, {LMSK}, v{L16}")
    stamp(e, 1)
    e("s_waitcnt vmcnt(0) lgkmcnt(0)")
    stamp(e, 2)
    e("s_barrier")
    stamp(e, 3)
    e(f"ds_read_b128 {vr(SK1,4)}, v{T0+6}", f"ds_read_b64 {vr(SK2,2)}, v{T0+7}")
    e(*rdK(0, 0), *rdK(1, 1), *rdV(0, 0))
    for q in range(4):
        e(f"ds_read_b128 {vr(MF+4*q,4)}, v{T0+5} offset:{4096+1024*q}")
    rdML = [f"ds_read_b128 {vr(ML+4*q,4)}, v{T0+5} offset:{1024*q}" for q in range(4)]
    e("s_sub_u32 s26, s18, s21", "s_lshl_b32 s24, s26, 10", "s_lshl_b32 s25, s26, 7", f"s_add_u32 s25, s25, {Q2O}")
    e(f"buffer_load_dwordx4 {vr(Q1A[0],4)}, v{L16}, s[4:7], s24 offen",
      f"buffer_load_dwordx4 {vr(Q1A[1],4)}, v{L16}, s[4:7], s24 offen offset:1024",
      f"buffer_load_dword v{Q2A[0]}, v{i4}, s[4:7], s25 offen",
      f"buffer_load_dword v{Q2A[1]}, v{i4}, s[4:7], s25 offen offset:128")
    kd_ = lambda c: dma(4, (20, LK1 + 8192 * c), 20, K1O + 8192 * c)
    vd_ = lambda c: dma(4, (20, LV + 8192 * c), 20, VO + 8192 * c)
    order = [kd_(0), vd_(0), dma(4, (20, LK2), 20, K2O), kd_(1), vd_(1), vd_(2), kd_(2), vd_(3), kd_(3), vd_(4)]
    e("s_waitcnt lgkmcnt(10)")
    d = vr(SA[0], 16)
    e("s_cmp_eq_u32 s18, 0", f"s_cbranch_scc1 {P}_SMPM",
      f"v_mfma_f32_32x32x16_bf16 {d}, {vr(SK1,4)}, {vr(Q1B_,4)}, 0", *rdML, f"s_branch {P}_SMPJ")
    e.lab(f"{P}_SMPM")
    e(*rdML, "s_waitcnt lgkmcnt(0)")
    e(f"v_mfma_f32_32x32x16_bf16 {d}, {vr(SK1,4)}, {vr(Q1B_,4)}, {vr(ML,16)}")
    e.lab(f"{P}_SMPJ")
    e(f"v_mfma_f32_32x32x8bf16_1k {d}, {vr(SK2,2)}, {vr(Q2B_,2)}, {d}")
    e(*order[0])
    order = order[1:]
    e("s_nop 7", "s_nop 3")
    S = SA[0]
    m, t2 = T0 + 3, T0 + 4
    e(f"v_max3_f32 v{m}, v{S}, v{S+1}, v{S+2}")
    for r in range(3, 15, 2):
        e(f"v_max3_f32 v{m}, v{S+r}, v{S+r+1}, v{m}")
    e(f"v_max_f32 v{m}, v{S+15}, v{m}", f"v_mov_b32 v{t2}, v{m}", "s_nop 1",
      f"v_permlane32_swap_b32 v{m}, v{t2}", "s_nop 1", f"v_max_f32 v{m}, v{m}, v{t2}",
      f"v_sub_f32 v{m}, 0x{f2u(-90.0):08x}, v{m}", f"v_lshrrev_b32 v{m}, 16, v{m}",
      f"s_mov_b64 exec, s[{LOW}:{LOW+1}]", f"v_or_b32 v{Q2B_+1}, 0x{NEGF:08x}, v{m}", "s_mov_b64 exec, -1",
      "s_waitcnt lgkmcnt(0)", "s_nop 0")
    e(mf1(SA[0], 0, Q1B_, MF), mf2(SA[0], 0, Q2B_), "s_nop 7", "s_nop 7")
    stamp(e, 4)
    for t in range(9):
        extra = order[:1]
        order = order[1:]
        b_iter(e, t, t > 0, t < 8, t < 7, ML if t == 7 else None, extra)
    assert not order
    stamp(e, 5)
    e("s_nop 1", pv(OA, 0, 1, SA[0]), "s_nop 7", "s_nop 7")
    e("s_mov_b32 s56, s8", "s_mov_b32 s57, s9", f"s_mov_b32 s58, {HB}", "s_mov_b32 s59, 0x00020000",
      "s_mov_b32 s48, 0", "s_sub_u32 s51, s18, 8", "s_max_i32 s49, s51, 0", "s_mov_b32 s50, s18",
      "s_mov_b32 s52, s18")
    check(e, f"{P}_SLOWB", f"{P}_DONEB")
    normalize(e, OBS)
    stamp(e, 6)
    e("s_waitcnt vmcnt(0)")
    stamp(e, 7)
    e(f"buffer_store_dwordx4 {vr(OBS,4)}, v{ADB}, s[12:15], 0 offen",
      f"s_mov_b64 exec, s[{LOW}:{LOW+1}]", f"buffer_store_dword v{OBS+4}, v{ADB}, s[12:15], 0 offen offset:32",
      "s_mov_b64 exec, -1")
    e("s_barrier")
    stamp(e, 8)
    e("s_lshl_b32 s24, s21, 10", f"v_add_u32 v{AK1}, s24, v{L16}", "s_lshl_b32 s24, s21, 8",
      f"v_add_u32 v{AK2}, s24, v{AK2L}", "s_mul_i32 s24, s21, 1152", f"v_add_u32 v{AV}, s24, v{AVL}")
    e(*rdK(0, 0), *rdK(1, 2), *rdV(0, 0))
    for R in (SA[1], SB_[1], OA, OB):
        e(f"v_mfma_f32_32x32x8bf16_1k {vr(R,16)}, {vr(ZZ,2)}, {vr(ZZ,2)}, 0")
    e("s_waitcnt lgkmcnt(0)")
    e(mf1(SA[0], 0, Q1A[0], None), mf1(SB_[0], 0, Q1A[1], None), mf2(SA[0], 0, Q2A[0]), mf2(SB_[0], 0, Q2A[1]),
      "s_mov_b32 s47, 0", "s_nop 3")
    e(f"s_add_u32 s53, s20, {4*8192}")
    e(*dma(4, (20, LK2 + 8192), 20, K2O + 8192))
    e("s_mov_b32 m0, s53", f"s_add_u32 s3, s53, {K1O}", f"buffer_load_dwordx4 v{L16}, s[4:7], s3 offen lds",
      f"s_add_u32 m0, s53, {LV + 8192}", f"s_add_u32 s3, s53, {VO + 8192}",
      f"buffer_load_dwordx4 v{L16}, s[4:7], s3 offen lds", "s_add_u32 s53, s53, 8192")
    stamp(e, 9)
    if "prio" in EXP:
        e("s_cmp_lt_u32 s19, 4", f"s_cbranch_scc1 {P}_NOPRIO", "s_setprio 1")
        e.lab(f"{P}_NOPRIO")
    rnd = ["s_mov_b32 m0, s53", f"s_add_u32 s3, s53, {K1O}", f"buffer_load_dwordx4 v{L16}, s[4:7], s3 offen lds",
           f"s_add_u32 m0, s53, {LV + 8192}", f"s_add_u32 s3, s53, {VO + 8192}",
           f"buffer_load_dwordx4 v{L16}, s[4:7], s3 offen lds", "s_add_u32 s53, s53, 8192"]
    if "nowopf" not in EXP:
        e("s_cmp_eq_u32 s19, 0", f"s_cbranch_scc0 {P}_NOWO",
          "s_cmp_lt_u32 s2, 128", "s_cselect_b32 s36, s36, s38", "s_cselect_b32 s37, s37, s39",
          "s_mov_b32 s38, 663552", "s_mov_b32 s39, 0x00020000",
          "s_and_b32 s3, s2, 127", "s_mul_i32 s3, s3, 5184", f"v_lshlrev_b32 v{T0}, 6, v{LANE}",
          f"buffer_load_dword v210, v{T0}, s[36:39], s3 offen",
          f"buffer_load_dword v211, v{T0}, s[36:39], s3 offen offset:4032")
        e.lab(f"{P}_NOWO")
    e.lab(f"{P}_ALOOP")
    e("s_cmp_lt_u32 s47, 3", f"s_cbranch_scc0 {P}_NODMA", *rnd, f"s_branch {P}_NOBAR")
    e.lab(f"{P}_NODMA")
    e("s_cmp_eq_u32 s47, 3", f"s_cbranch_scc0 {P}_NOBAR", "s_waitcnt vmcnt(0)", "s_barrier")
    e.lab(f"{P}_NOBAR")
    for s in range(4):
        a_step(e, s)
    e(f"v_add_u32 v{AK1}, 8192, v{AK1}", f"v_add_u32 v{AK2}, 2048, v{AK2}", f"v_add_u32 v{AV}, 9216, v{AV}",
      "s_add_u32 s47, s47, 1", "s_cmp_lt_u32 s47, 8", f"s_cbranch_scc1 {P}_ALOOP")
    stamp(e, 10)
    e(pv(OA, 1, 1, SA[1]), pv(OB, 1, 1, SB_[1]), "s_setprio 0")
    e("s_mul_i32 s24, s19, 3072", f"v_add_u32 v{T0+5}, s24, v{L16}", "s_xor_b32 s25, s19, 4",
      "s_mul_i32 s25, s25, 3072", f"v_add_u32 v{T0+6}, s25, v{L16}", "s_waitcnt lgkmcnt(0)", "s_nop 7", "s_nop 3",
      "s_cmp_eq_u32 s21, 0", f"s_cbranch_scc0 {P}_XB")
    for j in range(3):
        e(f"ds_write_b128 v{T0+5}, {vr(OB+4*j,4)} offset:{1024*j}")
    e(f"s_branch {P}_XJ")
    e.lab(f"{P}_XB")
    for j in range(3):
        e(f"ds_write_b128 v{T0+5}, {vr(OA+4*j,4)} offset:{1024*j}")
    e("s_nop 2")
    for r in range(12):
        e(f"v_mov_b32 v{OA+r}, v{OB+r}")
    for r in range(4):
        e(f"v_mov_b32 v{Q1A[0]+r}, v{Q1A[1]+r}")
    e(f"v_mov_b32 v{Q2A[0]}, v{Q2A[1]}")
    e.lab(f"{P}_XJ")
    e("s_waitcnt lgkmcnt(0)", "s_barrier")
    for j in range(3):
        e(f"ds_read_b128 {vr(OB+4*j,4)}, v{T0+6} offset:{1024*j}")
    e("s_mov_b32 s56, s4", "s_mov_b32 s57, s5", f"s_mov_b32 s58, {HB}", "s_mov_b32 s59, 0x00020000",
      "s_mov_b32 s48, 1", "s_mov_b32 s49, 0", "s_mov_b32 s50, 63", "s_mov_b32 s51, -1", "s_mov_b32 s52, -1")
    e("s_waitcnt lgkmcnt(0)")
    for r in range(11):
        e(f"v_add_f32 v{OA+r}, v{OA+r}, v{OB+r}")
    check(e, f"{P}_SLOWA", f"{P}_DONEA")
    normalize(e, OBS)
    e(f"buffer_store_dwordx4 {vr(OBS,4)}, v{ADA}, s[12:15], 0 offen",
      f"s_mov_b64 exec, s[{LOW}:{LOW+1}]", f"buffer_store_dword v{OBS+4}, v{ADA}, s[12:15], 0 offen offset:32")
    if PROF:
        e("s_mov_b64 exec, -1")
        stamp(e, 11)
        e("s_waitcnt vmcnt(0)")
        stamp(e, 12)
        stamp_dump(e, 1, 16, P)
    e.lab(f"{P}_END")
    e("s_endpgm")
    e.lab(f"{P}_SLOWB")
    e(f"v_and_b32 v{Q2B_+1}, 0xffff0000, v{Q2B_+1}", f"s_branch {P}_SLOW")
    e.lab(f"{P}_SLOWA")
    for r in range(4):
        e(f"v_mov_b32 v{Q1B_+r}, v{Q1A[0]+r}")
    e(f"v_mov_b32 v{Q2B_}, v{Q2A[0]}", f"v_mov_b32 v{Q2B_+1}, 0")
    slow_path(e, P)
    return dict(name="attn_kernel", vgpr=212, grid=256, lds=163840)
```

```python
from gen import *

EXP = os.environ.get("EXP", "")
LANE, L16, AK1, AK2, AV, IDX = 1, 2, 3, 4, 5, 6
T0 = 7
Q1A, Q1B_, Q2A, Q2B_ = [16, 20], 24, [28, 30], 32
K1B = [34, 38]
K2B = [42, 44]
AK2L, AVL = 46, 47
VB = [[48, 52], [56, 60]]
SA, SB_ = [64, 80], [96, 112]
OA, OB = 128, 144
MF, ML = 160, 176
OBS = 192
ADA, ADB = 197, 198
SK1, SK2 = 200, 204
G2, GV = 206, 207
ZZ = 208
LMSK = 155648
LK1, LV, LK2 = 0, 65536, 139264
VMASK, LOW = 40, 42
NEGF = 0xF1800000


def mf1(S, kb, Q, C):
    c = "0" if C is None else vr(C, 16)
    return f"v_mfma_f32_32x32x16_bf16 {vr(S,16)}, {vr(K1B[kb],4)}, {vr(Q,4)}, {c}"


def mf2(S, kb, Q):
    return f"v_mfma_f32_32x32x8bf16_1k {vr(S,16)}, {vr(K2B[kb],2)}, {vr(Q,2)}, {vr(S,16)}"


def pv(O, vb, half, S):
    return f"v_smfmac_f32_32x32x32_bf16 {vr(O,16)}, {vr(VB[vb][half],4)}, {vr(S+8*half,8)}, v{IDX}"


def rdK(kb, t):
    return [f"ds_read_b128 {vr(K1B[kb],4)}, v{AK1} offset:{1024*t}",
            f"ds_read_b64 {vr(K2B[kb],2)}, v{AK2} offset:{256*t}"]


def rdV(vb, t):
    return [f"s_mov_b64 exec, s[{VMASK}:{VMASK+1}]",
            f"ds_read_b128 {vr(VB[vb][0],4)}, v{AV} offset:{1152*t}",
            f"ds_read_b128 {vr(VB[vb][1],4)}, v{AV} offset:{1152*t+576}",
            "s_mov_b64 exec, -1"]


def b_iter(e, t, prev, nxt, nxt2, Cn, extra):
    p = t & 1
    S, N = SA[p], SA[p ^ 1]
    ex = lambda r: e(f"v_exp_f32 v{S+r}, v{S+r}")
    ex(0); ex(1)
    if prev:
        e(pv(OA, p ^ 1, 1, N))
    ex(2); ex(3)
    if extra:
        e(*extra[0])
    ex(4); ex(5)
    e("s_waitcnt lgkmcnt(0)")
    if nxt:
        e(mf1(N, p ^ 1, Q1B_, Cn))
    ex(6); ex(7)
    if len(extra) > 1:
        e(*extra[1])
    ex(8); ex(9)
    if nxt:
        e(mf2(N, p ^ 1, Q2B_))
        e(*(rdK(p, t + 2) if nxt2 else ["s_nop 0", "s_nop 0"]))
        e(*rdV(p ^ 1, t + 1))
    for r in (10, 11, 12, 13):
        ex(r)
    e(pv(OA, p, 0, S))
    ex(14); ex(15)


def a_step(e, s):
    p = s & 1
    n = p ^ 1
    M = [pv(OA, n, 1, SA[n]), mf1(SA[n], n, Q1A[0], None), mf2(SA[n], n, Q2A[0]), pv(OA, p, 0, SA[p]),
         pv(OB, n, 1, SB_[n]), mf1(SB_[n], n, Q1A[1], None), mf2(SB_[n], n, Q2A[1]), pv(OB, p, 0, SB_[p])]
    k = rdK(p, 2 * (s + 2))
    v = rdV(n, 2 * (s + 1))
    after = {4: ["s_waitcnt lgkmcnt(0)"], 7: [k[0]], 10: [k[1]], 18: v}
    regs = [SA[p] + r for r in range(16)] + [SB_[p] + r for r in range(16)]
    for i, r in enumerate(regs):
        if "noalt" not in EXP and i in (0, 16):
            e(f"s_setprio {1 if i == 0 else 0}")
        e(f"v_exp_f32 v{r}, v{r}")
        e(*after.get(i, []))
        if i % 4 == 1:
            e(M[i // 4])


def check(e, slow_label, done_label):
    a, b, t = T0, T0 + 1, T0 + 2
    e(f"v_mov_b32 v{a}, v{OA+10}", f"v_mov_b32 v{b}, v{OA+10}", f"v_mul_f32 v{t}, 0, v{OA}", "s_nop 0",
      f"v_permlane32_swap_b32 v{a}, v{b}")
    for r in range(1, 10):
        e(f"v_fmac_f32 v{t}, 0, v{OA+r}")
    e(f"v_add_f32 v{t}, v{a}, v{t}",
      f"s_mov_b32 s3, 0x{f2u(2.0**-100):08x}", f"v_cmp_le_f32 vcc, s3, v{t}",
      f"s_mov_b32 s3, 0x{f2u(2.0**115):08x}", f"v_cmp_ge_f32 s[44:45], s3, v{t}",
      f"v_rcp_f32 v{a}, v{a}", "s_nop 2", "s_and_b64 vcc, vcc, s[44:45]", "s_cmp_eq_u64 vcc, -1",
      f"s_cbranch_scc0 {slow_label}")
    e.lab(done_label)


def normalize(e, dst):
    a = T0
    for r in range(10):
        e(f"v_mul_f32 v{OA+r}, v{a}, v{OA+r}")
    for k in range(5):
        e(f"v_cvt_pk_bf16_f32 v{dst+k}, v{OA+2*k}, v{OA+2*k+1}")
    e("s_nop 0", f"v_permlane32_swap_b32 v{dst}, v{dst+2}", f"v_permlane32_swap_b32 v{dst+1}, v{dst+3}")


def slow_path(e, P):
    m, t2 = T0 + 3, T0 + 4
    S = SA[0]
    d = vr(S, 16)
    e.lab(f"{P}_SLOW")
    e(f"v_mov_b32 v{m}, 0xff7fffff")
    for r in range(16):
        e(f"v_mov_b32 v{OA+r}, 0")
    for ps in range(2):
        lab = f"{P}_SL{ps}"
        e("s_mov_b32 s46, s49")
        e.lab(lab)
        e("s_lshl_b32 s47, s46, 10", f"s_add_u32 s47, s47, {K1O}",
          f"buffer_load_dwordx4 {vr(K1B[0],4)}, v{L16}, s[56:59], s47 offen",
          "s_lshl_b32 s47, s46, 8", f"s_add_u32 s47, s47, {K2O}",
          f"buffer_load_dwordx2 {vr(K2B[0],2)}, v{G2}, s[56:59], s47 offen")
        if ps == 1:
            e("s_mul_i32 s47, s46, 1152", f"s_add_u32 s47, s47, {VO}",
              f"s_mov_b64 exec, s[{VMASK}:{VMASK+1}]",
              f"buffer_load_dwordx4 {vr(VB[0][0],4)}, v{GV}, s[56:59], s47 offen",
              f"buffer_load_dwordx4 {vr(VB[0][1],4)}, v{GV}, s[56:59], s47 offen offset:576",
              "s_mov_b64 exec, -1")
        e("s_waitcnt vmcnt(0)")
        e("s_cmp_eq_u32 s46, s51", f"s_cbranch_scc1 {lab}_F",
          "s_cmp_eq_u32 s46, s52", f"s_cbranch_scc1 {lab}_L",
          mf1(S, 0, Q1B_, None), f"s_branch {lab}_J")
        e.lab(f"{lab}_F")
        e(mf1(S, 0, Q1B_, MF), f"s_branch {lab}_J")
        e.lab(f"{lab}_L")
        e(mf1(S, 0, Q1B_, ML))
        e.lab(f"{lab}_J")
        e(mf2(S, 0, Q2B_), "s_nop 7", "s_nop 7")
        if ps == 0:
            for r in range(0, 16, 2):
                e(f"v_max3_f32 v{m}, v{S+r}, v{S+r+1}, v{m}")
        else:
            for r in range(16):
                e(f"v_sub_f32 v{S+r}, v{S+r}, v{m}")
            for r in range(16):
                e(f"v_exp_f32 v{S+r}, v{S+r}")
            e("s_nop 1", pv(OA, 0, 0, S), pv(OA, 0, 1, S), "s_nop 7", "s_nop 7")
        e("s_add_u32 s46, s46, 1", "s_cmp_le_u32 s46, s50", f"s_cbranch_scc1 {lab}")
        if ps == 0:
            e(f"v_mov_b32 v{t2}, v{m}", "s_nop 1", f"v_permlane32_swap_b32 v{m}, v{t2}", "s_nop 1",
              f"v_max_f32 v{m}, v{m}, v{t2}")
    a, b = T0, T0 + 1
    e(f"v_mov_b32 v{a}, v{OA+10}", f"v_mov_b32 v{b}, v{OA+10}", "s_nop 1",
      f"v_permlane32_swap_b32 v{a}, v{b}", "s_nop 1", f"v_rcp_f32 v{a}, v{a}", "s_nop 1")
    e("s_cmp_eq_u32 s48, 0", f"s_cbranch_scc1 {P}_DONEB", f"s_branch {P}_DONEA")


def dma(srdreg, lds, src_s, src_c):
    ls, lc = lds
    return [f"s_add_u32 m0, s{ls}, {lc}", f"s_add_u32 s3, s{src_s}, {src_c}",
            f"buffer_load_dwordx4 v{L16}, s[{srdreg}:{srdreg+3}], s3 offen lds"]


def gen_k2(e):
    P = "K2"
    e.lab("attn_kernel")
    e("s_cmp_ge_u32 s2, 256", f"s_cbranch_scc1 {P}_END")
    stamp(e, 0)
    e("s_setprio 3")
    e("s_load_dwordx2 s[32:33], s[0:1], 64", "s_load_dwordx2 s[36:37], s[0:1], 16", "s_load_dwordx2 s[38:39], s[0:1], 40")
    e(f"v_lshrrev_b32 v{T0}, 6, v0", f"v_and_b32 v{LANE}, 63, v0",
      "s_and_b32 s3, s2, 7", f"v_readfirstlane_b32 s19, v{T0}", "s_lshl_b32 s3, s3, 2",
      "s_lshr_b32 s16, s2, 3", "s_and_b32 s16, s16, 3", "s_add_u32 s16, s16, s3", "s_lshr_b32 s17, s2, 5",
      f"v_lshlrev_b32 v{L16}, 4, v{LANE}", f"s_mul_i32 s3, s16, {HB}",
      "s_add_u32 s23, s17, 7", "s_and_b32 s23, s23, 7", "s_lshl_b32 s20, s19, 10")
    ii, i4, hh = T0, T0 + 1, T0 + 2
    e("s_waitcnt lgkmcnt(0)")
    stamp(e, 13)
    e("s_add_u32 s34, s32, s3", "s_addc_u32 s35, s33, 0")
    e(f"s_add_u32 s8, s34, {32*HB}", "s_addc_u32 s9, s35, 0", f"s_mov_b32 s10, {HB}", "s_mov_b32 s11, 0x00020000")
    for slot, ch in ((7, 17), (6, 23)):
        e(f"s_lshl_b32 s26, s{ch}, 13", "s_add_u32 s26, s26, s20")
        e(*dma(8, (20, LK1 + slot * 8192), 26, K1O))
        e(f"s_mul_i32 s26, s{ch}, 9216", "s_add_u32 s27, s26, s20")
        e(*dma(8, (20, LV + slot * 9216), 27, VO))
        e(f"s_cmp_eq_u32 s19, {slot-6}", f"s_cbranch_scc0 {P}_BV{slot}")
        e(f"s_mov_b32 m0, {LV + slot*9216 + 8192}", f"s_add_u32 s3, s26, {VO + 8192}",
          f"buffer_load_dwordx4 v{L16}, s[8:11], s3 offen lds")
        e.lab(f"{P}_BV{slot}")
    stamp(e, 14)
    e("s_lshr_b32 s21, s19, 2", "s_and_b32 s22, s19, 3", "s_lshl_b32 s22, s22, 1", "s_add_u32 s22, s22, s21",
      "s_lshl_b32 s18, s17, 3", "s_add_u32 s18, s18, s22",
      f"v_and_b32 v{ii}, 31, v{LANE}", f"v_and_b32 v{i4}, 32, v{LANE}", f"v_lshlrev_b32 v{i4}, 26, v{i4}",
      f"v_lshl_or_b32 v{i4}, v{ii}, 2, v{i4}",
      "s_lshl_b32 s24, s18, 10", "s_lshl_b32 s25, s18, 7", f"s_add_u32 s25, s25, {Q2O}")
    e(f"buffer_load_dwordx4 {vr(Q1B_,4)}, v{L16}, s[8:11], s24 offen",
      f"buffer_load_dword v{Q2B_}, v{i4}, s[8:11], s25 offen")
    e("s_cmp_lt_u32 s19, 4", f"s_cbranch_scc1 {P}_BK2D")
    e("s_and_b32 s28, s19, 1", "s_lshl_b32 s28, s28, 10", "s_cmp_lt_u32 s19, 6",
      "s_cselect_b32 s29, s23, s17", "s_cselect_b32 s26, 0, 2048",
      f"s_add_u32 s26, s26, {LK2 + 6*2048}", "s_add_u32 s26, s26, s28", "s_lshl_b32 s29, s29, 11",
      "s_add_u32 s29, s29, s28", f"s_add_u32 s29, s29, {K2O}")
    e("s_cmp_lt_u32 s19, 6", "s_cselect_b32 s27, 1, 0", "s_cmp_eq_u32 s17, 0", "s_cselect_b32 s27, s27, 0",
      "s_cmp_eq_u32 s27, 1", f"s_cbranch_scc1 {P}_BK2F")
    e("s_mov_b32 m0, s26", "s_nop 0", f"buffer_load_dwordx4 v{L16}, s[8:11], s29 offen lds", f"s_branch {P}_BK2D")
    e.lab(f"{P}_BK2F")
    e(f"v_add_u32 v10, s26, v{L16}", "v_mov_b32 v12, 0", "v_mov_b32 v13, 0x3F803F80", "v_mov_b32 v14, 0",
      "v_mov_b32 v15, 0x3F803F80", "ds_write_b128 v10, v[12:15]")
    e.lab(f"{P}_BK2D")
    srd(e, 4, 34, 35, HB)
    stamp(e, 15)
    e("s_setprio 0")
    e(f"s_add_u32 s34, s32, {OO}", "s_addc_u32 s35, s33, 0")
    srd(e, 12, 34, 35, 2 * 2359296)
    e(f"s_mov_b32 s{VMASK}, 0x0003FFFF", f"s_mov_b32 s{VMASK+1}, 0x0003FFFF",
      f"s_mov_b32 s{LOW}, -1", f"s_mov_b32 s{LOW+1}, 0")
    e(f"v_lshrrev_b32 v{hh}, 5, v{LANE}", f"v_mov_b32 v{IDX}, 0xDDDDDDDD",
      f"v_mov_b32 v{ZZ}, 0", f"v_mov_b32 v{ZZ+1}, 0", f"v_mov_b32 v{Q2A[0]+1}, 0", f"v_mov_b32 v{Q2A[1]+1}, 0",
      f"v_mov_b32 v{Q2B_+1}, 0")
    e("s_lshr_b32 s24, s19, 1", "s_and_b32 s25, s19, 1", "s_lshl_b32 s26, s24, 3", "s_lshl_b32 s27, s25, 1",
      "s_add_u32 s26, s26, s27",
      f"v_lshlrev_b32 v{T0+3}, 2, v{hh}", f"v_sub_u32 v{T0+3}, v{ii}, v{T0+3}",
      f"v_mov_b32 v{T0+4}, 0x{NEGF:08x}",
      f"v_cmp_le_i32 vcc, s26, v{T0+3}", f"v_cmp_lt_i32 s[44:45], s26, v{T0+3}",
      "s_lshl_b32 s24, s24, 10", "s_lshl_b32 s25, s25, 3", "s_add_u32 s24, s24, s25", f"s_add_u32 s24, s24, {LMSK}",
      f"v_cndmask_b32 v12, v{T0+4}, v{ZZ}, vcc", f"v_cndmask_b32 v13, v{T0+4}, v{ZZ}, s[44:45]",
      f"v_cndmask_b32 v14, v{ZZ}, v{T0+4}, vcc", f"v_cndmask_b32 v15, v{ZZ}, v{T0+4}, s[44:45]",
      f"v_add_u32 v{T0+3}, s24, v{L16}",
      f"ds_write_b64 v{T0+3}, v[12:13]", f"ds_write_b64 v{T0+3}, v[14:15] offset:4096")
    e(f"v_mov_b32 v{T0+4}, 0x3F803F80", f"v_cmp_eq_u32 vcc, 18, v{ii}",
      f"v_lshlrev_b32 v{G2}, 3, v{ii}", f"v_add_u32 v{AK2L}, {LK2}, v{G2}",
      f"v_cndmask_b32 v{T0+3}, v{ZZ}, v{T0+4}, vcc",
      f"v_mfma_f32_32x32x8bf16_1k {vr(OA,16)}, {vr(ZZ,2)}, {vr(ZZ,2)}, 0")
    for r in range(16):
        e(f"v_mov_b32 v{VB[0][0]+r}, v{T0+3}")
    e(f"v_mul_u32_u24 v{GV}, 288, v{hh}", f"v_lshl_add_u32 v{GV}, v{ii}, 4, v{GV}", f"v_add_u32 v{AVL}, {LV}, v{GV}")
    e("s_add_u32 s24, s22, 48", "s_lshl_b32 s25, s24, 10", f"v_add_u32 v{AK1}, s25, v{L16}",
      "s_lshl_b32 s25, s24, 8", f"v_add_u32 v{AK2}, s25, v{AK2L}",
      "s_mul_i32 s25, s24, 1152", f"v_add_u32 v{AV}, s25, v{AVL}")
    e("s_lshl_b32 s24, s18, 5", f"v_add_u32 v{T0+6}, s24, v{ii}", "s_lshl_b32 s24, s16, 16",
      f"v_lshlrev_b32 v{ADA}, 5, v{T0+6}", f"v_lshl_add_u32 v{ADA}, v{hh}, 4, v{ADA}", f"v_add_u32 v{ADA}, s24, v{ADA}",
      "s_lshl_b32 s24, s16, 13", "s_add_u32 s24, s24, 2097152",
      f"v_lshlrev_b32 v{ADB}, 2, v{T0+6}", f"v_add_u32 v{ADB}, s24, v{ADB}", "s_mov_b32 s54, 2359296")
    e("s_cmp_eq_u32 s18, 0", "s_cselect_b32 s24, 8, 7", "s_lshl_b32 s25, s24, 10", f"v_add_u32 v{T0+6}, s25, v{AK1}",
      "s_lshl_b32 s25, s24, 8", f"v_add_u32 v{T0+7}, s25, v{AK2}", f"v_add_u32 v{T0+5}, {LMSK}, v{L16}")
    stamp(e, 1)
    e("s_waitcnt vmcnt(0) lgkmcnt(0)")
    stamp(e, 2)
    e("s_barrier")
    stamp(e, 3)
    e(f"ds_read_b128 {vr(SK1,4)}, v{T0+6}", f"ds_read_b64 {vr(SK2,2)}, v{T0+7}")
    e(*rdK(0, 0), *rdK(1, 1), *rdV(0, 0))
    for q in range(4):
        e(f"ds_read_b128 {vr(MF+4*q,4)}, v{T0+5} offset:{4096+1024*q}")
    rdML = [f"ds_read_b128 {vr(ML+4*q,4)}, v{T0+5} offset:{1024*q}" for q in range(4)]
    e("s_sub_u32 s26, s18, s21", "s_lshl_b32 s24, s26, 10", "s_lshl_b32 s25, s26, 7", f"s_add_u32 s25, s25, {Q2O}")
    e(f"buffer_load_dwordx4 {vr(Q1A[0],4)}, v{L16}, s[4:7], s24 offen",
      f"buffer_load_dwordx4 {vr(Q1A[1],4)}, v{L16}, s[4:7], s24 offen offset:1024",
      f"buffer_load_dword v{Q2A[0]}, v{i4}, s[4:7], s25 offen",
      f"buffer_load_dword v{Q2A[1]}, v{i4}, s[4:7], s25 offen offset:128")
    kd_ = lambda c: dma(4, (20, LK1 + 8192 * c), 20, K1O + 8192 * c)
    vd_ = lambda c: dma(4, (20, LV + 8192 * c), 20, VO + 8192 * c)
    order = [kd_(0), vd_(0), dma(4, (20, LK2), 20, K2O), kd_(1), vd_(1), vd_(2), kd_(2), vd_(3), kd_(3), vd_(4)]
    e("s_waitcnt lgkmcnt(10)")
    d = vr(SA[0], 16)
    e("s_cmp_eq_u32 s18, 0", f"s_cbranch_scc1 {P}_SMPM",
      f"v_mfma_f32_32x32x16_bf16 {d}, {vr(SK1,4)}, {vr(Q1B_,4)}, 0", *rdML, f"s_branch {P}_SMPJ")
    e.lab(f"{P}_SMPM")
    e(*rdML, "s_waitcnt lgkmcnt(0)")
    e(f"v_mfma_f32_32x32x16_bf16 {d}, {vr(SK1,4)}, {vr(Q1B_,4)}, {vr(ML,16)}")
    e.lab(f"{P}_SMPJ")
    e(f"v_mfma_f32_32x32x8bf16_1k {d}, {vr(SK2,2)}, {vr(Q2B_,2)}, {d}")
    e(*order[0])
    order = order[1:]
    e("s_nop 7", "s_nop 3")
    S = SA[0]
    m, t2 = T0 + 3, T0 + 4
    e(f"v_max3_f32 v{m}, v{S}, v{S+1}, v{S+2}")
    for r in range(3, 15, 2):
        e(f"v_max3_f32 v{m}, v{S+r}, v{S+r+1}, v{m}")
    e(f"v_max_f32 v{m}, v{S+15}, v{m}", f"v_mov_b32 v{t2}, v{m}", "s_nop 1",
      f"v_permlane32_swap_b32 v{m}, v{t2}", "s_nop 1", f"v_max_f32 v{m}, v{m}, v{t2}",
      f"v_sub_f32 v{m}, 0x{f2u(-90.0):08x}, v{m}", f"v_lshrrev_b32 v{m}, 16, v{m}",
      f"s_mov_b64 exec, s[{LOW}:{LOW+1}]", f"v_or_b32 v{Q2B_+1}, 0x{NEGF:08x}, v{m}", "s_mov_b64 exec, -1",
      "s_waitcnt lgkmcnt(0)", "s_nop 0")
    e(mf1(SA[0], 0, Q1B_, MF), mf2(SA[0], 0, Q2B_), "s_nop 7", "s_nop 7")
    stamp(e, 4)
    for t in range(9):
        extra = order[:1]
        order = order[1:]
        b_iter(e, t, t > 0, t < 8, t < 7, ML if t == 7 else None, extra)
    assert not order
    stamp(e, 5)
    e("s_nop 1", pv(OA, 0, 1, SA[0]), "s_nop 7", "s_nop 7")
    e("s_mov_b32 s56, s8", "s_mov_b32 s57, s9", f"s_mov_b32 s58, {HB}", "s_mov_b32 s59, 0x00020000",
      "s_mov_b32 s48, 0", "s_sub_u32 s51, s18, 8", "s_max_i32 s49, s51, 0", "s_mov_b32 s50, s18",
      "s_mov_b32 s52, s18")
    check(e, f"{P}_SLOWB", f"{P}_DONEB")
    normalize(e, OBS)
    stamp(e, 6)
    e("s_waitcnt vmcnt(0)")
    stamp(e, 7)
    e(f"buffer_store_dwordx4 {vr(OBS,4)}, v{ADA}, s[12:15], s54 offen{SC(2)}",
      f"s_mov_b64 exec, s[{LOW}:{LOW+1}]", f"buffer_store_dword v{OBS+4}, v{ADB}, s[12:15], s54 offen",
      "s_mov_b64 exec, -1")
    e("s_barrier")
    stamp(e, 8)
    e("s_lshl_b32 s24, s21, 10", f"v_add_u32 v{AK1}, s24, v{L16}", "s_lshl_b32 s24, s21, 8",
      f"v_add_u32 v{AK2}, s24, v{AK2L}", "s_mul_i32 s24, s21, 1152", f"v_add_u32 v{AV}, s24, v{AVL}")
    e(*rdK(0, 0), *rdK(1, 2), *rdV(0, 0))
    for R in (SA[1], SB_[1], OA, OB):
        e(f"v_mfma_f32_32x32x8bf16_1k {vr(R,16)}, {vr(ZZ,2)}, {vr(ZZ,2)}, 0")
    e("s_waitcnt lgkmcnt(0)")
    e(mf1(SA[0], 0, Q1A[0], None), mf1(SB_[0], 0, Q1A[1], None), mf2(SA[0], 0, Q2A[0]), mf2(SB_[0], 0, Q2A[1]),
      "s_mov_b32 s47, 0", "s_nop 3")
    e(f"s_add_u32 s53, s20, {4*8192}")
    e(*dma(4, (20, LK2 + 8192), 20, K2O + 8192))
    e("s_mov_b32 m0, s53", f"s_add_u32 s3, s53, {K1O}", f"buffer_load_dwordx4 v{L16}, s[4:7], s3 offen lds",
      f"s_add_u32 m0, s53, {LV + 8192}", f"s_add_u32 s3, s53, {VO + 8192}",
      f"buffer_load_dwordx4 v{L16}, s[4:7], s3 offen lds", "s_add_u32 s53, s53, 8192")
    stamp(e, 9)
    if "prio" in EXP:
        e("s_cmp_lt_u32 s19, 4", f"s_cbranch_scc1 {P}_NOPRIO", "s_setprio 1")
        e.lab(f"{P}_NOPRIO")
    rnd = ["s_mov_b32 m0, s53", f"s_add_u32 s3, s53, {K1O}", f"buffer_load_dwordx4 v{L16}, s[4:7], s3 offen lds",
           f"s_add_u32 m0, s53, {LV + 8192}", f"s_add_u32 s3, s53, {VO + 8192}",
           f"buffer_load_dwordx4 v{L16}, s[4:7], s3 offen lds", "s_add_u32 s53, s53, 8192"]
    if "nowopf" not in EXP:
        e("s_cmp_eq_u32 s19, 0", f"s_cbranch_scc0 {P}_NOWO",
          "s_cmp_lt_u32 s2, 128", "s_cselect_b32 s36, s36, s38", "s_cselect_b32 s37, s37, s39",
          "s_mov_b32 s38, 663552", "s_mov_b32 s39, 0x00020000",
          "s_and_b32 s3, s2, 127", "s_mul_i32 s3, s3, 5184", f"v_lshlrev_b32 v{T0}, 6, v{LANE}",
          f"buffer_load_dword v210, v{T0}, s[36:39], s3 offen",
          f"buffer_load_dword v211, v{T0}, s[36:39], s3 offen offset:4032")
        e.lab(f"{P}_NOWO")
    e.lab(f"{P}_ALOOP")
    e("s_cmp_lt_u32 s47, 3", f"s_cbranch_scc0 {P}_NODMA", *rnd, f"s_branch {P}_NOBAR")
    e.lab(f"{P}_NODMA")
    e("s_cmp_eq_u32 s47, 3", f"s_cbranch_scc0 {P}_NOBAR", "s_waitcnt vmcnt(0)", "s_barrier")
    e.lab(f"{P}_NOBAR")
    for s in range(4):
        a_step(e, s)
    e(f"v_add_u32 v{AK1}, 8192, v{AK1}", f"v_add_u32 v{AK2}, 2048, v{AK2}", f"v_add_u32 v{AV}, 9216, v{AV}",
      "s_add_u32 s47, s47, 1", "s_cmp_lt_u32 s47, 8", f"s_cbranch_scc1 {P}_ALOOP")
    stamp(e, 10)
    e(pv(OA, 1, 1, SA[1]), pv(OB, 1, 1, SB_[1]), "s_setprio 0")
    e("s_mul_i32 s24, s19, 3072", f"v_add_u32 v{T0+5}, s24, v{L16}", "s_xor_b32 s25, s19, 4",
      "s_mul_i32 s25, s25, 3072", f"v_add_u32 v{T0+6}, s25, v{L16}", "s_waitcnt lgkmcnt(0)", "s_nop 7", "s_nop 3",
      "s_cmp_eq_u32 s21, 0", f"s_cbranch_scc0 {P}_XB")
    for j in range(3):
        e(f"ds_write_b128 v{T0+5}, {vr(OB+4*j,4)} offset:{1024*j}")
    e(f"s_branch {P}_XJ")
    e.lab(f"{P}_XB")
    for j in range(3):
        e(f"ds_write_b128 v{T0+5}, {vr(OA+4*j,4)} offset:{1024*j}")
    e("s_nop 2")
    for r in range(12):
        e(f"v_mov_b32 v{OA+r}, v{OB+r}")
    for r in range(4):
        e(f"v_mov_b32 v{Q1A[0]+r}, v{Q1A[1]+r}")
    e(f"v_mov_b32 v{Q2A[0]}, v{Q2A[1]}")
    e.lab(f"{P}_XJ")
    e("s_waitcnt lgkmcnt(0)", "s_barrier")
    for j in range(3):
        e(f"ds_read_b128 {vr(OB+4*j,4)}, v{T0+6} offset:{1024*j}")
    e("s_mov_b32 s56, s4", "s_mov_b32 s57, s5", f"s_mov_b32 s58, {HB}", "s_mov_b32 s59, 0x00020000",
      "s_mov_b32 s48, 1", "s_mov_b32 s49, 0", "s_mov_b32 s50, 63", "s_mov_b32 s51, -1", "s_mov_b32 s52, -1")
    e("s_waitcnt lgkmcnt(0)")
    for r in range(11):
        e(f"v_add_f32 v{OA+r}, v{OA+r}, v{OB+r}")
    check(e, f"{P}_SLOWA", f"{P}_DONEA")
    normalize(e, OBS)
    e(f"buffer_store_dwordx4 {vr(OBS,4)}, v{ADA}, s[12:15], 0 offen{SC(2)}",
      f"s_mov_b64 exec, s[{LOW}:{LOW+1}]", f"buffer_store_dword v{OBS+4}, v{ADB}, s[12:15], 0 offen")
    if PROF:
        e("s_mov_b64 exec, -1")
        stamp(e, 11)
        e("s_waitcnt vmcnt(0)")
        stamp(e, 12)
        stamp_dump(e, 1, 16, P)
    e.lab(f"{P}_END")
    e("s_endpgm")
    e.lab(f"{P}_SLOWB")
    e(f"v_and_b32 v{Q2B_+1}, 0xffff0000, v{Q2B_+1}", f"s_branch {P}_SLOW")
    e.lab(f"{P}_SLOWA")
    for r in range(4):
        e(f"v_mov_b32 v{Q1B_+r}, v{Q1A[0]+r}")
    e(f"v_mov_b32 v{Q2B_}, v{Q2A[0]}", f"v_mov_b32 v{Q2B_+1}, 0")
    slow_path(e, P)
    return dict(name="attn_kernel", vgpr=212, grid=256, lds=163840)
```

```python
from gen import *

LW = 16896
SB, NB = LW + 4 * 3104, int(os.environ.get("NB3", "4"))
LA = int(os.environ.get("LA3", "2"))
OT = 2097152
XS, WS, ACC = [16, 24], [32, 56], 80
VX, VW, VT = [8, 9], 10, 12


def reads(j, st, tail):
    X = []
    for i in range(2):
        if tail:
            X.append([f"ds_read_b32 v{XS[st]+4*i+q}, v{VT} offset:{8448*j + 1056*(q >> 1) + 512*(q & 1) + 64*i}"
                      for q in range(4)])
        else:
            X.append([f"ds_read_b128 {vr(XS[st]+4*i,4)}, v{VX[j]} offset:{2048*i}"])
    W = [[f"ds_read_b64_tr_b16 {vr(WS[st]+4*T+2*h,2)}, v{VW} offset:{32*T + 768*h + 6208*j}" for h in range(2)]
         for T in range(6)]
    L = X[0] + W[0] + X[1]
    for T in range(1, 6):
        L += W[T]
    return L


def mfmas(st, first):
    L = []
    for T in range(6):
        for i in range(2):
            a = ACC + 4 * (2 * T + i)
            L.append(f"v_mfma_f32_16x16x32_bf16 {vr(a,4)}, {vr(WS[st]+4*T,4)}, {vr(XS[st]+4*i,4)}, "
                     + ("0" if first else vr(a, 4)))
    return L


def compute(e):
    stamp(e, 1)
    e("s_barrier")
    stamp(e, 2)
    e(*reads(0, 0, False))
    e("s_waitcnt lgkmcnt(0)")
    for s in range(9):
        for j in range(2):
            M = mfmas(j, s == 0 and j == 0)
            if j == 0:
                R = reads(1, 1, s == 8)
            elif s < 8:
                d = ((s + 1) % NB - s % NB) * SB
                lit = f"0x{d & 0xffffffff:08x}"
                R = [f"v_add_u32 v{r}, {lit}, v{r}" for r in (VX[0], VW, VT)] + reads(0, 0, s == 7) \
                    + [f"v_add_u32 v{VX[1]}, {lit}, v{VX[1]}"]
            else:
                R = []
            k = 0
            for m in M:
                e(m)
                for _ in range(2):
                    if k < len(R):
                        e(R[k]); k += 1
            e(*R[k:])
            if R:
                e("s_waitcnt lgkmcnt(0)")
            if j == 0 and s < 8:
                e("s_barrier")
                stamp(e, 3 + s)


def loader(e, issue, n):
    for s in range(LA):
        issue(s)
    stamp(e, 1)
    e(f"s_waitcnt vmcnt({(LA-1)*n})")
    stamp(e, 2)
    e("s_barrier")
    issue(LA)
    for s in range(8):
        issued = min(s + LA, 8)
        e(f"s_waitcnt vmcnt({max(issued-(s+1),0)*n})")
        stamp(e, 3 + s)
        e("s_barrier")
        if s + LA + 1 <= 8:
            issue(s + LA + 1)


def gen_k3(e):
    P = "K3"
    e.lab("proj_kernel")
    e("s_cmp_ge_u32 s2, 192", f"s_cbranch_scc1 {P}_END")
    stamp(e, 0)
    e("s_load_dwordx2 s[24:25], s[0:1], 16", "s_load_dwordx2 s[26:27], s[0:1], 40",
      "s_load_dwordx2 s[28:29], s[0:1], 48", "s_load_dwordx2 s[32:33], s[0:1], 64")
    e("v_lshrrev_b32 v1, 6, v0", "v_and_b32 v2, 63, v0",
      "s_and_b32 s16, s2, 1", "s_and_b32 s3, s2, 7", "v_readfirstlane_b32 s19, v1",
      "s_lshr_b32 s3, s3, 1", "s_lshl_b32 s3, s3, 2",
      "s_lshr_b32 s20, s2, 3", "s_and_b32 s17, s20, 3", "s_add_u32 s17, s17, s3", "s_lshr_b32 s18, s20, 2")
    e("s_waitcnt lgkmcnt(0)")
    e("s_mul_i32 s3, s16, 2359296", f"s_add_u32 s3, s3, {OO}", "s_add_u32 s34, s32, s3", "s_addc_u32 s35, s33, 0")
    srd(e, 4, 34, 35, 2359296)
    e("s_cmp_eq_u32 s16, 0", "s_cselect_b32 s36, s24, s26", "s_cselect_b32 s37, s25, s27")
    srd(e, 8, 36, 37, 663552)
    e("s_cmp_ge_u32 s19, 4", f"s_cbranch_scc1 {P}_LOAD")
    srd(e, 12, 28, 29, 4718592)
    e("v_and_b32 v3, 15, v2", "v_lshrrev_b32 v4, 4, v2", "s_lshl_b32 s3, s19, 5", "v_add_u32 v6, s3, v3",
      "v_lshrrev_b32 v5, 3, v6", "v_lshlrev_b32 v5, 10, v5", "v_bfe_u32 v7, v2, 1, 2", "v_lshl_add_u32 v5, v7, 8, v5",
      "v_lshrrev_b32 v13, 1, v4", "v_xor_b32 v7, v7, v13", "v_lshl_add_u32 v5, v7, 6, v5",
      "v_and_b32 v7, 1, v2", "v_lshl_add_u32 v5, v7, 5, v5", "v_and_b32 v7, 1, v4",
      f"v_lshl_add_u32 v{VX[0]}, v7, 4, v5", f"v_xor_b32 v{VX[1]}, 128, v{VX[0]}")
    e("v_mul_u32_u24 v7, 2112, v4", f"v_lshl_add_u32 v{VT}, v6, 2, v7")
    e("v_and_b32 v5, 1, v4", "v_mul_u32_u24 v5, 3104, v5", "v_lshrrev_b32 v7, 1, v4", "v_mul_u32_u24 v7, 1536, v7",
      "v_add_u32 v5, v5, v7", "v_bfe_u32 v7, v2, 2, 2", "v_mul_u32_u24 v7, 192, v7", "v_add_u32 v5, v5, v7",
      "v_and_b32 v7, 3, v2", "v_lshl_add_u32 v5, v7, 3, v5", f"v_add_u32 v{VW}, {LW}, v5")
    e("v_mul_u32_u24 v11, 2304, v3", "v_lshl_add_u32 v11, v4, 4, v11",
      "s_lshl_b32 s22, s17, 2", "s_add_u32 s22, s22, s19", "s_mul_i32 s22, s22, 73728",
      "s_mul_i32 s3, s16, 1152", "s_add_u32 s22, s22, s3", "s_mul_i32 s3, s18, 192", "s_add_u32 s22, s22, s3")
    compute(e)
    stamp(e, 11)
    e("s_nop 7")
    for p in range(3):
        for i in range(2):
            a, b = ACC + 4 * (4 * p + i), ACC + 4 * (4 * p + 2 + i)
            e(f"v_cvt_pk_bf16_f32 v{a}, v{a}, v{a+1}", f"v_cvt_pk_bf16_f32 v{a+1}, v{a+2}, v{a+3}",
              f"v_cvt_pk_bf16_f32 v{a+2}, v{b}, v{b+1}", f"v_cvt_pk_bf16_f32 v{a+3}, v{b+2}, v{b+3}",
              f"s_add_u32 s3, s22, {36864*i + 64*p}", "s_nop 0",
              f"v_permlane32_swap_b32 v{a}, v{a+2}", f"v_permlane32_swap_b32 v{a+1}, v{a+3}", "s_nop 0",
              f"v_permlane16_swap_b32 v{a}, v{a+2}", f"v_permlane16_swap_b32 v{a+1}, v{a+3}",
              f"buffer_store_dwordx4 {vr(a,4)}, v11, s[12:15], s3 offen{SC(3)}")
    e(f"s_branch {P}_FIN")
    e.lab(f"{P}_LOAD")
    e("s_sub_u32 s20, s19, 4")
    e("v_lshrrev_b32 v3, 4, v2", "v_bfe_u32 v4, v2, 2, 2", "v_xor_b32 v4, v4, v3", "v_lshlrev_b32 v5, 16, v4",
      "v_lshl_add_u32 v5, v3, 6, v5", "v_and_b32 v4, 3, v2", "v_lshl_add_u32 v5, v4, 4, v5",
      "s_lshl_b32 s3, s20, 10", "v_add_u32 v8, s3, v5")
    e("s_lshl_b32 s40, s17, 12", "s_lshl_b32 s41, s20, 12")
    e("s_add_u32 m0, s41, 0", "s_nop 0", "buffer_load_dwordx4 v8, s[4:7], s40 offen lds")
    e("v_lshrrev_b32 v3, 5, v2", "v_lshlrev_b32 v3, 13, v3", "v_and_b32 v4, 31, v2", "v_lshl_add_u32 v9, v4, 4, v3",
      "s_lshl_b32 s47, s17, 9", "s_lshl_b32 s3, s20, 16", "s_add_u32 s47, s47, s3", f"s_add_u32 s47, s47, {OT}",
      "s_mul_i32 s48, s20, 4224")
    e("s_lshr_b32 s3, s20, 1", "s_lshl_b32 s3, s3, 5", "s_and_b32 s21, s20, 1", "s_lshl_b32 s21, s21, 3",
      "s_add_u32 s21, s21, s3")
    for k in range(3):
        e(f"v_add_u32 v3, {64*k}, v2", "v_mul_u32_u24 v4, 5462, v3", "v_lshrrev_b32 v4, 16, v4",
          "v_mul_u32_u24 v5, 12, v4", "v_sub_u32 v5, v3, v5", "v_lshrrev_b32 v6, 3, v4", "v_and_b32 v4, 7, v4",
          "v_lshl_add_u32 v4, v6, 4, v4", "v_add_u32 v4, s21, v4",
          "v_lshrrev_b32 v6, 4, v4", "v_lshl_add_u32 v7, v6, 1, v4", "v_mul_u32_u24 v7, 1152, v7",
          f"v_lshl_add_u32 v{10+k}, v5, 4, v7",
          "v_lshrrev_b32 v6, 1, v4", "v_lshl_add_u32 v7, v6, 4, v4", "v_add_u32 v7, 16, v7",
          "v_mul_u32_u24 v7, 1152, v7", f"v_lshl_add_u32 v{13+k}, v5, 4, v7")
    e("s_mul_i32 s46, s18, 192", "s_mul_i32 s42, s20, 3104", f"s_add_u32 s42, s42, {LW}")
    first = [True]

    def issue(s):
        base = (s % NB) * SB
        for i in range(4):
            if first[0] and i == 0:
                first[0] = False
                continue
            if s < 8:
                e(f"s_add_u32 m0, s41, {base + 1024*i}", f"s_add_u32 s43, s40, {262144*s + 256*i}",
                  "buffer_load_dwordx4 v8, s[4:7], s43 offen lds")
            else:
                e(f"s_add_u32 m0, s48, {base + 1056*i}", f"s_add_u32 s43, s47, {16384*i}",
                  "buffer_load_dwordx4 v9, s[4:7], s43 offen lds")
        for k in range(3):
            e(f"s_add_u32 m0, s42, {base + 1024*k}", f"s_add_u32 s43, s46, {82944*s if s < 8 else 0}",
              f"buffer_load_dwordx4 v{(10 if s < 8 else 13)+k}, s[8:11], s43 offen lds")
    loader(e, issue, 7)
    e.lab(f"{P}_FIN")
    if PROF:
        stamp(e, 13)
        e("s_waitcnt vmcnt(0)")
        stamp(e, 14)
        stamp_dump(e, 2, 15, P)
    e.lab(f"{P}_END")
    e("s_endpgm")
    return dict(name="proj_kernel", vgpr=128, grid=192, lds=NB * SB)
```

```python
import sys, struct

HB = int(__import__("os").environ.get("HB", "229376"))
Q1O, Q2O, K1O, K2O, VO = 0, 65536, 73728, 139264, 155648
OO = 64 * HB
WS_BYTES = 268435456
CSCALE = 1.4426950408889634 / (18 ** 0.5)


def f2u(x):
    return struct.unpack("<I", struct.pack("<f", x))[0]


class E:
    def __init__(self):
        self.L = []

    def __call__(self, *ss):
        for s in ss:
            self.L.append("    " + s)

    def lab(self, n):
        self.L.append(n + ":")

    def text(self):
        return "\n".join(self.L) + "\n"


def vr(b, n=1):
    return f"v{b}" if n == 1 else f"v[{b}:{b+n-1}]"


def sr(b, n=1):
    return f"s{b}" if n == 1 else f"s[{b}:{b+n-1}]"


import os
PROF = int(os.environ.get("PROF", "0"))
_stamp = [0]


def stamp(e, idx):
    if PROF:
        if idx == 0:
            e("s_memrealtime s[60:61]", "s_waitcnt lgkmcnt(0)", "s_mov_b32 s94, s60")
        e("s_memtime s[60:61]", "s_waitcnt lgkmcnt(0)", f"s_mov_b32 s{64+idx}, s60")


def stamp_dump(e, kidx, n, pfx, wave_s=19):
    if not PROF:
        return
    e("s_memrealtime s[60:61]", "s_waitcnt lgkmcnt(0)", "s_mov_b32 s95, s60")
    e("s_mov_b64 exec, 1", "s_load_dwordx2 s[52:53], s[0:1], 64", "s_waitcnt lgkmcnt(0)",
      f"s_add_u32 s52, s52, {64*1024*1024 + kidx*256*8*128}", "s_addc_u32 s53, s53, 0",
      "s_mov_b32 s54, 0x100000", "s_mov_b32 s55, 0x00020000",
      "s_lshl_b32 s56, s2, 3", f"s_add_u32 s56, s56, s{wave_s}", "s_lshl_b32 s56, s56, 7")
    for i in list(range(n)) + [30, 31]:
        e(f"v_mov_b32 v250, s{64+i}", f"v_mov_b32 v251, {4*i}",
          "buffer_store_dword v250, v251, s[52:55], s56 offen", "s_nop 1")


def SC(k):
    return " sc1" if str(k) in os.environ.get("SC1", "123") else ""


def srd(e, d, lo, hi, size):
    e(f"s_mov_b32 s{d}, s{lo}", f"s_mov_b32 s{d+1}, s{hi}",
      f"s_mov_b32 s{d+2}, {size}", f"s_mov_b32 s{d+3}, 0x00020000")


class Gemm:
    def __init__(self, pfx, NB, stage, nct, whalf, wj, xset, wset, acc):
        self.pfx, self.NB, self.stage, self.nct = pfx, NB, stage, nct
        self.whalf, self.wj = whalf, wj
        self.xset, self.wset, self.acc = xset, wset, acc

    def reads(self, j, st, vX, vW):
        L = []
        for i in range(4):
            L.append(f"ds_read_b128 {vr(self.xset[st]+4*i,4)}, v{vX[j]} offset:{2048*i}")
        for T in range(self.nct):
            for h in range(2):
                L.append(f"ds_read_b64_tr_b16 {vr(self.wset[st]+4*T+2*h,2)}, v{vW} "
                         f"offset:{32*T + self.whalf*h + self.wj*j}")
        return L

    def mfmas(self, st, first):
        L = []
        for T in range(self.nct):
            for i in range(4):
                a = self.acc + 4 * (4 * T + i)
                c = "0" if first else vr(a, 4)
                L.append(f"v_mfma_f32_16x16x32_bf16 {vr(a,4)}, {vr(self.wset[st]+4*T,4)}, "
                         f"{vr(self.xset[st]+4*i,4)}, {c}")
        return L

    def compute(self, e, vX, vW):
        NB, SB = self.NB, self.stage
        stamp(e, 1)
        e("s_barrier")
        stamp(e, 2)
        e(*self.reads(0, 0, vX, vW))
        e("s_waitcnt lgkmcnt(0)")
        for s in range(9):
            for j in range(2):
                st = j
                M = self.mfmas(st, s == 0 and j == 0)
                if j == 0:
                    R = self.reads(1, 1, vX, vW)
                elif s < 8:
                    d = ((s + 1) % NB - s % NB) * SB
                    lit = f"0x{d & 0xffffffff:08x}"
                    R = [f"v_add_u32 v{vX[0]}, {lit}, v{vX[0]}", f"v_add_u32 v{vX[1]}, {lit}, v{vX[1]}",
                         f"v_add_u32 v{vW}, {lit}, v{vW}"] + self.reads(0, 0, vX, vW)
                else:
                    R = []
                k = 0
                for m in M:
                    e(m)
                    n = 1 if len(M) >= 2 * len(R) - 6 or True else 2
                    per = int(os.environ.get("PER3", "2"))
                    for _ in range(per):
                        if k < len(R):
                            e(R[k]); k += 1
                while k < len(R):
                    e(R[k]); k += 1
                if R:
                    e("s_waitcnt lgkmcnt(0)")
                if j == 0 and s < 8:
                    e("s_barrier")
                    stamp(e, 3 + s)

    def loader(self, e, issue, n):
        LA = min(int(os.environ.get("LA3", "2")), self.NB - 1)
        for s in range(LA):
            issue(s)
        stamp(e, 1)
        e(f"s_waitcnt vmcnt({(LA-1)*n})")
        stamp(e, 2)
        e("s_barrier")
        issue(LA)
        for s in range(8):
            issued = min(s + LA, 8)
            e(f"s_waitcnt vmcnt({max(issued-(s+1),0)*n})")
            stamp(e, 3 + s)
            e("s_barrier")
            if s + LA + 1 <= 8:
                issue(s + LA + 1)


def gen_k1(e):
    P = "K1"
    SB, NB = 45312, 3
    e.lab("qkv_kernel")
    e("s_cmp_ge_u32 s2, 256", f"s_cbranch_scc1 {P}_END")
    stamp(e, 0)
    e("s_load_dwordx4 s[24:27], s[0:1], 0", "s_load_dwordx4 s[28:31], s[0:1], 24",
      "s_load_dwordx2 s[32:33], s[0:1], 64")
    e("s_and_b32 s16, s2, 1",
      "s_lshr_b32 s3, s2, 1", "s_and_b32 s3, s3, 1", "s_lshl_b32 s3, s3, 3",
      "s_lshr_b32 s20, s2, 3", "s_and_b32 s17, s20, 7", "s_add_u32 s17, s17, s3",
      "s_lshr_b32 s3, s2, 2", "s_and_b32 s3, s3, 1", "s_lshl_b32 s3, s3, 2",
      "s_lshr_b32 s18, s20, 3", "s_add_u32 s18, s18, s3")
    e("v_lshrrev_b32 v1, 6, v0", "v_and_b32 v2, 63, v0", "s_nop 0", "v_readfirstlane_b32 s19, v1")
    e("s_waitcnt lgkmcnt(0)")
    e("s_cmp_eq_u32 s16, 0",
      "s_cselect_b32 s34, s24, s28", "s_cselect_b32 s35, s25, s29",
      "s_cselect_b32 s36, s26, s30", "s_cselect_b32 s37, s27, s31")
    srd(e, 4, 34, 35, 2359296)
    srd(e, 8, 36, 37, 1990656)
    e("s_lshl_b32 s3, s16, 5", "s_lshl_b32 s20, s18, 2", "s_add_u32 s3, s3, s20",
      f"s_mul_i32 s3, s3, {HB}", "s_add_u32 s38, s32, s3", "s_addc_u32 s39, s33, 0")
    srd(e, 12, 38, 39, 4 * HB)
    g = Gemm(P, NB, SB, 7, 1792, 14464, [16, 32], [48, 76], 104)
    e("s_cmp_ge_u32 s19, 4", f"s_cbranch_scc1 {P}_LOAD")
    e("s_and_b32 s20, s19, 1", "s_lshr_b32 s21, s19, 1")
    e("v_and_b32 v3, 15, v2", "v_lshrrev_b32 v4, 4, v2", "v_and_b32 v5, 7, v2", "v_xor_b32 v5, v5, v4",
      "v_lshlrev_b32 v5, 4, v5", "s_lshl_b32 s3, s20, 6", "v_add_u32 v6, s3, v3",
      "v_lshlrev_b32 v8, 7, v6", "v_add_u32 v8, v8, v5", "v_xor_b32 v9, 64, v8")
    e("v_bfe_u32 v5, v2, 2, 2", "v_lshlrev_b32 v7, 3, v4", "v_add_u32 v5, v5, v7",
      "v_mul_u32_u24 v5, 448, v5", "v_lshlrev_b32 v7, 5, v4", "v_add_u32 v5, v5, v7",
      "v_and_b32 v7, 3, v2", "v_lshlrev_b32 v7, 3, v7", "v_add_u32 v5, v5, v7",
      "s_mul_i32 s3, s21, 224", "s_add_u32 s3, s3, 16384", "v_add_u32 v10, s3, v5")
    e("v_mul_u32_u24 v11, 456, v6", "v_lshlrev_b32 v7, 3, v4", "v_add_u32 v11, v11, v7",
      "s_mul_i32 s3, s21, 224", "v_add_u32 v11, s3, v11")
    e(f"s_mov_b32 s22, 0x{f2u(CSCALE):08x}", "s_cmp_eq_u32 s21, 0", "s_cselect_b32 s22, s22, 1.0",
      "v_mov_b32 v12, 1.0", "v_mov_b32 v13, s22", "v_cmp_gt_u32 vcc, 32, v2", "s_nop 1",
      "v_cndmask_b32 v12, v12, v13, vcc")
    g.compute(e, [8, 9], 10)
    e("s_nop 7", "s_nop 1")
    for T in range(7):
        for i in range(4):
            a = g.acc + 4 * (4 * T + i)
            if T < 4:
                e(*[f"v_mul_f32 v{a+r}, s22, v{a+r}" for r in range(4)])
            elif T == 4:
                e(*[f"v_mul_f32 v{a+r}, v12, v{a+r}" for r in range(4)])
            e(f"v_cvt_pk_bf16_f32 v{a}, v{a}, v{a+1}", f"v_cvt_pk_bf16_f32 v{a+1}, v{a+2}, v{a+3}",
              f"ds_write_b64 v11, {vr(a,2)} offset:{7296*i + 32*T}")
    e("s_waitcnt lgkmcnt(0)", f"s_branch {P}_OUT")
    e.lab(f"{P}_LOAD")
    e("s_sub_u32 s20, s19, 4")
    e("v_lshrrev_b32 v3, 3, v2", "v_and_b32 v4, 7, v2", "v_xor_b32 v4, v4, v3", "v_lshlrev_b32 v4, 4, v4",
      "s_lshl_b32 s3, s20, 5", "v_add_u32 v3, s3, v3", "v_mul_u32_u24 v8, 1152, v3", "v_add_u32 v8, v8, v4")
    e("v_cmp_le_u32 vcc, 28, v2", "v_mov_b32 v3, 0", "v_mov_b32 v5, 1", "v_cndmask_b32 v3, v3, v5, vcc",
      "v_mul_u32_u24 v4, 28, v3", "v_sub_u32 v4, v2, v4",
      "v_mul_u32_u24 v5, 57, v4", "v_lshrrev_b32 v5, 9, v5",
      "v_mul_u32_u24 v6, 9, v5", "v_sub_u32 v6, v4, v6", "v_lshlrev_b32 v6, 4, v6",
      "v_mul_u32_u24 v5, 1152, v5", "v_add_u32 v6, v6, v5",
      "s_lshl_b32 s3, s20, 1", "v_add_u32 v3, s3, v3", "v_mul_u32_u24 v9, 3456, v3", "v_add_u32 v9, v9, v6",
      "s_mul_i32 s3, s18, 144", "v_add_u32 v9, s3, v9")
    e("s_mul_i32 s40, s17, 147456", "s_lshl_b32 s41, s20, 12", "s_mul_i32 s42, s20, 896",
      "s_add_u32 s42, s42, 16384", "s_mov_b32 s44, 0xF7FFFFFF", "s_mov_b32 s45, 0x007FFFFF")

    def issue(s):
        base = (s % NB) * SB
        for i in range(4):
            e(f"s_add_u32 m0, s41, {base + 1024*i}", f"s_add_u32 s43, s40, {128*s + 9216*i}",
              "buffer_load_dwordx4 v8, s[4:7], s43 offen lds")
        e("s_mov_b64 exec, s[44:45]")
        for q in range(8):
            e(f"s_add_u32 m0, s42, {base + 3616*q}", f"s_mov_b32 s43, {221184*s + 27648*q}",
              "buffer_load_dwordx4 v9, s[8:11], s43 offen lds")
        e("s_mov_b64 exec, -1")
    g.loader(e, issue, 12)
    e.lab(f"{P}_OUT")
    stamp(e, 11)
    e("s_barrier")
    stamp(e, 12)
    e("s_lshr_b32 s20, s19, 2", "s_and_b32 s21, s19, 3",
      "v_and_b32 v3, 31, v2", "v_lshrrev_b32 v4, 5, v2", "v_mul_u32_u24 v5, 456, v3",
      "v_lshlrev_b32 v4, 4, v4", "v_add_u32 v5, v5, v4",
      "s_mul_i32 s3, s20, 144", "s_mul_i32 s22, s21, 36", "s_add_u32 s22, s22, s3",
      "v_add_u32 v5, s22, v5")
    for tt in range(4):
        e(f"ds_read_b128 {vr(16+4*tt,4)}, v5 offset:{32*456*tt}")
    e("v_mul_u32_u24 v6, 456, v2", "s_add_u32 s3, s22, 32", "v_add_u32 v6, s3, v6",
      "ds_read_b32 v32, v6", f"ds_read_b32 v34, v6 offset:{64*456}")
    e("v_lshrrev_b32 v7, 4, v2", "v_bfe_u32 v8, v2, 2, 2", "v_lshlrev_b32 v9, 3, v7", "v_add_u32 v8, v8, v9",
      "v_mul_u32_u24 v8, 456, v8", "v_and_b32 v9, 3, v2", "v_lshlrev_b32 v9, 3, v9", "v_add_u32 v8, v8, v9",
      "v_add_u32 v8, 288, v8")
    for k in range(3):
        e(f"s_add_u32 s23, s19, {8*k}", "s_min_u32 s23, s23, 19",
          "s_mul_i32 s24, s23, 52", "s_lshr_b32 s24, s24, 8",
          "s_mul_i32 s25, s24, 5", "s_sub_u32 s25, s23, s25",
          f"s_mov_b32 s{46+2*k}, s24", f"s_mov_b32 s{47+2*k}, s25",
          f"s_mul_i32 s26, s24, {32*456}", "s_lshl_b32 s27, s25, 5", "s_add_u32 s26, s26, s27",
          "v_add_u32 v9, s26, v8",
          f"ds_read_b64_tr_b16 {vr(40+4*k,2)}, v9", f"ds_read_b64_tr_b16 {vr(42+4*k,2)}, v9 offset:{4*456}")
    e(f"s_mul_i32 s22, s21, {HB}", f"s_mul_i32 s3, s20, {K1O}", "s_add_u32 s23, s22, s3",
      "s_lshl_b32 s3, s17, 12", "s_add_u32 s23, s23, s3", "v_lshlrev_b32 v10, 4, v2")
    e("s_waitcnt lgkmcnt(8)")
    for tt in range(4):
        e(f"s_add_u32 s3, s23, {1024*tt}", f"buffer_store_dwordx4 {vr(16+4*tt,4)}, v10, s[12:15], s3 offen")
    e("s_waitcnt lgkmcnt(6)")
    e("s_cmp_eq_u32 s20, 0", f"s_cbranch_scc0 {P}_K2")
    e("s_lshl_b32 s3, s17, 9", "s_add_u32 s3, s3, s22", f"s_add_u32 s3, s3, {Q2O}",
      "v_lshlrev_b32 v11, 2, v2",
      "buffer_store_dword v32, v11, s[12:15], s3 offen",
      "buffer_store_dword v34, v11, s[12:15], s3 offen offset:256",
      f"s_branch {P}_V")
    e.lab(f"{P}_K2")
    e("s_lshl_b32 s3, s17, 10", "s_add_u32 s3, s3, s22", f"s_add_u32 s3, s3, {K2O}",
      "v_lshlrev_b32 v11, 3, v2", "v_mov_b32 v33, 0x00003F80", "v_mov_b32 v35, 0x00003F80",
      "buffer_store_dwordx2 v[32:33], v11, s[12:15], s3 offen",
      "buffer_store_dwordx2 v[34:35], v11, s[12:15], s3 offen offset:512")
    e.lab(f"{P}_V")
    e("s_waitcnt lgkmcnt(0)")
    for k in range(3):
        e(f"s_lshl_b32 s3, s{47+2*k}, 4", "v_and_b32 v3, 15, v2", "v_add_u32 v3, s3, v3",
          "v_mul_u32_u24 v4, 57, v3", "v_lshrrev_b32 v4, 10, v4",
          "v_mul_u32_u24 v5, 18, v4", "v_sub_u32 v5, v3, v5", "v_lshlrev_b32 v5, 4, v5",
          f"s_mov_b32 s3, {HB}", "v_mul_lo_u32 v4, v4, s3", "v_add_u32 v5, v5, v4",
          "v_lshrrev_b32 v6, 5, v2", "v_mul_u32_u24 v6, 576, v6", "v_add_u32 v5, v5, v6",
          "v_bfe_u32 v6, v2, 4, 1", "v_mul_u32_u24 v6, 288, v6", "v_add_u32 v5, v5, v6",
          f"s_lshl_b32 s3, s{46+2*k}, 1", "s_lshl_b32 s24, s17, 3", "s_add_u32 s3, s3, s24",
          "s_mul_i32 s3, s3, 576", f"s_add_u32 s3, s3, {VO}",
          "v_cmp_gt_u32 vcc, 72, v3")
        if k == 2:
            e("s_cmp_ge_u32 s19, 4", f"s_cbranch_scc1 {P}_FIN")
        e("s_and_saveexec_b64 s[26:27], vcc",
          f"buffer_store_dwordx4 {vr(40+4*k,4)}, v5, s[12:15], s3 offen",
          "s_mov_b64 exec, -1")
    e.lab(f"{P}_FIN")
    if PROF:
        stamp(e, 13)
        e("s_waitcnt vmcnt(0)")
        stamp(e, 14)
        stamp_dump(e, 0, 15, P)
    e.lab(f"{P}_END")
    e("s_endpgm")
    return dict(name="qkv_kernel", vgpr=216, grid=256, lds=NB * SB)


def kd(info):
    v = 256 if PROF else (info["vgpr"] + 3) // 4 * 4
    return f""".amdhsa_kernel {info['name']}
  .amdhsa_next_free_vgpr {v}
  .amdhsa_next_free_sgpr 96
  .amdhsa_accum_offset {v}
  .amdhsa_group_segment_fixed_size 0
  .amdhsa_kernarg_size 72
  .amdhsa_user_sgpr_count 2
  .amdhsa_user_sgpr_kernarg_segment_ptr 1
  .amdhsa_system_sgpr_workgroup_id_x 1
.end_amdhsa_kernel
"""


HEADER = open("concat_heads__mha_block__sliding_block__prompt.s.ref").read().split("; Override")[0]


def build(gens):
    infos, bodies = [], []
    for gfn in gens:
        e = E()
        infos.append(gfn(e))
        bodies.append(e.text())
    out = HEADER
    for i in infos:
        out += f"; @launch kernel={i['name']} grid=({i['grid']},1,1) block=(512,1,1) lds={i['lds']}\n"
    out += '.amdgcn_target "amdgcn-amd-amdhsa--gfx950"\n.text\n'
    for i, b in zip(infos, bodies):
        out += f".globl {i['name']}\n.p2align 8\n.type {i['name']},@function\n" + b
    out += '.section .rodata,"a"\n'
    for i in infos:
        out += ".p2align 6\n" + kd(i)
    return out, infos


if __name__ == "__main__":
    if os.environ.get("OLDK3", "0") == "1":
        from gen2 import gen_k3
    else:
        from k3 import gen_k3
    from k2 import gen_k2
    if os.environ.get("OLDK1", "0") != "1":
        from k1 import gen_k1
    txt, infos = build([gen_k1, gen_k2, gen_k3])
    path = sys.argv[1] if len(sys.argv) > 1 else "concat_heads__mha_block__sliding_block__prompt.s"
    open(path, "w").write(txt)
    print("wrote", path, len(txt), "bytes")
```

```python
from gen import *

EXP = os.environ.get("EXP", "")
SB, NB = 50176, 3
LW = 16384
XS = [16, 24]
WR = 32
ACC = 64
VX0, VX1, VWA, VWB, VPA, VPB = 4, 5, 6, 7, 10, 11
NT = 14
NDMA = 12
RK = int(os.environ.get("RK", "2"))


def acc(T, i):
    return ACC + 4 * (2 * T + i)


def wread(j, T):
    d = WR + 4 * (T % 7)
    L = []
    for h in range(2):
        off = h * 512 + j * 16896
        if T < 8:
            a, off = VWA, off + 72 * (T >> 1) + 40 * (T & 1)
        elif T < 12:
            a, off = VWB, off + 72 * ((T - 8) >> 1) + 40 * (T & 1)
        else:
            a = VPA if T == 12 else VPB
        L.append(f"ds_read_b64_tr_b16 {vr(d+2*h,2)}, v{a} offset:{off}")
    return L


def xread(j):
    a = VX0 if j == 0 else VX1
    return [f"ds_read_b128 {vr(XS[j]+4*i,4)}, v{a} offset:{2048*i}" for i in range(2)]


def mfma(j, T, i, swapped):
    w, x, d = vr(WR + 4 * (T % 7), 4), vr(XS[j] + 4 * i, 4), vr(acc(T, i), 4)
    a, b = (x, w) if swapped else (w, x)
    return f"v_mfma_f32_16x16x32_bf16 {d}, {a}, {b}, {d}"


def stage_body(swA, swB, epi=None):
    sw = lambda T: swA if (T < 8 or T == 12) else swB
    plan = {P: [] for P in range(28)}
    for P in range(5, 28):
        plan[P - 5] += [("W", 0, P)]
    plan[2] += [("X", 0, 1)]
    nxt = {24: [("W", 1, 0), ("W", 1, 1)], 25: [("W", 1, 2), ("W", 1, 3), ("X", 1, 0)], 26: [("W", 1, 4)]}
    full = {P: list(v) for P, v in plan.items()}
    for P, v in nxt.items():
        full[P] += v
    if epi is None:
        plan = full
    seq = []
    waits = {}
    issued = []
    for it in range(2):
        for P in range(28):
            j, T = divmod(P, 14)
            need = [("W", it, P), ("X", it, j)]
            pos = -1
            for k, (key, n) in enumerate(issued):
                if key in need:
                    pos = k
            if pos >= 0:
                after = sum(n for key, n in issued[pos + 1:])
                waits[(it, P)] = after
            if P == 24:
                issued = []
            for kind, so, idx in full[P]:
                issued.append(((kind, it + so, idx), 2))
    L = []
    for P in range(28):
        j, T = divmod(P, 14)
        w = waits.get((1, P))
        R = []
        for kind, so, idx in plan[P]:
            if kind == "W":
                if "nords" not in EXP or (idx % 14) < 2:
                    R += wread(idx // 14, idx % 14)
            else:
                R += xread(idx)
        if epi is not None and P >= 23:
            L.append(f"s_waitcnt lgkmcnt({2 * (27 - P)})")
            L += [mfma(j, T, 0, sw(T)), mfma(j, T, 1, sw(T))] + epi.get(P, [])
            continue
        if w is not None:
            L.append(f"s_waitcnt lgkmcnt({min(w, 15)})")
        if P == 24:
            L += [mfma(j, T, 0, sw(T)), mfma(j, T, 1, sw(T))]
            L += ["s_waitcnt lgkmcnt(0)", "s_barrier",
                  f"v_add_u32 v{VX0}, s50, v{VX0}", f"v_add_u32 v{VPA}, s50, v{VPA}", f"v_add_u32 v{VPB}, s50, v{VPB}"]
            L += [f"v_add_u32 v{VWA}, s50, v{VWA}", f"v_add_u32 v{VWB}, s50, v{VWB}"]
            L += R
            continue
        h = (len(R) + 1) // 2 if "noil" not in EXP else 0
        L += [mfma(j, T, 0, sw(T))] + R[:h] + [mfma(j, T, 1, sw(T))]
        if P == 26:
            L += [f"v_add_u32 v{VX1}, s50, v{VX1}"]
        L += R[h:]
        if epi is not None:
            L += epi.get(P, [])
    return L


def qk_main(T, k, is_q, s_head):
    off1 = Q1O if is_q else K1O
    a, b = acc(T, 0), acc(T, 1)
    L = [f"v_pk_mul_f32 {vr(a+r,2)}, {vr(a+r,2)}, s[22:23]" for r in range(0, 8, 2)] if is_q else []
    return L + [f"v_cvt_pk_bf16_f32 v{a}, v{a}, v{a+1}", f"v_cvt_pk_bf16_f32 v{a+1}, v{a+2}, v{a+3}",
                f"v_cvt_pk_bf16_f32 v{a+2}, v{b}, v{b+1}", f"v_cvt_pk_bf16_f32 v{a+3}, v{b+2}, v{b+3}",
                f"s_add_u32 s3, s{s_head}, {k*HB + off1}", "s_add_u32 s3, s3, s21",
                f"v_permlane16_swap_b32 v{a}, v{a+2}", f"v_permlane16_swap_b32 v{a+1}, v{a+3}",
                f"buffer_store_dwordx4 {vr(a,4)}, v12, s[12:15], s3 offen{SC(1)}"]


def qk_tail(Tp, is_q, s_head, np_):
    off2 = Q2O if is_q else K2O
    sh = 2 if is_q else 3
    L = [f"s_lshl_b32 s3, s24, {sh}", f"s_add_u32 s3, s3, s{s_head}", f"s_add_u32 s3, s3, {off2}",
         f"v_lshlrev_b32 v14, {sh}, v3", "v_add_u32 v14, v14, v13", f"v_add_u32 v15, {HB}, v14"]
    if np_ == 4:
        L.append("s_mov_b32 exec_hi, 0")
    for i in range(2):
        a = acc(Tp, i)
        if is_q:
            L += [f"v_pk_mul_f32 {vr(a+r,2)}, {vr(a+r,2)}, s[22:23]" for r in (0, 2)]
            L += [f"v_cvt_pk_bf16_f32 v{a}, v{a}, v{a+1}", f"v_cvt_pk_bf16_f32 v{a+1}, v{a+2}, v{a+3}",
                  f"buffer_store_dword v{a}, v14, s[12:15], s3 offen offset:{64*i}",
                  f"buffer_store_dword v{a+1}, v15, s[12:15], s3 offen offset:{64*i}"]
        else:
            L += [f"v_cvt_pk_bf16_f32 v{a}, v{a}, v{a+1}", f"v_cvt_pk_bf16_f32 v{a+2}, v{a+2}, v{a+3}",
                  f"v_mov_b32 v{a+1}, 0x00003F80", f"v_mov_b32 v{a+3}, 0x00003F80",
                  f"buffer_store_dwordx2 {vr(a,2)}, v14, s[12:15], s3 offen offset:{128*i}",
                  f"buffer_store_dwordx2 {vr(a+2,2)}, v15, s[12:15], s3 offen offset:{128*i}"]
    if np_ == 4:
        L.append("s_mov_b64 exec, -1")
    return L


def v_tile(T, k, s_head, np_):
    a, b = acc(T, 0), acc(T, 1)
    L = [f"v_cvt_pk_bf16_f32 v{a}, v{a}, v{a+1}", f"v_cvt_pk_bf16_f32 v{a+1}, v{a+2}, v{a+3}",
         f"v_cvt_pk_bf16_f32 v{a+2}, v{b}, v{b+1}", f"v_cvt_pk_bf16_f32 v{a+3}, v{b+2}, v{b+3}"]
    if k == "p":
        L += [f"s_add_u32 s3, s{s_head}, s25", "s_nop 0"]
    else:
        L += [f"s_add_u32 s3, s{s_head}, {k*HB + 32*(k & 1)}", "s_add_u32 s3, s3, s25"]
    L += [f"v_permlane16_swap_b32 v{a}, v{a+2}", f"v_permlane16_swap_b32 v{a+1}, v{a+3}"]
    if k == "p":
        L.append(f"buffer_store_dwordx4 {vr(a,4)}, v{9 if np_ == 8 else 176}, s[12:15], s3 offen")
    else:
        L.append(f"buffer_store_dwordx4 {vr(a,4)}, v8, s[12:15], s3 offen{SC(1)}")
    return L


def last_stage(tA, tB):
    main = lambda T, k, t, sh, n: v_tile(T, k, sh, n) if t == "V" else qk_main(T, k, t == "Q", sh)
    tail = lambda T, t, sh, n: v_tile(T, "p", sh, n) if t == "V" else qk_tail(T, t == "Q", sh, n)
    epi = {16 + T: (main(T, T, tA, 26, 8) if T < 8 else main(T, T - 8, tB, 27, 4)) for T in range(12)}
    return stage_body(tA == "V", tB == "V", epi) + ["s_nop 7"] + tail(12, tA, 26, 8) + tail(13, tB, 27, 4)


def gen_k1(e):
    P = "K1"
    e.lab("qkv_kernel")
    e("s_cmp_ge_u32 s2, 256", f"s_cbranch_scc1 {P}_END")
    stamp(e, 0)
    e("s_load_dwordx4 s[24:27], s[0:1], 0", "s_load_dwordx4 s[28:31], s[0:1], 24",
      "s_load_dwordx2 s[32:33], s[0:1], 64")
    e("v_lshrrev_b32 v1, 6, v0", "v_and_b32 v2, 63, v0", "s_and_b32 s16, s2, 1", "v_readfirstlane_b32 s19, v1",
      "s_lshr_b32 s3, s2, 1", "s_and_b32 s3, s3, 1", "s_lshl_b32 s3, s3, 3",
      "s_lshr_b32 s20, s2, 3", "s_and_b32 s17, s20, 7", "s_add_u32 s17, s17, s3",
      "s_lshr_b32 s3, s2, 2", "s_and_b32 s3, s3, 1", "s_lshl_b32 s3, s3, 2",
      "s_lshr_b32 s18, s20, 3", "s_add_u32 s18, s18, s3",
      "s_mul_i32 s44, s18, 432", "s_andn2_b32 s45, s44, 127", "s_sub_u32 s3, s44, s45", "s_cmp_gt_u32 s3, 80",
      "s_cselect_b32 s3, 64, 0", "s_add_u32 s45, s45, s3",
      "s_add_u32 s47, s44, 288", "s_add_u32 s46, s44, 144", "s_cmp_eq_u32 s18, 5",
      "s_cselect_b32 s46, s46, s44", "s_cselect_b32 s47, s44, s47")
    e("s_waitcnt lgkmcnt(0)")
    e("s_cmp_eq_u32 s16, 0",
      "s_cselect_b32 s4, s24, s28", "s_cselect_b32 s5, s25, s29", "s_mov_b32 s6, 2359296", "s_mov_b32 s7, 0x00020000",
      "s_cselect_b32 s8, s26, s30", "s_cselect_b32 s9, s27, s31", "s_mov_b32 s10, 1990656", "s_mov_b32 s11, 0x00020000")
    e("s_cmp_ge_u32 s19, 4", f"s_cbranch_scc1 {P}_LOAD")
    e(f"s_mul_i32 s3, s16, {32*HB}", "s_add_u32 s38, s32, s3", "s_addc_u32 s39, s33, 0")
    srd(e, 12, 38, 39, 32 * HB)
    e("v_and_b32 v3, 15, v2", "v_lshrrev_b32 v13, 4, v2", "v_bfe_u32 v14, v2, 2, 2", "v_and_b32 v15, 3, v2")
    e("v_and_b32 v4, 7, v2", "v_xor_b32 v4, v4, v13", "v_lshlrev_b32 v4, 4, v4", "s_lshl_b32 s3, s19, 5",
      "v_add_u32 v5, s3, v3", f"v_lshl_add_u32 v{VX0}, v5, 7, v4", f"v_xor_b32 v{VX1}, 64, v{VX0}")
    e("v_lshl_add_u32 v1, v13, 2, v14", "v_mul_u32_u24 v1, 1056, v1", f"v_add_u32 v1, {LW}, v1",
      "s_sub_u32 s20, s46, s45", "s_sub_u32 s21, s47, s45",
      "v_lshl_add_u32 v10, v15, 3, v1", f"v_add_u32 v{VWA}, s20, v10", f"v_add_u32 v{VWB}, s21, v10",
      "v_mul_u32_u24 v10, 72, v15", "v_add_u32 v10, v10, v1", "s_add_u32 s20, s20, 32", f"v_add_u32 v{VPA}, s20, v10",
      "v_and_b32 v11, 1, v15", "v_mul_u32_u24 v11, 72, v11", "v_add_u32 v11, v11, v1", "s_add_u32 s21, s21, 32",
      f"v_add_u32 v{VPB}, s21, v11")
    e(*[f"v_mov_b32 v{XS[0]+r}, 0" for r in range(4)], "s_nop 1")
    for T in range(NT):
        for i in range(2):
            e(f"v_mfma_f32_16x16x32_bf16 {vr(acc(T,i),4)}, {vr(XS[0],4)}, {vr(XS[0],4)}, 0")
    for s_col, s_h in ((46, 26), (47, 27)):
        e(f"s_cmp_ge_u32 s{s_col}, 2304", f"s_cselect_b32 s3, 2304, 0", f"s_sub_u32 s{s_h}, s{s_col}, s3",
          f"s_cmp_ge_u32 s{s_h}, 1152", "s_cselect_b32 s3, 1152, 0", f"s_sub_u32 s{s_h}, s{s_h}, s3",
          f"s_mul_i32 s{s_h}, s{s_h}, 1821", f"s_lshr_b32 s{s_h}, s{s_h}, 16", f"s_mul_i32 s{s_h}, s{s_h}, {HB}")
    e("s_lshl_b32 s23, s17, 2", "s_add_u32 s23, s23, s19", "s_lshl_b32 s24, s23, 5", "s_mul_i32 s25, s23, 1152",
      f"s_add_u32 s25, s25, {VO}", "s_lshl_b32 s21, s23, 10", f"s_mov_b32 s22, 0x{f2u(CSCALE):08x}", "s_mov_b32 s23, s22")
    e("v_lshlrev_b32 v12, 4, v2", "v_lshrrev_b32 v14, 4, v2", "v_and_b32 v15, 1, v14", "v_mul_u32_u24 v8, 576, v15",
      "v_lshrrev_b32 v15, 1, v14", "v_mul_u32_u24 v15, 288, v15", "v_add_u32 v8, v8, v15",
      "v_lshrrev_b32 v15, 1, v3", f"s_mov_b32 s3, {HB}", "v_mul_lo_u32 v15, v15, s3", "v_add_u32 v9, v8, v15",
      "v_and_b32 v15, 1, v3", "v_lshl_add_u32 v9, v15, 4, v9",
      "v_bfe_u32 v15, v3, 1, 1", "v_xor_b32 v15, 1, v15", "v_lshl_add_u32 v9, v15, 8, v9",
      "v_mov_b32 v15, 0x40000000", "v_cmp_gt_u32 vcc, 8, v3", "v_lshl_add_u32 v8, v3, 4, v8",
      f"s_mov_b32 s3, {2*HB}", "v_cndmask_b32 v176, v15, v9, vcc", "v_mul_lo_u32 v13, v14, s3")
    if "pf" in EXP:
        e("s_lshl_b32 s3, s19, 1", "s_add_u32 s3, s3, 2", "v_lshrrev_b32 v14, 5, v2", "v_add_u32 v14, s3, v14",
          "v_min_u32 v14, 8, v14",
          "s_lshr_b32 s3, s2, 6", "s_lshl_b32 s3, s3, 5", "s_lshl_b32 s20, s17, 7", "s_add_u32 s3, s3, s20",
          "v_and_b32 v15, 31, v2", "v_add_u32 v15, s3, v15", "v_mul_u32_u24 v15, 1152, v15",
          "v_lshl_add_u32 v15, v14, 7, v15", "buffer_load_dword v176, v15, s[4:7], 0 offen",
          "s_lshr_b32 s3, s2, 3", "s_and_b32 s3, s3, 7", "s_lshl_b32 s3, s3, 3",
          "v_bfe_u32 v15, v2, 2, 3", "v_lshl_add_u32 v15, v14, 6, v15", "v_add_u32 v15, s3, v15",
          "v_mul_u32_u24 v15, 3456, v15", "s_andn2_b32 s3, s45, 127", "v_add_u32 v15, s3, v15",
          "v_and_b32 v14, 3, v2", "v_lshl_add_u32 v14, v14, 7, v15",
          "buffer_load_dword v177, v14, s[8:11], 0 offen",
          "s_bitcmp1_b32 s45, 6", f"s_cbranch_scc0 {P}_NOPF5",
          "buffer_load_dword v178, v15, s[8:11], 0 offen offset:512")
        e.lab(f"{P}_NOPF5")
    e("s_mov_b32 s48, 0", f"s_mov_b32 s50, {SB}", "s_mov_b32 s55, 0x124", f"s_mov_b32 s56, {(-2*SB) & 0xffffffff}",
      f"s_mov_b32 s57, {SB}")
    stamp(e, 1)
    e("s_barrier")
    stamp(e, 2)
    e(*xread(0))
    for T in range(5):
        e(*wread(0, T))
    e("s_waitcnt lgkmcnt(0)")
    e("s_cmp_ge_u32 s18, 6", f"s_cbranch_scc1 {P}_LSS", "s_cmp_eq_u32 s18, 5", f"s_cbranch_scc1 {P}_LSN")
    for nm, swA, swB in (("NN", False, False), ("SN", True, False), ("SS", True, True)):
        e.lab(f"{P}_L{nm}")
        e(*stage_body(swA, swB))
        e("s_add_u32 s48, s48, 1", "s_bitcmp1_b32 s55, s48", "s_cselect_b32 s50, s56, s57")
        e("s_cmp_lt_u32 s48, 8", f"s_cbranch_scc1 {P}_L{nm}")
        if nm == "NN":
            e("s_cmp_lt_u32 s18, 2", f"s_cbranch_scc1 {P}_EQQ", "s_cmp_eq_u32 s18, 2", f"s_cbranch_scc1 {P}_EQK",
              f"s_branch {P}_EKK")
        else:
            e(f"s_branch {P}_E{'VK' if nm == 'SN' else 'VV'}")
    for nm, tA, tB in (("QQ", "Q", "Q"), ("QK", "Q", "K"), ("KK", "K", "K"), ("VK", "V", "K"), ("VV", "V", "V")):
        e.lab(f"{P}_E{nm}")
        stamp(e, 11)
        e(*last_stage(tA, tB))
        e(f"s_branch {P}_FIN")
    e.lab(f"{P}_LOAD")
    e("s_sub_u32 s20, s19, 4")
    e("v_lshrrev_b32 v3, 3, v2", "v_and_b32 v4, 7, v2", "v_xor_b32 v4, v4, v3", "v_lshlrev_b32 v4, 4, v4",
      "s_lshl_b32 s3, s20, 5", "v_add_u32 v5, s3, v3", "v_mul_u32_u24 v8, 1152, v5", "v_add_u32 v8, v8, v4")
    e("s_mul_i32 s40, s17, 147456", "s_lshl_b32 s41, s20, 12")
    e("s_lshr_b32 s37, s2, 3", "s_and_b32 s37, s37, 7", "s_lshr_b32 s3, s2, 6", "s_lshl_b32 s3, s3, 1",
      "s_add_u32 s37, s37, s3")
    for _ in range(13 // (9 - RK) if RK < 9 else 0):
        e(f"s_cmp_ge_u32 s37, {9 - RK}", f"s_cselect_b32 s3, {9 - RK}, 0", "s_sub_u32 s37, s37, s3")
    e(f"s_add_u32 s37, s37, {RK}", "s_mov_b32 s34, s37" if RK == 0 else "s_mov_b32 s34, 0")
    e("s_lshl_b32 s35, s34, 7", "s_add_u32 s35, s35, s40",
      "s_add_u32 m0, s41, 0", "s_mul_i32 s36, s34, 221184", "buffer_load_dwordx4 v8, s[4:7], s35 offen lds")
    e("v_lshrrev_b32 v3, 5, v2", "v_mul_u32_u24 v3, 13824, v3", "v_and_b32 v4, 31, v2", "v_lshl_add_u32 v3, v4, 4, v3",
      "v_add_u32 v9, s45, v3")
    e("s_mul_i32 s42, s20, 8448", f"s_add_u32 s42, s42, {LW}", "s_mul_i32 s44, s20, 55296", "s_add_u32 s36, s36, s44")

    def issue(s, skip_first=False):
        base = (s % NB) * SB
        for i in range(4):
            if skip_first and i == 0:
                continue
            e(f"s_add_u32 m0, s41, {base + 1024*i}", f"s_add_u32 s43, s35, {9216*i}",
              "buffer_load_dwordx4 v8, s[4:7], s43 offen lds")
        for u in range(8):
            e(f"s_add_u32 m0, s42, {base + 1056*u}",
              f"s_add_u32 s43, s36, {27648*(u >> 2) + 3456*(u & 3)}",
              "buffer_load_dwordx4 v9, s[8:11], s43 offen lds")
        if s < 8:
            if s + 1 < RK:
                e(f"s_mov_b32 s34, {s + 1}")
            elif s + 1 == RK:
                e("s_mov_b32 s34, s37")
            else:
                e("s_add_u32 s34, s34, 1", "s_cmp_eq_u32 s34, 9", f"s_cselect_b32 s34, {RK}, s34")
            e("s_lshl_b32 s35, s34, 7", "s_add_u32 s35, s35, s40", "s_mul_i32 s36, s34, 221184", "s_add_u32 s36, s36, s44")

    issue(0, True)
    issue(1)
    stamp(e, 1)
    e(f"s_waitcnt vmcnt({NDMA})")
    stamp(e, 2)
    e("s_barrier")
    issue(2)
    for s in range(8):
        left = max(min(s + 2, 8) - (s + 1), 0)
        e(f"s_waitcnt vmcnt({left*NDMA})")
        stamp(e, 3 + s)
        e("s_barrier")
        if s + 3 <= 8:
            issue(s + 3)
    e.lab(f"{P}_FIN")
    if PROF:
        stamp(e, 13)
        e("s_waitcnt vmcnt(0)")
        stamp(e, 14)
        stamp_dump(e, 0, 15, P)
    e.lab(f"{P}_END")
    e("s_endpgm")
    return dict(name="qkv_kernel", vgpr=180, grid=256, lds=NB * SB)
```

```python
from gen import *

EXP = os.environ.get("EXP", "")
SB, NB = 50176, 3
LW = 16384
XS = [16, 24]
WR = 32
ACC = 64
VX0, VX1, VWA, VWB, VPA, VPB = 4, 5, 6, 7, 10, 11
NT = 14
NDMA = 12
RK = int(os.environ.get("RK", "2"))


def acc(T, i):
    return ACC + 4 * (2 * T + i)


def wread(j, T, slot=None):
    d = WR + 4 * (T % 7 if slot is None else slot)
    L = []
    for h in range(2):
        off = h * 512 + j * 16896
        if T < 8:
            a, off = VWA, off + 72 * (T >> 1) + 40 * (T & 1)
        elif T < 12:
            a, off = VWB, off + 72 * ((T - 8) >> 1) + 40 * (T & 1)
        else:
            a = VPA if T == 12 else VPB
        L.append(f"ds_read_b64_tr_b16 {vr(d+2*h,2)}, v{a} offset:{off}")
    return L


def xread(j):
    a = VX0 if j == 0 else VX1
    return [f"ds_read_b128 {vr(XS[j]+4*i,4)}, v{a} offset:{2048*i}" for i in range(2)]


def mfma(j, T, i, swapped, slot=None):
    w, x, d = vr(WR + 4 * (T % 7 if slot is None else slot), 4), vr(XS[j] + 4 * i, 4), vr(acc(T, i), 4)
    a, b = (x, w) if swapped else (w, x)
    return f"v_mfma_f32_16x16x32_bf16 {d}, {a}, {b}, {d}"


def stage_body(swA, swB, epi=None):
    sw = lambda T: swA if (T < 8 or T == 12) else swB
    plan = {P: [] for P in range(28)}
    for P in range(5, 28):
        plan[P - 5] += [("W", 0, P)]
    std = [divmod(P, 14) for P in range(28)]
    hyb = epi is not None and "hyb" in EXP
    order = last_order() if hyb else std
    plan_std = {P: list(v) for P, v in plan.items()}
    plan_std[2] += [("X", 0, 1)]
    plan[0 if hyb else 2] += [("X", 0, 1)]
    nxt = {24: [("W", 1, 0), ("W", 1, 1)], 25: [("W", 1, 2), ("W", 1, 3), ("X", 1, 0)], 26: [("W", 1, 4)]}
    full = plan_std
    for P, v in nxt.items():
        full[P] += v
    if epi is None:
        plan = full
    seq = []
    waits = {}
    issued = []
    for it in range(2):
        for P in range(28):
            j, T = (order if it == 1 else std)[P]
            need = [("W", it, P), ("X", it, j)]
            pos = -1
            for k, (key, n) in enumerate(issued):
                if key in need:
                    pos = k
            if pos >= 0:
                after = sum(n for key, n in issued[pos + 1:])
                waits[(it, P)] = after
            if P == 24:
                issued = []
            for kind, so, idx in (plan if (hyb and it == 1) else full)[P]:
                issued.append(((kind, it + so, idx), 2))
    L = []
    for P in range(28):
        j, T = order[P]
        w = waits.get((1, P))
        R = []
        for kind, so, idx in plan[P]:
            if kind == "W":
                if "nords" not in EXP or (idx % 14) < 2:
                    R += wread(*order[idx], idx % 7) if so == 0 else wread(0, idx)
            else:
                R += xread(idx)
        if epi is not None and P >= 23:
            L.append(f"s_waitcnt lgkmcnt({2 * (27 - P)})")
            L += [mfma(j, T, 0, sw(T), P % 7), mfma(j, T, 1, sw(T), P % 7)] + epi.get(P, [])
            continue
        if w is not None:
            L.append(f"s_waitcnt lgkmcnt({min(w, 15)})")
        if P == 24:
            L += [mfma(j, T, 0, sw(T)), mfma(j, T, 1, sw(T))]
            L += ["s_waitcnt lgkmcnt(0)", "s_barrier",
                  f"v_add_u32 v{VX0}, s50, v{VX0}", f"v_add_u32 v{VPA}, s50, v{VPA}", f"v_add_u32 v{VPB}, s50, v{VPB}"]
            L += [f"v_add_u32 v{VWA}, s50, v{VWA}", f"v_add_u32 v{VWB}, s50, v{VWB}"]
            L += R
            continue
        h = (len(R) + 1) // 2 if "noil" not in EXP else 0
        L += [mfma(j, T, 0, sw(T), P % 7)] + R[:h] + [mfma(j, T, 1, sw(T), P % 7)]
        if P == 26:
            L += [f"v_add_u32 v{VX1}, s50, v{VX1}"]
        L += R[h:]
        if epi is not None:
            L += epi.get(P, [])
    return L


def last_order():
    o = []
    for grp in ((0, 1, 2, 3, 4), (5, 6), (7, 8), (9, 10), (11, 12, 13)):
        o += [(0, T) for T in grp] + [(1, T) for T in grp]
    return o


def qk_main(T, k, is_q, s_head):
    off1 = Q1O if is_q else K1O
    a, b = acc(T, 0), acc(T, 1)
    L = [f"v_pk_mul_f32 {vr(a+r,2)}, {vr(a+r,2)}, s[22:23]" for r in range(0, 8, 2)] if is_q else []
    return L + [f"v_cvt_pk_bf16_f32 v{a}, v{a}, v{a+1}", f"v_cvt_pk_bf16_f32 v{a+1}, v{a+2}, v{a+3}",
                f"v_cvt_pk_bf16_f32 v{a+2}, v{b}, v{b+1}", f"v_cvt_pk_bf16_f32 v{a+3}, v{b+2}, v{b+3}",
                f"s_add_u32 s3, s{s_head}, {k*HB + off1}", "s_add_u32 s3, s3, s21",
                f"v_permlane16_swap_b32 v{a}, v{a+2}", f"v_permlane16_swap_b32 v{a+1}, v{a+3}",
                f"buffer_store_dwordx4 {vr(a,4)}, v12, s[12:15], s3 offen{SC(1)}"]


def qk_tail(Tp, is_q, s_head, np_):
    off2 = Q2O if is_q else K2O
    sh = 2 if is_q else 3
    L = [f"s_lshl_b32 s3, s24, {sh}", f"s_add_u32 s3, s3, s{s_head}", f"s_add_u32 s3, s3, {off2}",
         f"v_lshlrev_b32 v14, {sh}, v3", "v_add_u32 v14, v14, v13", f"v_add_u32 v15, {HB}, v14"]
    if np_ == 4:
        L.append("s_mov_b32 exec_hi, 0")
    for i in range(2):
        a = acc(Tp, i)
        if is_q:
            L += [f"v_pk_mul_f32 {vr(a+r,2)}, {vr(a+r,2)}, s[22:23]" for r in (0, 2)]
            L += [f"v_cvt_pk_bf16_f32 v{a}, v{a}, v{a+1}", f"v_cvt_pk_bf16_f32 v{a+1}, v{a+2}, v{a+3}",
                  f"buffer_store_dword v{a}, v14, s[12:15], s3 offen offset:{64*i}",
                  f"buffer_store_dword v{a+1}, v15, s[12:15], s3 offen offset:{64*i}"]
        else:
            L += [f"v_cvt_pk_bf16_f32 v{a}, v{a}, v{a+1}", f"v_cvt_pk_bf16_f32 v{a+2}, v{a+2}, v{a+3}",
                  f"v_mov_b32 v{a+1}, 0x00003F80", f"v_mov_b32 v{a+3}, 0x00003F80",
                  f"buffer_store_dwordx2 {vr(a,2)}, v14, s[12:15], s3 offen offset:{128*i}",
                  f"buffer_store_dwordx2 {vr(a+2,2)}, v15, s[12:15], s3 offen offset:{128*i}"]
    if np_ == 4:
        L.append("s_mov_b64 exec, -1")
    return L


def v_tile(T, k, s_head, np_):
    a, b = acc(T, 0), acc(T, 1)
    L = [f"v_cvt_pk_bf16_f32 v{a}, v{a}, v{a+1}", f"v_cvt_pk_bf16_f32 v{a+1}, v{a+2}, v{a+3}",
         f"v_cvt_pk_bf16_f32 v{a+2}, v{b}, v{b+1}", f"v_cvt_pk_bf16_f32 v{a+3}, v{b+2}, v{b+3}"]
    if k == "p":
        L += [f"s_add_u32 s3, s{s_head}, s25", "s_nop 0"]
    else:
        L += [f"s_add_u32 s3, s{s_head}, {k*HB + 32*(k & 1)}", "s_add_u32 s3, s3, s25"]
    L += [f"v_permlane16_swap_b32 v{a}, v{a+2}", f"v_permlane16_swap_b32 v{a+1}, v{a+3}"]
    if k == "p":
        L.append(f"buffer_store_dwordx4 {vr(a,4)}, v{9 if np_ == 8 else 176}, s[12:15], s3 offen")
    else:
        L.append(f"buffer_store_dwordx4 {vr(a,4)}, v8, s[12:15], s3 offen{SC(1)}")
    return L


def last_stage(tA, tB):
    main = lambda T, k, t, sh, n: v_tile(T, k, sh, n) if t == "V" else qk_main(T, k, t == "Q", sh)
    tail = lambda T, t, sh, n: v_tile(T, "p", sh, n) if t == "V" else qk_tail(T, t == "Q", sh, n)
    fin = {T: P for P, (j, T) in enumerate(last_order()) if j == 1} if "hyb" in EXP else {T: 14 + T for T in range(14)}
    epi = {fin[T] + 2: (main(T, T, tA, 26, 8) if T < 8 else main(T, T - 8, tB, 27, 4)) for T in range(12)}
    return stage_body(tA == "V", tB == "V", epi) + ["s_nop 7"] + tail(12, tA, 26, 8) + tail(13, tB, 27, 4)


def gen_k1(e):
    P = "K1"
    e.lab("qkv_kernel")
    e("s_cmp_ge_u32 s2, 256", f"s_cbranch_scc1 {P}_END")
    stamp(e, 0)
    e("s_load_dwordx4 s[24:27], s[0:1], 0", "s_load_dwordx4 s[28:31], s[0:1], 24",
      "s_load_dwordx2 s[32:33], s[0:1], 64")
    e("v_lshrrev_b32 v1, 6, v0", "v_and_b32 v2, 63, v0", "s_and_b32 s16, s2, 1", "v_readfirstlane_b32 s19, v1",
      "s_lshr_b32 s3, s2, 1", "s_and_b32 s3, s3, 1", "s_lshl_b32 s3, s3, 3",
      "s_lshr_b32 s20, s2, 3", "s_and_b32 s17, s20, 7", "s_add_u32 s17, s17, s3",
      "s_lshr_b32 s3, s2, 2", "s_and_b32 s3, s3, 1", "s_lshl_b32 s3, s3, 2",
      "s_lshr_b32 s18, s20, 3", "s_add_u32 s18, s18, s3",
      "s_mul_i32 s44, s18, 432", "s_andn2_b32 s45, s44, 127", "s_sub_u32 s3, s44, s45", "s_cmp_gt_u32 s3, 80",
      "s_cselect_b32 s3, 64, 0", "s_add_u32 s45, s45, s3",
      "s_add_u32 s47, s44, 288", "s_add_u32 s46, s44, 144", "s_cmp_eq_u32 s18, 5",
      "s_cselect_b32 s46, s46, s44", "s_cselect_b32 s47, s44, s47")
    e("s_waitcnt lgkmcnt(0)")
    e("s_cmp_eq_u32 s16, 0",
      "s_cselect_b32 s4, s24, s28", "s_cselect_b32 s5, s25, s29", "s_mov_b32 s6, 2359296", "s_mov_b32 s7, 0x00020000",
      "s_cselect_b32 s8, s26, s30", "s_cselect_b32 s9, s27, s31", "s_mov_b32 s10, 1990656", "s_mov_b32 s11, 0x00020000")
    e("s_cmp_ge_u32 s19, 4", f"s_cbranch_scc1 {P}_LOAD")
    e(f"s_mul_i32 s3, s16, {32*HB}", "s_add_u32 s38, s32, s3", "s_addc_u32 s39, s33, 0")
    srd(e, 12, 38, 39, 32 * HB)
    e("v_and_b32 v3, 15, v2", "v_lshrrev_b32 v13, 4, v2", "v_bfe_u32 v14, v2, 2, 2", "v_and_b32 v15, 3, v2")
    e("v_and_b32 v4, 7, v2", "v_xor_b32 v4, v4, v13", "v_lshlrev_b32 v4, 4, v4", "s_lshl_b32 s3, s19, 5",
      "v_add_u32 v5, s3, v3", f"v_lshl_add_u32 v{VX0}, v5, 7, v4", f"v_xor_b32 v{VX1}, 64, v{VX0}")
    e("v_lshl_add_u32 v1, v13, 2, v14", "v_mul_u32_u24 v1, 1056, v1", f"v_add_u32 v1, {LW}, v1",
      "s_sub_u32 s20, s46, s45", "s_sub_u32 s21, s47, s45",
      "v_lshl_add_u32 v10, v15, 3, v1", f"v_add_u32 v{VWA}, s20, v10", f"v_add_u32 v{VWB}, s21, v10",
      "v_mul_u32_u24 v10, 72, v15", "v_add_u32 v10, v10, v1", "s_add_u32 s20, s20, 32", f"v_add_u32 v{VPA}, s20, v10",
      "v_and_b32 v11, 1, v15", "v_mul_u32_u24 v11, 72, v11", "v_add_u32 v11, v11, v1", "s_add_u32 s21, s21, 32",
      f"v_add_u32 v{VPB}, s21, v11")
    e(*[f"v_mov_b32 v{XS[0]+r}, 0" for r in range(4)], "s_nop 1")
    for T in range(NT):
        for i in range(2):
            e(f"v_mfma_f32_16x16x32_bf16 {vr(acc(T,i),4)}, {vr(XS[0],4)}, {vr(XS[0],4)}, 0")
    for s_col, s_h in ((46, 26), (47, 27)):
        e(f"s_cmp_ge_u32 s{s_col}, 2304", f"s_cselect_b32 s3, 2304, 0", f"s_sub_u32 s{s_h}, s{s_col}, s3",
          f"s_cmp_ge_u32 s{s_h}, 1152", "s_cselect_b32 s3, 1152, 0", f"s_sub_u32 s{s_h}, s{s_h}, s3",
          f"s_mul_i32 s{s_h}, s{s_h}, 1821", f"s_lshr_b32 s{s_h}, s{s_h}, 16", f"s_mul_i32 s{s_h}, s{s_h}, {HB}")
    e("s_lshl_b32 s23, s17, 2", "s_add_u32 s23, s23, s19", "s_lshl_b32 s24, s23, 5", "s_mul_i32 s25, s23, 1152",
      f"s_add_u32 s25, s25, {VO}", "s_lshl_b32 s21, s23, 10", f"s_mov_b32 s22, 0x{f2u(CSCALE):08x}", "s_mov_b32 s23, s22")
    e("v_lshlrev_b32 v12, 4, v2", "v_lshrrev_b32 v14, 4, v2", "v_and_b32 v15, 1, v14", "v_mul_u32_u24 v8, 576, v15",
      "v_lshrrev_b32 v15, 1, v14", "v_mul_u32_u24 v15, 288, v15", "v_add_u32 v8, v8, v15",
      "v_lshrrev_b32 v15, 1, v3", f"s_mov_b32 s3, {HB}", "v_mul_lo_u32 v15, v15, s3", "v_add_u32 v9, v8, v15",
      "v_and_b32 v15, 1, v3", "v_lshl_add_u32 v9, v15, 4, v9",
      "v_bfe_u32 v15, v3, 1, 1", "v_xor_b32 v15, 1, v15", "v_lshl_add_u32 v9, v15, 8, v9",
      "v_mov_b32 v15, 0x40000000", "v_cmp_gt_u32 vcc, 8, v3", "v_lshl_add_u32 v8, v3, 4, v8",
      f"s_mov_b32 s3, {2*HB}", "v_cndmask_b32 v176, v15, v9, vcc", "v_mul_lo_u32 v13, v14, s3")
    if "pf" in EXP:
        e("s_lshl_b32 s3, s19, 1", "s_add_u32 s3, s3, 2", "v_lshrrev_b32 v14, 5, v2", "v_add_u32 v14, s3, v14",
          "v_min_u32 v14, 8, v14",
          "s_lshr_b32 s3, s2, 6", "s_lshl_b32 s3, s3, 5", "s_lshl_b32 s20, s17, 7", "s_add_u32 s3, s3, s20",
          "v_and_b32 v15, 31, v2", "v_add_u32 v15, s3, v15", "v_mul_u32_u24 v15, 1152, v15",
          "v_lshl_add_u32 v15, v14, 7, v15", "buffer_load_dword v176, v15, s[4:7], 0 offen",
          "s_lshr_b32 s3, s2, 3", "s_and_b32 s3, s3, 7", "s_lshl_b32 s3, s3, 3",
          "v_bfe_u32 v15, v2, 2, 3", "v_lshl_add_u32 v15, v14, 6, v15", "v_add_u32 v15, s3, v15",
          "v_mul_u32_u24 v15, 3456, v15", "s_andn2_b32 s3, s45, 127", "v_add_u32 v15, s3, v15",
          "v_and_b32 v14, 3, v2", "v_lshl_add_u32 v14, v14, 7, v15",
          "buffer_load_dword v177, v14, s[8:11], 0 offen",
          "s_bitcmp1_b32 s45, 6", f"s_cbranch_scc0 {P}_NOPF5",
          "buffer_load_dword v178, v15, s[8:11], 0 offen offset:512")
        e.lab(f"{P}_NOPF5")
    e("s_mov_b32 s48, 0", f"s_mov_b32 s50, {SB}", "s_mov_b32 s55, 0x124", f"s_mov_b32 s56, {(-2*SB) & 0xffffffff}",
      f"s_mov_b32 s57, {SB}")
    stamp(e, 1)
    e("s_barrier")
    stamp(e, 2)
    e(*xread(0))
    for T in range(5):
        e(*wread(0, T))
    e("s_waitcnt lgkmcnt(0)")
    e("s_cmp_ge_u32 s18, 6", f"s_cbranch_scc1 {P}_LSS", "s_cmp_eq_u32 s18, 5", f"s_cbranch_scc1 {P}_LSN")
    for nm, swA, swB in (("NN", False, False), ("SN", True, False), ("SS", True, True)):
        e.lab(f"{P}_L{nm}")
        e(*stage_body(swA, swB))
        e("s_add_u32 s48, s48, 1", "s_bitcmp1_b32 s55, s48", "s_cselect_b32 s50, s56, s57")
        e("s_cmp_lt_u32 s48, 8", f"s_cbranch_scc1 {P}_L{nm}")
        if nm == "NN":
            e("s_cmp_lt_u32 s18, 2", f"s_cbranch_scc1 {P}_EQQ", "s_cmp_eq_u32 s18, 2", f"s_cbranch_scc1 {P}_EQK",
              f"s_branch {P}_EKK")
        else:
            e(f"s_branch {P}_E{'VK' if nm == 'SN' else 'VV'}")
    for nm, tA, tB in (("QQ", "Q", "Q"), ("QK", "Q", "K"), ("KK", "K", "K"), ("VK", "V", "K"), ("VV", "V", "V")):
        e.lab(f"{P}_E{nm}")
        stamp(e, 11)
        e(*last_stage(tA, tB))
        e(f"s_branch {P}_FIN")
    e.lab(f"{P}_LOAD")
    e("s_sub_u32 s20, s19, 4")
    e("v_lshrrev_b32 v3, 3, v2", "v_and_b32 v4, 7, v2", "v_xor_b32 v4, v4, v3", "v_lshlrev_b32 v4, 4, v4",
      "s_lshl_b32 s3, s20, 5", "v_add_u32 v5, s3, v3", "v_mul_u32_u24 v8, 1152, v5", "v_add_u32 v8, v8, v4")
    e("s_mul_i32 s40, s17, 147456", "s_lshl_b32 s41, s20, 12")
    e("s_lshr_b32 s37, s2, 3", "s_and_b32 s37, s37, 7", "s_lshr_b32 s3, s2, 6", "s_lshl_b32 s3, s3, 1",
      "s_add_u32 s37, s37, s3")
    for _ in range(13 // (9 - RK) if RK < 9 else 0):
        e(f"s_cmp_ge_u32 s37, {9 - RK}", f"s_cselect_b32 s3, {9 - RK}, 0", "s_sub_u32 s37, s37, s3")
    e(f"s_add_u32 s37, s37, {RK}", "s_mov_b32 s34, s37" if RK == 0 else "s_mov_b32 s34, 0")
    e("s_lshl_b32 s35, s34, 7", "s_add_u32 s35, s35, s40",
      "s_add_u32 m0, s41, 0", "s_mul_i32 s36, s34, 221184", "buffer_load_dwordx4 v8, s[4:7], s35 offen lds")
    e("v_lshrrev_b32 v3, 5, v2", "v_mul_u32_u24 v3, 13824, v3", "v_and_b32 v4, 31, v2", "v_lshl_add_u32 v3, v4, 4, v3",
      "v_add_u32 v9, s45, v3")
    e("s_mul_i32 s42, s20, 8448", f"s_add_u32 s42, s42, {LW}", "s_mul_i32 s44, s20, 55296", "s_add_u32 s36, s36, s44")

    def issue(s, skip_first=False):
        base = (s % NB) * SB
        for i in range(4):
            if skip_first and i == 0:
                continue
            e(f"s_add_u32 m0, s41, {base + 1024*i}", f"s_add_u32 s43, s35, {9216*i}",
              "buffer_load_dwordx4 v8, s[4:7], s43 offen lds")
        for u in range(8):
            e(f"s_add_u32 m0, s42, {base + 1056*u}",
              f"s_add_u32 s43, s36, {27648*(u >> 2) + 3456*(u & 3)}",
              "buffer_load_dwordx4 v9, s[8:11], s43 offen lds")
        if s < 8:
            if s + 1 < RK:
                e(f"s_mov_b32 s34, {s + 1}")
            elif s + 1 == RK:
                e("s_mov_b32 s34, s37")
            else:
                e("s_add_u32 s34, s34, 1", "s_cmp_eq_u32 s34, 9", f"s_cselect_b32 s34, {RK}, s34")
            e("s_lshl_b32 s35, s34, 7", "s_add_u32 s35, s35, s40", "s_mul_i32 s36, s34, 221184", "s_add_u32 s36, s36, s44")

    issue(0, True)
    issue(1)
    stamp(e, 1)
    e(f"s_waitcnt vmcnt({NDMA})")
    stamp(e, 2)
    e("s_barrier")
    issue(2)
    for s in range(8):
        left = max(min(s + 2, 8) - (s + 1), 0)
        e(f"s_waitcnt vmcnt({left*NDMA})")
        stamp(e, 3 + s)
        e("s_barrier")
        if s + 3 <= 8:
            issue(s + 3)
    e.lab(f"{P}_FIN")
    if PROF:
        stamp(e, 13)
        e("s_waitcnt vmcnt(0)")
        stamp(e, 14)
        stamp_dump(e, 0, 15, P)
    e.lab(f"{P}_END")
    e("s_endpgm")
    return dict(name="qkv_kernel", vgpr=180, grid=256, lds=NB * SB)
```

```python
from gen import *

EXP = os.environ.get("EXP", "")
LANE, L16, AK1, AK2, AV, IDX = 1, 2, 3, 4, 5, 6
T0 = 7
Q1A, Q1B_, Q2A, Q2B_ = [16, 20], 24, [28, 30], 32
K1B = [34, 38]
K2B = [42, 44]
AK2L, AVL = 46, 47
VB = [[48, 52], [56, 60]]
SA, SB_ = [64, 80], [96, 112]
OA, OB = 128, 144
MF, ML = 160, 176
OBS = 192
ADA, ADB = 197, 198
SK1, SK2 = 200, 204
G2, GV = 206, 207
ZZ = 208
LMSK = 155648
LK1, LV, LK2 = 0, 65536, 139264
VMASK, LOW = 40, 42
NEGF = 0xF1800000


def mf1(S, kb, Q, C):
    c = "0" if C is None else vr(C, 16)
    return f"v_mfma_f32_32x32x16_bf16 {vr(S,16)}, {vr(K1B[kb],4)}, {vr(Q,4)}, {c}"


def mf2(S, kb, Q):
    return f"v_mfma_f32_32x32x8bf16_1k {vr(S,16)}, {vr(K2B[kb],2)}, {vr(Q,2)}, {vr(S,16)}"


def pv(O, vb, half, S):
    return f"v_smfmac_f32_32x32x32_bf16 {vr(O,16)}, {vr(VB[vb][half],4)}, {vr(S+8*half,8)}, v{IDX}"


def rdK(kb, t):
    return [f"ds_read_b128 {vr(K1B[kb],4)}, v{AK1} offset:{1024*t}",
            f"ds_read_b64 {vr(K2B[kb],2)}, v{AK2} offset:{256*t}"]


def rdV(vb, t):
    return [f"s_mov_b64 exec, s[{VMASK}:{VMASK+1}]",
            f"ds_read_b128 {vr(VB[vb][0],4)}, v{AV} offset:{1152*t}",
            f"ds_read_b128 {vr(VB[vb][1],4)}, v{AV} offset:{1152*t+576}",
            "s_mov_b64 exec, -1"]


def b_iter(e, t, prev, nxt, nxt2, Cn, extra):
    p = t & 1
    S, N = SA[p], SA[p ^ 1]
    ex = lambda r: e(f"v_exp_f32 v{S+r}, v{S+r}")
    ex(0); ex(1)
    if prev:
        e(pv(OA, p ^ 1, 1, N))
    ex(2); ex(3)
    if extra:
        e(*extra[0])
    ex(4); ex(5)
    e("s_waitcnt lgkmcnt(0)")
    if nxt:
        e(mf1(N, p ^ 1, Q1B_, Cn))
    ex(6); ex(7)
    if len(extra) > 1:
        e(*extra[1])
    ex(8); ex(9)
    if nxt:
        e(mf2(N, p ^ 1, Q2B_))
        e(*(rdK(p, t + 2) if nxt2 else ["s_nop 0", "s_nop 0"]))
        e(*rdV(p ^ 1, t + 1))
    for r in (10, 11, 12, 13):
        ex(r)
    e(pv(OA, p, 0, S))
    ex(14); ex(15)


def a_step(e, s):
    p = s & 1
    n = p ^ 1
    M = [pv(OA, n, 1, SA[n]), mf1(SA[n], n, Q1A[0], None), mf2(SA[n], n, Q2A[0]), pv(OA, p, 0, SA[p]),
         pv(OB, n, 1, SB_[n]), mf1(SB_[n], n, Q1A[1], None), mf2(SB_[n], n, Q2A[1]), pv(OB, p, 0, SB_[p])]
    k = rdK(p, 2 * (s + 2))
    v = rdV(n, 2 * (s + 1))
    after = {4: ["s_waitcnt lgkmcnt(0)"], 7: [k[0]], 10: [k[1]], 18: v}
    regs = [SA[p] + r for r in range(16)] + [SB_[p] + r for r in range(16)]
    for i, r in enumerate(regs):
        if "noalt" not in EXP and i in (0, 16):
            e(f"s_setprio {1 if i == 0 else 0}")
        e(f"v_exp_f32 v{r}, v{r}")
        e(*after.get(i, []))
        if i % 4 == 1:
            e(M[i // 4])


def check(e, slow_label, done_label):
    a, b, t = T0, T0 + 1, T0 + 2
    e(f"v_mov_b32 v{a}, v{OA+10}", f"v_mov_b32 v{b}, v{OA+10}", f"v_mul_f32 v{t}, 0, v{OA}", "s_nop 0",
      f"v_permlane32_swap_b32 v{a}, v{b}")
    for r in range(1, 10):
        e(f"v_fmac_f32 v{t}, 0, v{OA+r}")
    e(f"v_add_f32 v{t}, v{a}, v{t}",
      f"s_mov_b32 s3, 0x{f2u(2.0**-100):08x}", f"v_cmp_le_f32 vcc, s3, v{t}",
      f"s_mov_b32 s3, 0x{f2u(2.0**115):08x}", f"v_cmp_ge_f32 s[44:45], s3, v{t}",
      f"v_rcp_f32 v{a}, v{a}", "s_nop 2", "s_and_b64 vcc, vcc, s[44:45]", "s_cmp_eq_u64 vcc, -1",
      f"s_cbranch_scc0 {slow_label}")
    e.lab(done_label)


def normalize(e, dst):
    a = T0
    for r in range(10):
        e(f"v_mul_f32 v{OA+r}, v{a}, v{OA+r}")
    for k in range(5):
        e(f"v_cvt_pk_bf16_f32 v{dst+k}, v{OA+2*k}, v{OA+2*k+1}")
    e("s_nop 0", f"v_permlane32_swap_b32 v{dst}, v{dst+2}", f"v_permlane32_swap_b32 v{dst+1}, v{dst+3}")


def slow_path(e, P):
    m, t2 = T0 + 3, T0 + 4
    S = SA[0]
    d = vr(S, 16)
    e.lab(f"{P}_SLOW")
    e(f"v_mov_b32 v{m}, 0xff7fffff")
    for r in range(16):
        e(f"v_mov_b32 v{OA+r}, 0")
    for ps in range(2):
        lab = f"{P}_SL{ps}"
        e("s_mov_b32 s46, s49")
        e.lab(lab)
        e("s_lshl_b32 s47, s46, 10", f"s_add_u32 s47, s47, {K1O}",
          f"buffer_load_dwordx4 {vr(K1B[0],4)}, v{L16}, s[56:59], s47 offen",
          "s_lshl_b32 s47, s46, 8", f"s_add_u32 s47, s47, {K2O}",
          f"buffer_load_dwordx2 {vr(K2B[0],2)}, v{G2}, s[56:59], s47 offen")
        if ps == 1:
            e("s_mul_i32 s47, s46, 1152", f"s_add_u32 s47, s47, {VO}",
              f"s_mov_b64 exec, s[{VMASK}:{VMASK+1}]",
              f"buffer_load_dwordx4 {vr(VB[0][0],4)}, v{GV}, s[56:59], s47 offen",
              f"buffer_load_dwordx4 {vr(VB[0][1],4)}, v{GV}, s[56:59], s47 offen offset:576",
              "s_mov_b64 exec, -1")
        e("s_waitcnt vmcnt(0)")
        e("s_cmp_eq_u32 s46, s51", f"s_cbranch_scc1 {lab}_F",
          "s_cmp_eq_u32 s46, s52", f"s_cbranch_scc1 {lab}_L",
          mf1(S, 0, Q1B_, None), f"s_branch {lab}_J")
        e.lab(f"{lab}_F")
        e(mf1(S, 0, Q1B_, MF), f"s_branch {lab}_J")
        e.lab(f"{lab}_L")
        e(mf1(S, 0, Q1B_, ML))
        e.lab(f"{lab}_J")
        e(mf2(S, 0, Q2B_), "s_nop 7", "s_nop 7")
        if ps == 0:
            for r in range(0, 16, 2):
                e(f"v_max3_f32 v{m}, v{S+r}, v{S+r+1}, v{m}")
        else:
            for r in range(16):
                e(f"v_sub_f32 v{S+r}, v{S+r}, v{m}")
            for r in range(16):
                e(f"v_exp_f32 v{S+r}, v{S+r}")
            e("s_nop 1", pv(OA, 0, 0, S), pv(OA, 0, 1, S), "s_nop 7", "s_nop 7")
        e("s_add_u32 s46, s46, 1", "s_cmp_le_u32 s46, s50", f"s_cbranch_scc1 {lab}")
        if ps == 0:
            e(f"v_mov_b32 v{t2}, v{m}", "s_nop 1", f"v_permlane32_swap_b32 v{m}, v{t2}", "s_nop 1",
              f"v_max_f32 v{m}, v{m}, v{t2}")
    a, b = T0, T0 + 1
    e(f"v_mov_b32 v{a}, v{OA+10}", f"v_mov_b32 v{b}, v{OA+10}", "s_nop 1",
      f"v_permlane32_swap_b32 v{a}, v{b}", "s_nop 1", f"v_rcp_f32 v{a}, v{a}", "s_nop 1")
    e("s_cmp_eq_u32 s48, 0", f"s_cbranch_scc1 {P}_DONEB", f"s_branch {P}_DONEA")


def dma(srdreg, lds, src_s, src_c):
    ls, lc = lds
    return [f"s_add_u32 m0, s{ls}, {lc}", f"s_add_u32 s3, s{src_s}, {src_c}",
            f"buffer_load_dwordx4 v{L16}, s[{srdreg}:{srdreg+3}], s3 offen lds"]


def gen_k2(e):
    P = "K2"
    e.lab("attn_kernel")
    e("s_cmp_ge_u32 s2, 256", f"s_cbranch_scc1 {P}_END")
    stamp(e, 0)
    e("s_setprio 3")
    e("s_load_dwordx2 s[32:33], s[0:1], 64", "s_load_dwordx2 s[36:37], s[0:1], 16", "s_load_dwordx2 s[38:39], s[0:1], 40")
    e(f"v_lshrrev_b32 v{T0}, 6, v0", f"v_and_b32 v{LANE}, 63, v0",
      "s_and_b32 s3, s2, 7", f"v_readfirstlane_b32 s19, v{T0}", "s_lshl_b32 s3, s3, 2",
      "s_lshr_b32 s16, s2, 3", "s_and_b32 s16, s16, 3", "s_add_u32 s16, s16, s3", "s_lshr_b32 s17, s2, 5",
      f"v_lshlrev_b32 v{L16}, 4, v{LANE}", f"s_mul_i32 s3, s16, {HB}",
      "s_add_u32 s23, s17, 7", "s_and_b32 s23, s23, 7", "s_lshl_b32 s20, s19, 10")
    ii, i4, hh = T0, T0 + 1, T0 + 2
    e("s_waitcnt lgkmcnt(0)")
    stamp(e, 13)
    e("s_add_u32 s34, s32, s3", "s_addc_u32 s35, s33, 0")
    e(f"s_add_u32 s8, s34, {32*HB}", "s_addc_u32 s9, s35, 0", f"s_mov_b32 s10, {HB}", "s_mov_b32 s11, 0x00020000")
    SPLIT = "split" in EXP

    def win_k(slot, ch):
        e(f"s_lshl_b32 s26, s{ch}, 13", "s_add_u32 s26, s26, s20")
        e(*dma(8, (20, LK1 + slot * 8192), 26, K1O))

    def win_v(slot, ch):
        e(f"s_mul_i32 s26, s{ch}, 9216", "s_add_u32 s27, s26, s20")
        e(*dma(8, (20, LV + slot * 9216), 27, VO))
        e(f"s_cmp_eq_u32 s19, {slot-6}", f"s_cbranch_scc0 {P}_BV{slot}")
        e(f"s_mov_b32 m0, {LV + slot*9216 + 8192}", f"s_add_u32 s3, s26, {VO + 8192}",
          f"buffer_load_dwordx4 v{L16}, s[8:11], s3 offen lds")
        e.lab(f"{P}_BV{slot}")

    for slot, ch in ((7, 17), (6, 23)):
        win_k(slot, ch)
        if not SPLIT:
            win_v(slot, ch)
    stamp(e, 14)
    e("s_lshr_b32 s21, s19, 2", "s_and_b32 s22, s19, 3", "s_lshl_b32 s22, s22, 1", "s_add_u32 s22, s22, s21",
      "s_lshl_b32 s18, s17, 3", "s_add_u32 s18, s18, s22",
      f"v_and_b32 v{ii}, 31, v{LANE}", f"v_and_b32 v{i4}, 32, v{LANE}", f"v_lshlrev_b32 v{i4}, 26, v{i4}",
      f"v_lshl_or_b32 v{i4}, v{ii}, 2, v{i4}",
      "s_lshl_b32 s24, s18, 10", "s_lshl_b32 s25, s18, 7", f"s_add_u32 s25, s25, {Q2O}")
    e(f"buffer_load_dwordx4 {vr(Q1B_,4)}, v{L16}, s[8:11], s24 offen",
      f"buffer_load_dword v{Q2B_}, v{i4}, s[8:11], s25 offen")
    e("s_cmp_lt_u32 s19, 4", f"s_cbranch_scc1 {P}_BK2D")
    e("s_and_b32 s28, s19, 1", "s_lshl_b32 s28, s28, 10", "s_cmp_lt_u32 s19, 6",
      "s_cselect_b32 s29, s23, s17", "s_cselect_b32 s26, 0, 2048",
      f"s_add_u32 s26, s26, {LK2 + 6*2048}", "s_add_u32 s26, s26, s28", "s_lshl_b32 s29, s29, 11",
      "s_add_u32 s29, s29, s28", f"s_add_u32 s29, s29, {K2O}")
    e("s_cmp_lt_u32 s19, 6", "s_cselect_b32 s27, 1, 0", "s_cmp_eq_u32 s17, 0", "s_cselect_b32 s27, s27, 0",
      "s_cmp_eq_u32 s27, 1", f"s_cbranch_scc1 {P}_BK2F")
    e("s_mov_b32 m0, s26", "s_nop 0", f"buffer_load_dwordx4 v{L16}, s[8:11], s29 offen lds", f"s_branch {P}_BK2D")
    e.lab(f"{P}_BK2F")
    e(f"v_add_u32 v10, s26, v{L16}", "v_mov_b32 v12, 0", "v_mov_b32 v13, 0x3F803F80", "v_mov_b32 v14, 0",
      "v_mov_b32 v15, 0x3F803F80", "ds_write_b128 v10, v[12:15]")
    e.lab(f"{P}_BK2D")
    if SPLIT:
        for slot, ch in ((7, 17), (6, 23)):
            win_v(slot, ch)
    srd(e, 4, 34, 35, HB)
    stamp(e, 15)
    e("s_setprio 0")
    e(f"s_add_u32 s34, s32, {OO}", "s_addc_u32 s35, s33, 0")
    srd(e, 12, 34, 35, 2 * 2359296)
    e(f"s_mov_b32 s{VMASK}, 0x0003FFFF", f"s_mov_b32 s{VMASK+1}, 0x0003FFFF",
      f"s_mov_b32 s{LOW}, -1", f"s_mov_b32 s{LOW+1}, 0")
    e(f"v_lshrrev_b32 v{hh}, 5, v{LANE}", f"v_mov_b32 v{IDX}, 0xDDDDDDDD",
      f"v_mov_b32 v{ZZ}, 0", f"v_mov_b32 v{ZZ+1}, 0", f"v_mov_b32 v{Q2A[0]+1}, 0", f"v_mov_b32 v{Q2A[1]+1}, 0",
      f"v_mov_b32 v{Q2B_+1}, 0")
    e("s_lshr_b32 s24, s19, 1", "s_and_b32 s25, s19, 1", "s_lshl_b32 s26, s24, 3", "s_lshl_b32 s27, s25, 1",
      "s_add_u32 s26, s26, s27",
      f"v_lshlrev_b32 v{T0+3}, 2, v{hh}", f"v_sub_u32 v{T0+3}, v{ii}, v{T0+3}",
      f"v_mov_b32 v{T0+4}, 0x{NEGF:08x}",
      f"v_cmp_le_i32 vcc, s26, v{T0+3}", f"v_cmp_lt_i32 s[44:45], s26, v{T0+3}",
      "s_lshl_b32 s24, s24, 10", "s_lshl_b32 s25, s25, 3", "s_add_u32 s24, s24, s25", f"s_add_u32 s24, s24, {LMSK}",
      f"v_cndmask_b32 v12, v{T0+4}, v{ZZ}, vcc", f"v_cndmask_b32 v13, v{T0+4}, v{ZZ}, s[44:45]",
      f"v_cndmask_b32 v14, v{ZZ}, v{T0+4}, vcc", f"v_cndmask_b32 v15, v{ZZ}, v{T0+4}, s[44:45]",
      f"v_add_u32 v{T0+3}, s24, v{L16}",
      f"ds_write_b64 v{T0+3}, v[12:13]", f"ds_write_b64 v{T0+3}, v[14:15] offset:4096")
    e(f"v_mov_b32 v{T0+4}, 0x3F803F80", f"v_cmp_eq_u32 vcc, 18, v{ii}",
      f"v_lshlrev_b32 v{G2}, 3, v{ii}", f"v_add_u32 v{AK2L}, {LK2}, v{G2}",
      f"v_cndmask_b32 v{T0+3}, v{ZZ}, v{T0+4}, vcc",
      f"v_mfma_f32_32x32x8bf16_1k {vr(OA,16)}, {vr(ZZ,2)}, {vr(ZZ,2)}, 0")
    for r in range(16):
        e(f"v_mov_b32 v{VB[0][0]+r}, v{T0+3}")
    e(f"v_mul_u32_u24 v{GV}, 288, v{hh}", f"v_lshl_add_u32 v{GV}, v{ii}, 4, v{GV}", f"v_add_u32 v{AVL}, {LV}, v{GV}")
    e("s_add_u32 s24, s22, 48", "s_lshl_b32 s25, s24, 10", f"v_add_u32 v{AK1}, s25, v{L16}",
      "s_lshl_b32 s25, s24, 8", f"v_add_u32 v{AK2}, s25, v{AK2L}",
      "s_mul_i32 s25, s24, 1152", f"v_add_u32 v{AV}, s25, v{AVL}")
    e("s_lshl_b32 s24, s18, 5", f"v_add_u32 v{T0+6}, s24, v{ii}", "s_lshl_b32 s24, s16, 16",
      f"v_lshlrev_b32 v{ADA}, 5, v{T0+6}", f"v_lshl_add_u32 v{ADA}, v{hh}, 4, v{ADA}", f"v_add_u32 v{ADA}, s24, v{ADA}",
      "s_lshl_b32 s24, s16, 13", "s_add_u32 s24, s24, 2097152",
      f"v_lshlrev_b32 v{ADB}, 2, v{T0+6}", f"v_add_u32 v{ADB}, s24, v{ADB}", "s_mov_b32 s54, 2359296")
    e("s_cmp_eq_u32 s18, 0", "s_cselect_b32 s24, 8, 7", "s_lshl_b32 s25, s24, 10", f"v_add_u32 v{T0+6}, s25, v{AK1}",
      "s_lshl_b32 s25, s24, 8", f"v_add_u32 v{T0+7}, s25, v{AK2}", f"v_add_u32 v{T0+5}, {LMSK}, v{L16}")
    stamp(e, 1)
    if SPLIT:
        e("s_cmp_lt_u32 s19, 2", f"s_cbranch_scc1 {P}_W3", "s_waitcnt vmcnt(2) lgkmcnt(0)", f"s_branch {P}_W2")
        e.lab(f"{P}_W3")
        e("s_waitcnt vmcnt(3) lgkmcnt(0)")
        e.lab(f"{P}_W2")
    else:
        e("s_waitcnt vmcnt(0) lgkmcnt(0)")
    stamp(e, 2)
    e("s_barrier")
    stamp(e, 3)
    e(f"ds_read_b128 {vr(SK1,4)}, v{T0+6}", f"ds_read_b64 {vr(SK2,2)}, v{T0+7}")
    e(*rdK(0, 0), *rdK(1, 1), *([] if SPLIT else rdV(0, 0)))
    for q in range(4):
        e(f"ds_read_b128 {vr(MF+4*q,4)}, v{T0+5} offset:{4096+1024*q}")
    rdML = [f"ds_read_b128 {vr(ML+4*q,4)}, v{T0+5} offset:{1024*q}" for q in range(4)]
    e("s_sub_u32 s26, s18, s21", "s_lshl_b32 s24, s26, 10", "s_lshl_b32 s25, s26, 7", f"s_add_u32 s25, s25, {Q2O}")
    e(f"buffer_load_dwordx4 {vr(Q1A[0],4)}, v{L16}, s[4:7], s24 offen",
      f"buffer_load_dwordx4 {vr(Q1A[1],4)}, v{L16}, s[4:7], s24 offen offset:1024",
      f"buffer_load_dword v{Q2A[0]}, v{i4}, s[4:7], s25 offen",
      f"buffer_load_dword v{Q2A[1]}, v{i4}, s[4:7], s25 offen offset:128")
    kd_ = lambda c: dma(4, (20, LK1 + 8192 * c), 20, K1O + 8192 * c)
    vd_ = lambda c: dma(4, (20, LV + 8192 * c), 20, VO + 8192 * c)
    order = [kd_(0), vd_(0), dma(4, (20, LK2), 20, K2O), kd_(1), vd_(1), vd_(2), kd_(2), vd_(3), kd_(3), vd_(4)]
    e(f"s_waitcnt lgkmcnt({8 if SPLIT else 10})")
    d = vr(SA[0], 16)
    e("s_cmp_eq_u32 s18, 0", f"s_cbranch_scc1 {P}_SMPM",
      f"v_mfma_f32_32x32x16_bf16 {d}, {vr(SK1,4)}, {vr(Q1B_,4)}, 0", *rdML, f"s_branch {P}_SMPJ")
    e.lab(f"{P}_SMPM")
    e(*rdML, "s_waitcnt lgkmcnt(0)")
    e(f"v_mfma_f32_32x32x16_bf16 {d}, {vr(SK1,4)}, {vr(Q1B_,4)}, {vr(ML,16)}")
    e.lab(f"{P}_SMPJ")
    e(f"v_mfma_f32_32x32x8bf16_1k {d}, {vr(SK2,2)}, {vr(Q2B_,2)}, {d}")
    e(*order[0])
    order = order[1:]
    e("s_nop 7", "s_nop 3")
    S = SA[0]
    m, t2 = T0 + 3, T0 + 4
    e(f"v_max3_f32 v{m}, v{S}, v{S+1}, v{S+2}")
    for r in range(3, 15, 2):
        e(f"v_max3_f32 v{m}, v{S+r}, v{S+r+1}, v{m}")
    e(f"v_max_f32 v{m}, v{S+15}, v{m}", f"v_mov_b32 v{t2}, v{m}", "s_nop 1",
      f"v_permlane32_swap_b32 v{m}, v{t2}", "s_nop 1", f"v_max_f32 v{m}, v{m}, v{t2}",
      f"v_sub_f32 v{m}, 0x{f2u(-90.0):08x}, v{m}", f"v_lshrrev_b32 v{m}, 16, v{m}",
      f"s_mov_b64 exec, s[{LOW}:{LOW+1}]", f"v_or_b32 v{Q2B_+1}, 0x{NEGF:08x}, v{m}", "s_mov_b64 exec, -1",
      "s_waitcnt lgkmcnt(0)", "s_nop 0")
    e(mf1(SA[0], 0, Q1B_, MF), mf2(SA[0], 0, Q2B_))
    if SPLIT:
        e("s_waitcnt vmcnt(5)", "s_barrier", *rdV(0, 0), "s_nop 7", "s_nop 1")
    else:
        e("s_nop 7", "s_nop 7")
    stamp(e, 4)
    for t in range(9):
        extra = order[:1]
        order = order[1:]
        if "bprio" in EXP:
            e(f"s_cmp_eq_u32 s21, {t & 1}", f"s_cbranch_scc1 {P}_BP{t}", "s_setprio 0", f"s_branch {P}_BQ{t}")
            e.lab(f"{P}_BP{t}")
            e("s_setprio 1")
            e.lab(f"{P}_BQ{t}")
        if "byoung" in EXP and t == 0:
            e("s_cmp_eq_u32 s21, 0", f"s_cbranch_scc1 {P}_BY", "s_setprio 1")
            e.lab(f"{P}_BY")
        b_iter(e, t, t > 0, t < 8, t < 7, ML if t == 7 else None, extra)
    assert not order
    if "bprio" in EXP or "byoung" in EXP:
        e("s_setprio 0")
    stamp(e, 5)
    e("s_nop 1", pv(OA, 0, 1, SA[0]), "s_nop 7", "s_nop 7")
    e("s_mov_b32 s56, s8", "s_mov_b32 s57, s9", f"s_mov_b32 s58, {HB}", "s_mov_b32 s59, 0x00020000",
      "s_mov_b32 s48, 0", "s_sub_u32 s51, s18, 8", "s_max_i32 s49, s51, 0", "s_mov_b32 s50, s18",
      "s_mov_b32 s52, s18")
    check(e, f"{P}_SLOWB", f"{P}_DONEB")
    normalize(e, OBS)
    stamp(e, 6)
    e("s_waitcnt vmcnt(0)")
    stamp(e, 7)
    e(f"buffer_store_dwordx4 {vr(OBS,4)}, v{ADA}, s[12:15], s54 offen{SC(2)}",
      f"s_mov_b64 exec, s[{LOW}:{LOW+1}]", f"buffer_store_dword v{OBS+4}, v{ADB}, s[12:15], s54 offen",
      "s_mov_b64 exec, -1")
    e("s_barrier")
    stamp(e, 8)
    e("s_lshl_b32 s24, s21, 10", f"v_add_u32 v{AK1}, s24, v{L16}", "s_lshl_b32 s24, s21, 8",
      f"v_add_u32 v{AK2}, s24, v{AK2L}", "s_mul_i32 s24, s21, 1152", f"v_add_u32 v{AV}, s24, v{AVL}")
    e(*rdK(0, 0), *rdK(1, 2), *rdV(0, 0))
    for R in (SA[1], SB_[1], OA, OB):
        e(f"v_mfma_f32_32x32x8bf16_1k {vr(R,16)}, {vr(ZZ,2)}, {vr(ZZ,2)}, 0")
    e("s_waitcnt lgkmcnt(0)")
    e(mf1(SA[0], 0, Q1A[0], None), mf1(SB_[0], 0, Q1A[1], None), mf2(SA[0], 0, Q2A[0]), mf2(SB_[0], 0, Q2A[1]),
      "s_mov_b32 s47, 0", "s_nop 3")
    e(f"s_add_u32 s53, s20, {4*8192}")
    e(*dma(4, (20, LK2 + 8192), 20, K2O + 8192))
    e("s_mov_b32 m0, s53", f"s_add_u32 s3, s53, {K1O}", f"buffer_load_dwordx4 v{L16}, s[4:7], s3 offen lds",
      f"s_add_u32 m0, s53, {LV + 8192}", f"s_add_u32 s3, s53, {VO + 8192}",
      f"buffer_load_dwordx4 v{L16}, s[4:7], s3 offen lds", "s_add_u32 s53, s53, 8192")
    stamp(e, 9)
    if "prio" in EXP:
        e("s_cmp_lt_u32 s19, 4", f"s_cbranch_scc1 {P}_NOPRIO", "s_setprio 1")
        e.lab(f"{P}_NOPRIO")
    rnd = ["s_mov_b32 m0, s53", f"s_add_u32 s3, s53, {K1O}", f"buffer_load_dwordx4 v{L16}, s[4:7], s3 offen lds",
           f"s_add_u32 m0, s53, {LV + 8192}", f"s_add_u32 s3, s53, {VO + 8192}",
           f"buffer_load_dwordx4 v{L16}, s[4:7], s3 offen lds", "s_add_u32 s53, s53, 8192"]
    if "nowopf" not in EXP:
        e("s_cmp_eq_u32 s19, 0", f"s_cbranch_scc0 {P}_NOWO",
          "s_cmp_lt_u32 s2, 128", "s_cselect_b32 s36, s36, s38", "s_cselect_b32 s37, s37, s39",
          "s_mov_b32 s38, 663552", "s_mov_b32 s39, 0x00020000",
          "s_and_b32 s3, s2, 127", "s_mul_i32 s3, s3, 5184", f"v_lshlrev_b32 v{T0}, 6, v{LANE}",
          f"buffer_load_dword v210, v{T0}, s[36:39], s3 offen",
          f"buffer_load_dword v211, v{T0}, s[36:39], s3 offen offset:4032")
        e.lab(f"{P}_NOWO")
    e.lab(f"{P}_ALOOP")
    e("s_cmp_lt_u32 s47, 3", f"s_cbranch_scc0 {P}_NODMA", *rnd, f"s_branch {P}_NOBAR")
    e.lab(f"{P}_NODMA")
    e("s_cmp_eq_u32 s47, 3", f"s_cbranch_scc0 {P}_NOBAR", "s_waitcnt vmcnt(0)", "s_barrier")
    e.lab(f"{P}_NOBAR")
    for s in range(4):
        a_step(e, s)
    e(f"v_add_u32 v{AK1}, 8192, v{AK1}", f"v_add_u32 v{AK2}, 2048, v{AK2}", f"v_add_u32 v{AV}, 9216, v{AV}",
      "s_add_u32 s47, s47, 1", "s_cmp_lt_u32 s47, 8", f"s_cbranch_scc1 {P}_ALOOP")
    stamp(e, 10)
    e(pv(OA, 1, 1, SA[1]), pv(OB, 1, 1, SB_[1]), "s_setprio 0")
    e("s_mul_i32 s24, s19, 3072", f"v_add_u32 v{T0+5}, s24, v{L16}", "s_xor_b32 s25, s19, 4",
      "s_mul_i32 s25, s25, 3072", f"v_add_u32 v{T0+6}, s25, v{L16}", "s_waitcnt lgkmcnt(0)", "s_nop 7", "s_nop 3",
      "s_cmp_eq_u32 s21, 0", f"s_cbranch_scc0 {P}_XB")
    for j in range(3):
        e(f"ds_write_b128 v{T0+5}, {vr(OB+4*j,4)} offset:{1024*j}")
    e(f"s_branch {P}_XJ")
    e.lab(f"{P}_XB")
    for j in range(3):
        e(f"ds_write_b128 v{T0+5}, {vr(OA+4*j,4)} offset:{1024*j}")
    e("s_nop 2")
    for r in range(12):
        e(f"v_mov_b32 v{OA+r}, v{OB+r}")
    for r in range(4):
        e(f"v_mov_b32 v{Q1A[0]+r}, v{Q1A[1]+r}")
    e(f"v_mov_b32 v{Q2A[0]}, v{Q2A[1]}")
    e.lab(f"{P}_XJ")
    e("s_waitcnt lgkmcnt(0)", "s_barrier")
    for j in range(3):
        e(f"ds_read_b128 {vr(OB+4*j,4)}, v{T0+6} offset:{1024*j}")
    e("s_mov_b32 s56, s4", "s_mov_b32 s57, s5", f"s_mov_b32 s58, {HB}", "s_mov_b32 s59, 0x00020000",
      "s_mov_b32 s48, 1", "s_mov_b32 s49, 0", "s_mov_b32 s50, 63", "s_mov_b32 s51, -1", "s_mov_b32 s52, -1")
    e("s_waitcnt lgkmcnt(0)")
    for r in range(11):
        e(f"v_add_f32 v{OA+r}, v{OA+r}, v{OB+r}")
    check(e, f"{P}_SLOWA", f"{P}_DONEA")
    normalize(e, OBS)
    e(f"buffer_store_dwordx4 {vr(OBS,4)}, v{ADA}, s[12:15], 0 offen{SC(2)}",
      f"s_mov_b64 exec, s[{LOW}:{LOW+1}]", f"buffer_store_dword v{OBS+4}, v{ADB}, s[12:15], 0 offen")
    if PROF:
        e("s_mov_b64 exec, -1")
        stamp(e, 11)
        e("s_waitcnt vmcnt(0)")
        stamp(e, 12)
        stamp_dump(e, 1, 16, P)
    e.lab(f"{P}_END")
    e("s_endpgm")
    e.lab(f"{P}_SLOWB")
    e(f"v_and_b32 v{Q2B_+1}, 0xffff0000, v{Q2B_+1}", f"s_branch {P}_SLOW")
    e.lab(f"{P}_SLOWA")
    for r in range(4):
        e(f"v_mov_b32 v{Q1B_+r}, v{Q1A[0]+r}")
    e(f"v_mov_b32 v{Q2B_}, v{Q2A[0]}", f"v_mov_b32 v{Q2B_+1}, 0")
    slow_path(e, P)
    return dict(name="attn_kernel", vgpr=212, grid=256, lds=163840)
```

```python
from gen import *

EXP = os.environ.get("EXP", "")
SB, NB = 50176, 3
LW = 16384
XS = [16, 24]
WR = 32
ACC = 64
VX0, VX1, VWA, VWB, VPA, VPB = 4, 5, 6, 7, 10, 11
NT = 14
NDMA = 12
RK = int(os.environ.get("RK", "2"))
VL = "vl" in EXP


def acc(T, i):
    return ACC + 4 * (2 * T + i)


def wread(j, T, slot=None):
    d = WR + 4 * (T % 7 if slot is None else slot)
    L = []
    for h in range(2):
        off = h * 512 + j * 16896
        if T < 8:
            a, off = VWA, off + 72 * (T >> 1) + 40 * (T & 1)
        elif T < 12:
            a, off = VWB, off + 72 * ((T - 8) >> 1) + 40 * (T & 1)
        else:
            a = VPA if T == 12 else VPB
        L.append(f"ds_read_b64_tr_b16 {vr(d+2*h,2)}, v{a} offset:{off}")
    return L


def xread(j):
    a = VX0 if j == 0 else VX1
    return [f"ds_read_b128 {vr(XS[j]+4*i,4)}, v{a} offset:{2048*i}" for i in range(2)]


def mfma(j, T, i, swapped, slot=None):
    w, x, d = vr(WR + 4 * (T % 7 if slot is None else slot), 4), vr(XS[j] + 4 * i, 4), vr(acc(T, i), 4)
    a, b = (x, w) if swapped else (w, x)
    return f"v_mfma_f32_16x16x32_bf16 {d}, {a}, {b}, {d}"


def stage_body(swA, swB, epi=None):
    sw = lambda T: swA if (T < 8 or T == 12) else swB
    plan = {P: [] for P in range(28)}
    for P in range(5, 28):
        plan[P - 5] += [("W", 0, P)]
    std = [divmod(P, 14) for P in range(28)]
    hyb = epi is not None and "nohyb" not in EXP
    order = last_order() if hyb else std
    plan_std = {P: list(v) for P, v in plan.items()}
    plan_std[2] += [("X", 0, 1)]
    plan[0 if hyb else 2] += [("X", 0, 1)]
    nxt = {24: [("W", 1, 0), ("W", 1, 1)], 25: [("W", 1, 2), ("W", 1, 3), ("X", 1, 0)], 26: [("W", 1, 4)]}
    full = plan_std
    for P, v in nxt.items():
        full[P] += v
    if epi is None:
        plan = full
    seq = []
    waits = {}
    issued = []
    for it in range(2):
        for P in range(28):
            j, T = (order if it == 1 else std)[P]
            need = [("W", it, P), ("X", it, j)]
            pos = -1
            for k, (key, n) in enumerate(issued):
                if key in need:
                    pos = k
            if pos >= 0:
                after = sum(n for key, n in issued[pos + 1:])
                waits[(it, P)] = after
            if P == 24:
                issued = []
            for kind, so, idx in (plan if (hyb and it == 1) else full)[P]:
                issued.append(((kind, it + so, idx), 2))
    L = []
    for P in range(28):
        j, T = order[P]
        w = waits.get((1, P))
        R = []
        for kind, so, idx in plan[P]:
            if kind == "W":
                if "nords" not in EXP or (idx % 14) < 2:
                    R += wread(*order[idx], idx % 7) if so == 0 else wread(0, idx)
            else:
                R += xread(idx)
        if epi is not None and P >= 23:
            L.append(f"s_waitcnt lgkmcnt({2 * (27 - P)})")
            L += [mfma(j, T, 0, sw(T), P % 7), mfma(j, T, 1, sw(T), P % 7)] + epi.get(P, [])
            continue
        if w is not None:
            L.append(f"s_waitcnt lgkmcnt({min(w, 15)})")
        if P == 24:
            L += [mfma(j, T, 0, sw(T)), mfma(j, T, 1, sw(T))]
            L += ["s_waitcnt lgkmcnt(0)", "s_barrier",
                  f"v_add_u32 v{VX0}, s50, v{VX0}", f"v_add_u32 v{VPA}, s50, v{VPA}", f"v_add_u32 v{VPB}, s50, v{VPB}"]
            L += [f"v_add_u32 v{VWA}, s50, v{VWA}", f"v_add_u32 v{VWB}, s50, v{VWB}"]
            L += R
            continue
        h = (len(R) + 1) // 2 if "noil" not in EXP else 0
        L += [mfma(j, T, 0, sw(T), P % 7)] + R[:h] + [mfma(j, T, 1, sw(T), P % 7)]
        if P == 26:
            L += [f"v_add_u32 v{VX1}, s50, v{VX1}"]
        L += R[h:]
        if epi is not None:
            L += epi.get(P, [])
    return L


def last_order():
    o = []
    grps = ((0, 1, 2, 3, 4), (5, 6), (7, 8), (9, 10), (11, 12, 13))
    if "hyb2" in EXP:
        grps = ((0, 1, 2, 3, 4), (12, 13), (5, 6), (7, 8), (9, 10, 11))
    if "hyb3" in EXP:
        grps = ((0, 1, 2, 3, 4), (5, 6), (12, 13), (7, 8), (9, 10, 11))
    for grp in grps:
        o += [(0, T) for T in grp] + [(1, T) for T in grp]
    return o


def qk_main(T, k, is_q, s_head):
    off1 = Q1O if is_q else K1O
    a, b = acc(T, 0), acc(T, 1)
    L = [f"v_pk_mul_f32 {vr(a+r,2)}, {vr(a+r,2)}, s[22:23]" for r in range(0, 8, 2)] if is_q else []
    return L + [f"v_cvt_pk_bf16_f32 v{a}, v{a}, v{a+1}", f"v_cvt_pk_bf16_f32 v{a+1}, v{a+2}, v{a+3}",
                f"v_cvt_pk_bf16_f32 v{a+2}, v{b}, v{b+1}", f"v_cvt_pk_bf16_f32 v{a+3}, v{b+2}, v{b+3}",
                f"s_add_u32 s3, s{s_head}, {k*HB + off1}", "s_add_u32 s3, s3, s21",
                f"v_permlane16_swap_b32 v{a}, v{a+2}", f"v_permlane16_swap_b32 v{a+1}, v{a+3}",
                f"buffer_store_dwordx4 {vr(a,4)}, v12, s[12:15], s3 offen{SC(1)}"]


def qk_tail(Tp, is_q, s_head, np_):
    off2 = Q2O if is_q else K2O
    sh = 2 if is_q else 3
    L = [f"s_lshl_b32 s3, s24, {sh}", f"s_add_u32 s3, s3, s{s_head}", f"s_add_u32 s3, s3, {off2}",
         f"v_lshlrev_b32 v14, {sh}, v3", "v_add_u32 v14, v14, v13", f"v_add_u32 v15, {HB}, v14"]
    if np_ == 4:
        L.append("s_mov_b32 exec_hi, 0")
    for i in range(2):
        a = acc(Tp, i)
        if is_q:
            L += [f"v_pk_mul_f32 {vr(a+r,2)}, {vr(a+r,2)}, s[22:23]" for r in (0, 2)]
            L += [f"v_cvt_pk_bf16_f32 v{a}, v{a}, v{a+1}", f"v_cvt_pk_bf16_f32 v{a+1}, v{a+2}, v{a+3}",
                  f"buffer_store_dword v{a}, v14, s[12:15], s3 offen offset:{64*i}",
                  f"buffer_store_dword v{a+1}, v15, s[12:15], s3 offen offset:{64*i}"]
        else:
            L += [f"v_cvt_pk_bf16_f32 v{a}, v{a}, v{a+1}", f"v_cvt_pk_bf16_f32 v{a+2}, v{a+2}, v{a+3}",
                  f"v_mov_b32 v{a+1}, 0x00003F80", f"v_mov_b32 v{a+3}, 0x00003F80",
                  f"buffer_store_dwordx2 {vr(a,2)}, v14, s[12:15], s3 offen offset:{128*i}",
                  f"buffer_store_dwordx2 {vr(a+2,2)}, v15, s[12:15], s3 offen offset:{128*i}"]
    if np_ == 4:
        L.append("s_mov_b64 exec, -1")
    return L


def v_tile(T, k, s_head, np_):
    a, b = acc(T, 0), acc(T, 1)
    L = [f"v_cvt_pk_bf16_f32 v{a}, v{a}, v{a+1}", f"v_cvt_pk_bf16_f32 v{a+1}, v{a+2}, v{a+3}",
         f"v_cvt_pk_bf16_f32 v{a+2}, v{b}, v{b+1}", f"v_cvt_pk_bf16_f32 v{a+3}, v{b+2}, v{b+3}"]
    if k == "p":
        L += [f"s_add_u32 s3, s{s_head}, s25", "s_nop 0"]
    else:
        L += [f"s_add_u32 s3, s{s_head}, {k*HB + (0 if VL else 32*(k & 1))}", "s_add_u32 s3, s3, s25"]
    L += [f"v_permlane16_swap_b32 v{a}, v{a+2}", f"v_permlane16_swap_b32 v{a+1}, v{a+3}"]
    if k == "p":
        L.append(f"buffer_store_dwordx4 {vr(a,4)}, v{9 if np_ == 8 else 176}, s[12:15], s3 offen"
                 + (SC(1) if "vls" in EXP else ""))
    else:
        L.append(f"buffer_store_dwordx4 {vr(a,4)}, v8, s[12:15], s3 offen{SC(1)}")
    return L


def last_stage(tA, tB):
    main = lambda T, k, t, sh, n: v_tile(T, k, sh, n) if t == "V" else qk_main(T, k, t == "Q", sh)
    tail = lambda T, t, sh, n: v_tile(T, "p", sh, n) if t == "V" else qk_tail(T, t == "Q", sh, n)
    fin = {T: P for P, (j, T) in enumerate(last_order()) if j == 1} if "nohyb" not in EXP else {T: 14 + T for T in range(14)}
    out = lambda T: (main(T, T, tA, 26, 8) if T < 8 else main(T, T - 8, tB, 27, 4) if T < 12 else
                     tail(12, tA, 26, 8) if T == 12 else tail(13, tB, 27, 4))
    epi = {fin[T] + 2: out(T) for T in range(14) if fin[T] + 2 <= 27}
    rest = [x for T in sorted(range(14), key=lambda T: fin[T]) if fin[T] + 2 > 27 for x in out(T)]
    return stage_body(tA == "V", tB == "V", epi) + ["s_nop 7"] + rest


def gen_k1(e):
    P = "K1"
    e.lab("qkv_kernel")
    e("s_cmp_ge_u32 s2, 256", f"s_cbranch_scc1 {P}_END")
    stamp(e, 0)
    e("s_load_dwordx4 s[24:27], s[0:1], 0", "s_load_dwordx4 s[28:31], s[0:1], 24",
      "s_load_dwordx2 s[32:33], s[0:1], 64")
    e("v_lshrrev_b32 v1, 6, v0", "v_and_b32 v2, 63, v0", "s_and_b32 s16, s2, 1", "v_readfirstlane_b32 s19, v1",
      "s_lshr_b32 s3, s2, 1", "s_and_b32 s3, s3, 1", "s_lshl_b32 s3, s3, 3",
      "s_lshr_b32 s20, s2, 3", "s_and_b32 s17, s20, 7", "s_add_u32 s17, s17, s3",
      "s_lshr_b32 s3, s2, 2", "s_and_b32 s3, s3, 1", "s_lshl_b32 s3, s3, 2",
      "s_lshr_b32 s18, s20, 3", "s_add_u32 s18, s18, s3",
      "s_mul_i32 s44, s18, 432", "s_andn2_b32 s45, s44, 127", "s_sub_u32 s3, s44, s45", "s_cmp_gt_u32 s3, 80",
      "s_cselect_b32 s3, 64, 0", "s_add_u32 s45, s45, s3",
      "s_add_u32 s47, s44, 288", "s_add_u32 s46, s44, 144", "s_cmp_eq_u32 s18, 5",
      "s_cselect_b32 s46, s46, s44", "s_cselect_b32 s47, s44, s47")
    e("s_waitcnt lgkmcnt(0)")
    e("s_cmp_eq_u32 s16, 0",
      "s_cselect_b32 s4, s24, s28", "s_cselect_b32 s5, s25, s29", "s_mov_b32 s6, 2359296", "s_mov_b32 s7, 0x00020000",
      "s_cselect_b32 s8, s26, s30", "s_cselect_b32 s9, s27, s31", "s_mov_b32 s10, 1990656", "s_mov_b32 s11, 0x00020000")
    e("s_cmp_ge_u32 s19, 4", f"s_cbranch_scc1 {P}_LOAD")
    e(f"s_mul_i32 s3, s16, {32*HB}", "s_add_u32 s38, s32, s3", "s_addc_u32 s39, s33, 0")
    srd(e, 12, 38, 39, 32 * HB)
    e("v_and_b32 v3, 15, v2", "v_lshrrev_b32 v13, 4, v2", "v_bfe_u32 v14, v2, 2, 2", "v_and_b32 v15, 3, v2")
    e("v_and_b32 v4, 7, v2", "v_xor_b32 v4, v4, v13", "v_lshlrev_b32 v4, 4, v4", "s_lshl_b32 s3, s19, 5",
      "v_add_u32 v5, s3, v3", f"v_lshl_add_u32 v{VX0}, v5, 7, v4", f"v_xor_b32 v{VX1}, 64, v{VX0}")
    e("v_lshl_add_u32 v1, v13, 2, v14", "v_mul_u32_u24 v1, 1056, v1", f"v_add_u32 v1, {LW}, v1",
      "s_sub_u32 s20, s46, s45", "s_sub_u32 s21, s47, s45",
      "v_lshl_add_u32 v10, v15, 3, v1", f"v_add_u32 v{VWA}, s20, v10", f"v_add_u32 v{VWB}, s21, v10",
      "v_mul_u32_u24 v10, 72, v15", "v_add_u32 v10, v10, v1", "s_add_u32 s20, s20, 32", f"v_add_u32 v{VPA}, s20, v10",
      "v_and_b32 v11, 1, v15", "v_mul_u32_u24 v11, 72, v11", "v_add_u32 v11, v11, v1", "s_add_u32 s21, s21, 32",
      f"v_add_u32 v{VPB}, s21, v11")
    e(*[f"v_mov_b32 v{XS[0]+r}, 0" for r in range(4)], "s_nop 1")
    for T in range(NT):
        for i in range(2):
            e(f"v_mfma_f32_16x16x32_bf16 {vr(acc(T,i),4)}, {vr(XS[0],4)}, {vr(XS[0],4)}, 0")
    for s_col, s_h in ((46, 26), (47, 27)):
        e(f"s_cmp_ge_u32 s{s_col}, 2304", f"s_cselect_b32 s3, 2304, 0", f"s_sub_u32 s{s_h}, s{s_col}, s3",
          f"s_cmp_ge_u32 s{s_h}, 1152", "s_cselect_b32 s3, 1152, 0", f"s_sub_u32 s{s_h}, s{s_h}, s3",
          f"s_mul_i32 s{s_h}, s{s_h}, 1821", f"s_lshr_b32 s{s_h}, s{s_h}, 16", f"s_mul_i32 s{s_h}, s{s_h}, {HB}")
    e("s_lshl_b32 s23, s17, 2", "s_add_u32 s23, s23, s19", "s_lshl_b32 s24, s23, 5", "s_mul_i32 s25, s23, 1152",
      f"s_add_u32 s25, s25, {VO}", "s_lshl_b32 s21, s23, 10", f"s_mov_b32 s22, 0x{f2u(CSCALE):08x}", "s_mov_b32 s23, s22")
    e("v_lshlrev_b32 v12, 4, v2", "v_lshrrev_b32 v14, 4, v2", "v_and_b32 v15, 1, v14",
      f"v_mul_u32_u24 v8, {512 if VL else 576}, v15",
      "v_lshrrev_b32 v15, 1, v14", f"v_mul_u32_u24 v15, {256 if VL else 288}, v15", "v_add_u32 v8, v8, v15",
      "v_lshrrev_b32 v15, 1, v3", f"s_mov_b32 s3, {HB}", "v_mul_lo_u32 v15, v15, s3",
      *(["v_lshrrev_b32 v9, 3, v8", "v_add_u32 v9, v9, v15"] if VL else ["v_add_u32 v9, v8, v15"]),
      "v_and_b32 v15, 1, v3", "v_lshl_add_u32 v9, v15, 4, v9",
      *(["v_add_u32 v9, 1024, v9"] if VL else
        ["v_bfe_u32 v15, v3, 1, 1", "v_xor_b32 v15, 1, v15", "v_lshl_add_u32 v9, v15, 8, v9"]),
      "v_mov_b32 v15, 0x40000000", "v_cmp_gt_u32 vcc, 8, v3", "v_lshl_add_u32 v8, v3, 4, v8",
      f"s_mov_b32 s3, {2*HB}", "v_cndmask_b32 v176, v15, v9, vcc", "v_mul_lo_u32 v13, v14, s3")
    if "pf" in EXP:
        e("s_lshl_b32 s3, s19, 1", "s_add_u32 s3, s3, 2", "v_lshrrev_b32 v14, 5, v2", "v_add_u32 v14, s3, v14",
          "v_min_u32 v14, 8, v14",
          "s_lshr_b32 s3, s2, 6", "s_lshl_b32 s3, s3, 5", "s_lshl_b32 s20, s17, 7", "s_add_u32 s3, s3, s20",
          "v_and_b32 v15, 31, v2", "v_add_u32 v15, s3, v15", "v_mul_u32_u24 v15, 1152, v15",
          "v_lshl_add_u32 v15, v14, 7, v15", "buffer_load_dword v176, v15, s[4:7], 0 offen",
          "s_lshr_b32 s3, s2, 3", "s_and_b32 s3, s3, 7", "s_lshl_b32 s3, s3, 3",
          "v_bfe_u32 v15, v2, 2, 3", "v_lshl_add_u32 v15, v14, 6, v15", "v_add_u32 v15, s3, v15",
          "v_mul_u32_u24 v15, 3456, v15", "s_andn2_b32 s3, s45, 127", "v_add_u32 v15, s3, v15",
          "v_and_b32 v14, 3, v2", "v_lshl_add_u32 v14, v14, 7, v15",
          "buffer_load_dword v177, v14, s[8:11], 0 offen",
          "s_bitcmp1_b32 s45, 6", f"s_cbranch_scc0 {P}_NOPF5",
          "buffer_load_dword v178, v15, s[8:11], 0 offen offset:512")
        e.lab(f"{P}_NOPF5")
    e("s_mov_b32 s48, 0", f"s_mov_b32 s50, {SB}", "s_mov_b32 s55, 0x124", f"s_mov_b32 s56, {(-2*SB) & 0xffffffff}",
      f"s_mov_b32 s57, {SB}")
    stamp(e, 1)
    e("s_barrier")
    stamp(e, 2)
    e(*xread(0))
    for T in range(5):
        e(*wread(0, T))
    e("s_waitcnt lgkmcnt(0)")
    e("s_cmp_ge_u32 s18, 6", f"s_cbranch_scc1 {P}_LSS", "s_cmp_eq_u32 s18, 5", f"s_cbranch_scc1 {P}_LSN")
    for nm, swA, swB in (("NN", False, False), ("SN", True, False), ("SS", True, True)):
        e.lab(f"{P}_L{nm}")
        e(*stage_body(swA, swB))
        e("s_add_u32 s48, s48, 1", "s_bitcmp1_b32 s55, s48", "s_cselect_b32 s50, s56, s57")
        e("s_cmp_lt_u32 s48, 8", f"s_cbranch_scc1 {P}_L{nm}")
        if nm == "NN":
            e("s_cmp_lt_u32 s18, 2", f"s_cbranch_scc1 {P}_EQQ", "s_cmp_eq_u32 s18, 2", f"s_cbranch_scc1 {P}_EQK",
              f"s_branch {P}_EKK")
        else:
            e(f"s_branch {P}_E{'VK' if nm == 'SN' else 'VV'}")
    for nm, tA, tB in (("QQ", "Q", "Q"), ("QK", "Q", "K"), ("KK", "K", "K"), ("VK", "V", "K"), ("VV", "V", "V")):
        e.lab(f"{P}_E{nm}")
        stamp(e, 11)
        e(*last_stage(tA, tB))
        e(f"s_branch {P}_FIN")
    e.lab(f"{P}_LOAD")
    e("s_sub_u32 s20, s19, 4")
    e("v_lshrrev_b32 v3, 3, v2", "v_and_b32 v4, 7, v2", "v_xor_b32 v4, v4, v3", "v_lshlrev_b32 v4, 4, v4",
      "s_lshl_b32 s3, s20, 5", "v_add_u32 v5, s3, v3", "v_mul_u32_u24 v8, 1152, v5", "v_add_u32 v8, v8, v4")
    e("s_mul_i32 s40, s17, 147456", "s_lshl_b32 s41, s20, 12")
    e("s_lshr_b32 s37, s2, 3", "s_and_b32 s37, s37, 7", "s_lshr_b32 s3, s2, 6", "s_lshl_b32 s3, s3, 1",
      "s_add_u32 s37, s37, s3")
    for _ in range(13 // (9 - RK) if RK < 9 else 0):
        e(f"s_cmp_ge_u32 s37, {9 - RK}", f"s_cselect_b32 s3, {9 - RK}, 0", "s_sub_u32 s37, s37, s3")
    e(f"s_add_u32 s37, s37, {RK}", "s_mov_b32 s34, s37" if RK == 0 else "s_mov_b32 s34, 0")
    e("s_lshl_b32 s35, s34, 7", "s_add_u32 s35, s35, s40",
      "s_add_u32 m0, s41, 0", "s_mul_i32 s36, s34, 221184", "buffer_load_dwordx4 v8, s[4:7], s35 offen lds")
    e("v_lshrrev_b32 v3, 5, v2", "v_mul_u32_u24 v3, 13824, v3", "v_and_b32 v4, 31, v2", "v_lshl_add_u32 v3, v4, 4, v3",
      "v_add_u32 v9, s45, v3")
    e("s_mul_i32 s42, s20, 8448", f"s_add_u32 s42, s42, {LW}", "s_mul_i32 s44, s20, 55296", "s_add_u32 s36, s36, s44")

    def issue(s, skip_first=False):
        base = (s % NB) * SB
        for i in range(4):
            if skip_first and i == 0:
                continue
            e(f"s_add_u32 m0, s41, {base + 1024*i}", f"s_add_u32 s43, s35, {9216*i}",
              "buffer_load_dwordx4 v8, s[4:7], s43 offen lds")
        for u in range(8):
            e(f"s_add_u32 m0, s42, {base + 1056*u}",
              f"s_add_u32 s43, s36, {27648*(u >> 2) + 3456*(u & 3)}",
              "buffer_load_dwordx4 v9, s[8:11], s43 offen lds")
        if s < 8:
            if s + 1 < RK:
                e(f"s_mov_b32 s34, {s + 1}")
            elif s + 1 == RK:
                e("s_mov_b32 s34, s37")
            else:
                e("s_add_u32 s34, s34, 1", "s_cmp_eq_u32 s34, 9", f"s_cselect_b32 s34, {RK}, s34")
            e("s_lshl_b32 s35, s34, 7", "s_add_u32 s35, s35, s40", "s_mul_i32 s36, s34, 221184", "s_add_u32 s36, s36, s44")

    issue(0, True)
    issue(1)
    stamp(e, 1)
    e(f"s_waitcnt vmcnt({NDMA})")
    stamp(e, 2)
    e("s_barrier")
    issue(2)
    for s in range(8):
        left = max(min(s + 2, 8) - (s + 1), 0)
        e(f"s_waitcnt vmcnt({left*NDMA})")
        stamp(e, 3 + s)
        e("s_barrier")
        if s + 3 <= 8:
            issue(s + 3)
    e.lab(f"{P}_FIN")
    if PROF:
        stamp(e, 13)
        e("s_waitcnt vmcnt(0)")
        stamp(e, 14)
        stamp_dump(e, 0, 15, P)
    e.lab(f"{P}_END")
    e("s_endpgm")
    return dict(name="qkv_kernel", vgpr=180, grid=256, lds=NB * SB)
```

```python
from gen import *

EXP = os.environ.get("EXP", "")
LANE, L16, AK1, AK2, AV, IDX = 1, 2, 3, 4, 5, 6
T0 = 7
Q1A, Q1B_, Q2A, Q2B_ = [16, 20], 24, [28, 30], 32
K1B = [34, 38]
K2B = [42, 44]
AK2L, AVL = 46, 47
VB = [[48, 52], [56, 60]]
SA, SB_ = [64, 80], [96, 112]
OA, OB = 128, 144
MF, ML = 160, 176
OBS = 192
ADA, ADB = 197, 198
SK1, SK2 = 200, 204
G2, GV = 206, 207
ZZ = 208
VL = "vl" in EXP
DV, AV2, GV2 = 212, 213, 214
LMSK = 155648
LK1, LV, LK2 = 0, 65536, 139264
VMASK, LOW = 40, 42
NEGF = 0xF1800000


def mf1(S, kb, Q, C):
    c = "0" if C is None else vr(C, 16)
    return f"v_mfma_f32_32x32x16_bf16 {vr(S,16)}, {vr(K1B[kb],4)}, {vr(Q,4)}, {c}"


def mf2(S, kb, Q):
    return f"v_mfma_f32_32x32x8bf16_1k {vr(S,16)}, {vr(K2B[kb],2)}, {vr(Q,2)}, {vr(S,16)}"


def pv(O, vb, half, S):
    return f"v_smfmac_f32_32x32x32_bf16 {vr(O,16)}, {vr(VB[vb][half],4)}, {vr(S+8*half,8)}, v{IDX}"


def rdK(kb, t):
    return [f"ds_read_b128 {vr(K1B[kb],4)}, v{AK1} offset:{1024*t}",
            f"ds_read_b64 {vr(K2B[kb],2)}, v{AK2} offset:{256*t}"]


def rdV(vb, t):
    return [f"s_mov_b64 exec, s[{VMASK}:{VMASK+1}]",
            f"ds_read_b128 {vr(VB[vb][0],4)}, v{AV} offset:{1152*t}",
            (f"ds_read_b128 {vr(VB[vb][1],4)}, v{AV2} offset:{1152*t}" if VL else
             f"ds_read_b128 {vr(VB[vb][1],4)}, v{AV} offset:{1152*t+576}"),
            "s_mov_b64 exec, -1"]


def b_iter(e, t, prev, nxt, nxt2, Cn, extra):
    p = t & 1
    S, N = SA[p], SA[p ^ 1]
    ex = lambda r: e(f"v_exp_f32 v{S+r}, v{S+r}")
    ex(0); ex(1)
    if prev:
        e(pv(OA, p ^ 1, 1, N))
    ex(2); ex(3)
    if extra:
        e(*extra[0])
    ex(4); ex(5)
    e("s_waitcnt lgkmcnt(0)")
    if nxt:
        e(mf1(N, p ^ 1, Q1B_, Cn))
    ex(6); ex(7)
    if len(extra) > 1:
        e(*extra[1])
    ex(8); ex(9)
    if nxt:
        e(mf2(N, p ^ 1, Q2B_))
        e(*(rdK(p, t + 2) if nxt2 else ["s_nop 0", "s_nop 0"]))
        e(*rdV(p ^ 1, t + 1))
    for r in (10, 11, 12, 13):
        ex(r)
    e(pv(OA, p, 0, S))
    ex(14); ex(15)


def a_step(e, s):
    p = s & 1
    n = p ^ 1
    M = [pv(OA, n, 1, SA[n]), mf1(SA[n], n, Q1A[0], None), mf2(SA[n], n, Q2A[0]), pv(OA, p, 0, SA[p]),
         pv(OB, n, 1, SB_[n]), mf1(SB_[n], n, Q1A[1], None), mf2(SB_[n], n, Q2A[1]), pv(OB, p, 0, SB_[p])]
    k = rdK(p, 2 * (s + 2))
    v = rdV(n, 2 * (s + 1))
    after = {4: ["s_waitcnt lgkmcnt(0)"], 7: [k[0]], 10: [k[1]], 18: v}
    regs = [SA[p] + r for r in range(16)] + [SB_[p] + r for r in range(16)]
    for i, r in enumerate(regs):
        if "noalt" not in EXP and i in (0, 16):
            e(f"s_setprio {1 if i == 0 else 0}")
        e(f"v_exp_f32 v{r}, v{r}")
        e(*after.get(i, []))
        if i % 4 == 1:
            e(M[i // 4])


def check(e, slow_label, done_label):
    a, b, t = T0, T0 + 1, T0 + 2
    e(f"v_mov_b32 v{a}, v{OA+10}", f"v_mov_b32 v{b}, v{OA+10}", f"v_mul_f32 v{t}, 0, v{OA}", "s_nop 0",
      f"v_permlane32_swap_b32 v{a}, v{b}")
    for r in range(1, 10):
        e(f"v_fmac_f32 v{t}, 0, v{OA+r}")
    e(f"v_add_f32 v{t}, v{a}, v{t}",
      f"s_mov_b32 s3, 0x{f2u(2.0**-100):08x}", f"v_cmp_le_f32 vcc, s3, v{t}",
      f"s_mov_b32 s3, 0x{f2u(2.0**115):08x}", f"v_cmp_ge_f32 s[44:45], s3, v{t}",
      f"v_rcp_f32 v{a}, v{a}", "s_nop 2", "s_and_b64 vcc, vcc, s[44:45]", "s_cmp_eq_u64 vcc, -1",
      f"s_cbranch_scc0 {slow_label}")
    e.lab(done_label)


def normalize(e, dst):
    a = T0
    for r in range(10):
        e(f"v_mul_f32 v{OA+r}, v{a}, v{OA+r}")
    for k in range(5):
        e(f"v_cvt_pk_bf16_f32 v{dst+k}, v{OA+2*k}, v{OA+2*k+1}")
    e("s_nop 0", f"v_permlane32_swap_b32 v{dst}, v{dst+2}", f"v_permlane32_swap_b32 v{dst+1}, v{dst+3}")


def slow_path(e, P):
    m, t2 = T0 + 3, T0 + 4
    S = SA[0]
    d = vr(S, 16)
    e.lab(f"{P}_SLOW")
    e(f"v_mov_b32 v{m}, 0xff7fffff")
    for r in range(16):
        e(f"v_mov_b32 v{OA+r}, 0")
    for ps in range(2):
        lab = f"{P}_SL{ps}"
        e("s_mov_b32 s46, s49")
        e.lab(lab)
        e("s_lshl_b32 s47, s46, 10", f"s_add_u32 s47, s47, {K1O}",
          f"buffer_load_dwordx4 {vr(K1B[0],4)}, v{L16}, s[56:59], s47 offen",
          "s_lshl_b32 s47, s46, 8", f"s_add_u32 s47, s47, {K2O}",
          f"buffer_load_dwordx2 {vr(K2B[0],2)}, v{G2}, s[56:59], s47 offen")
        if ps == 1:
            e("s_mul_i32 s47, s46, 1152", f"s_add_u32 s47, s47, {VO}",
              f"s_mov_b64 exec, s[{VMASK}:{VMASK+1}]",
              f"buffer_load_dwordx4 {vr(VB[0][0],4)}, v{GV}, s[56:59], s47 offen",
              (f"buffer_load_dwordx4 {vr(VB[0][1],4)}, v{GV2}, s[56:59], s47 offen" if VL else
               f"buffer_load_dwordx4 {vr(VB[0][1],4)}, v{GV}, s[56:59], s47 offen offset:576"),
              "s_mov_b64 exec, -1")
        e("s_waitcnt vmcnt(0)")
        e("s_cmp_eq_u32 s46, s51", f"s_cbranch_scc1 {lab}_F",
          "s_cmp_eq_u32 s46, s52", f"s_cbranch_scc1 {lab}_L",
          mf1(S, 0, Q1B_, None), f"s_branch {lab}_J")
        e.lab(f"{lab}_F")
        e(mf1(S, 0, Q1B_, MF), f"s_branch {lab}_J")
        e.lab(f"{lab}_L")
        e(mf1(S, 0, Q1B_, ML))
        e.lab(f"{lab}_J")
        e(mf2(S, 0, Q2B_), "s_nop 7", "s_nop 7")
        if ps == 0:
            for r in range(0, 16, 2):
                e(f"v_max3_f32 v{m}, v{S+r}, v{S+r+1}, v{m}")
        else:
            for r in range(16):
                e(f"v_sub_f32 v{S+r}, v{S+r}, v{m}")
            for r in range(16):
                e(f"v_exp_f32 v{S+r}, v{S+r}")
            e("s_nop 1", pv(OA, 0, 0, S), pv(OA, 0, 1, S), "s_nop 7", "s_nop 7")
        e("s_add_u32 s46, s46, 1", "s_cmp_le_u32 s46, s50", f"s_cbranch_scc1 {lab}")
        if ps == 0:
            e(f"v_mov_b32 v{t2}, v{m}", "s_nop 1", f"v_permlane32_swap_b32 v{m}, v{t2}", "s_nop 1",
              f"v_max_f32 v{m}, v{m}, v{t2}")
    a, b = T0, T0 + 1
    e(f"v_mov_b32 v{a}, v{OA+10}", f"v_mov_b32 v{b}, v{OA+10}", "s_nop 1",
      f"v_permlane32_swap_b32 v{a}, v{b}", "s_nop 1", f"v_rcp_f32 v{a}, v{a}", "s_nop 1")
    e("s_cmp_eq_u32 s48, 0", f"s_cbranch_scc1 {P}_DONEB", f"s_branch {P}_DONEA")


def dma(srdreg, lds, src_s, src_c):
    ls, lc = lds
    return [f"s_add_u32 m0, s{ls}, {lc}", f"s_add_u32 s3, s{src_s}, {src_c}",
            f"buffer_load_dwordx4 v{L16}, s[{srdreg}:{srdreg+3}], s3 offen lds"]


def gen_k2(e):
    P = "K2"
    e.lab("attn_kernel")
    e("s_cmp_ge_u32 s2, 256", f"s_cbranch_scc1 {P}_END")
    stamp(e, 0)
    e("s_setprio 3")
    e("s_load_dwordx2 s[32:33], s[0:1], 64", "s_load_dwordx2 s[36:37], s[0:1], 16", "s_load_dwordx2 s[38:39], s[0:1], 40")
    e(f"v_lshrrev_b32 v{T0}, 6, v0", f"v_and_b32 v{LANE}, 63, v0",
      "s_and_b32 s3, s2, 7", f"v_readfirstlane_b32 s19, v{T0}", "s_lshl_b32 s3, s3, 2",
      "s_lshr_b32 s16, s2, 3", "s_and_b32 s16, s16, 3", "s_add_u32 s16, s16, s3", "s_lshr_b32 s17, s2, 5",
      f"v_lshlrev_b32 v{L16}, 4, v{LANE}", f"s_mul_i32 s3, s16, {HB}",
      "s_add_u32 s23, s17, 7", "s_and_b32 s23, s23, 7", "s_lshl_b32 s20, s19, 10")
    ii, i4, hh = T0, T0 + 1, T0 + 2
    e("s_waitcnt lgkmcnt(0)")
    stamp(e, 13)
    e("s_add_u32 s34, s32, s3", "s_addc_u32 s35, s33, 0")
    e(f"s_add_u32 s8, s34, {32*HB}", "s_addc_u32 s9, s35, 0", f"s_mov_b32 s10, {HB}", "s_mov_b32 s11, 0x00020000")
    SPLIT = "split" in EXP

    def win_k(slot, ch):
        e(f"s_lshl_b32 s26, s{ch}, 13", "s_add_u32 s26, s26, s20")
        e(*dma(8, (20, LK1 + slot * 8192), 26, K1O))

    def win_v(slot, ch):
        e(f"s_mul_i32 s26, s{ch}, 9216", "s_add_u32 s27, s26, s20")
        e(*dma(8, (20, LV + slot * 9216), 27, VO))
        e(f"s_cmp_eq_u32 s19, {slot-6}", f"s_cbranch_scc0 {P}_BV{slot}")
        e(f"s_mov_b32 m0, {LV + slot*9216 + 8192}", f"s_add_u32 s3, s26, {VO + 8192}",
          f"buffer_load_dwordx4 v{L16}, s[8:11], s3 offen lds")
        e.lab(f"{P}_BV{slot}")

    for slot, ch in ((7, 17), (6, 23)):
        win_k(slot, ch)
        if not SPLIT:
            win_v(slot, ch)
    stamp(e, 14)
    e("s_lshr_b32 s21, s19, 2", "s_and_b32 s22, s19, 3", "s_lshl_b32 s22, s22, 1", "s_add_u32 s22, s22, s21",
      "s_lshl_b32 s18, s17, 3", "s_add_u32 s18, s18, s22",
      f"v_and_b32 v{ii}, 31, v{LANE}", f"v_and_b32 v{i4}, 32, v{LANE}", f"v_lshlrev_b32 v{i4}, 26, v{i4}",
      f"v_lshl_or_b32 v{i4}, v{ii}, 2, v{i4}",
      "s_lshl_b32 s24, s18, 10", "s_lshl_b32 s25, s18, 7", f"s_add_u32 s25, s25, {Q2O}")
    e(f"buffer_load_dwordx4 {vr(Q1B_,4)}, v{L16}, s[8:11], s24 offen",
      f"buffer_load_dword v{Q2B_}, v{i4}, s[8:11], s25 offen")
    e("s_cmp_lt_u32 s19, 4", f"s_cbranch_scc1 {P}_BK2D")
    e("s_and_b32 s28, s19, 1", "s_lshl_b32 s28, s28, 10", "s_cmp_lt_u32 s19, 6",
      "s_cselect_b32 s29, s23, s17", "s_cselect_b32 s26, 0, 2048",
      f"s_add_u32 s26, s26, {LK2 + 6*2048}", "s_add_u32 s26, s26, s28", "s_lshl_b32 s29, s29, 11",
      "s_add_u32 s29, s29, s28", f"s_add_u32 s29, s29, {K2O}")
    e("s_cmp_lt_u32 s19, 6", "s_cselect_b32 s27, 1, 0", "s_cmp_eq_u32 s17, 0", "s_cselect_b32 s27, s27, 0",
      "s_cmp_eq_u32 s27, 1", f"s_cbranch_scc1 {P}_BK2F")
    e("s_mov_b32 m0, s26", "s_nop 0", f"buffer_load_dwordx4 v{L16}, s[8:11], s29 offen lds", f"s_branch {P}_BK2D")
    e.lab(f"{P}_BK2F")
    e(f"v_add_u32 v10, s26, v{L16}", "v_mov_b32 v12, 0", "v_mov_b32 v13, 0x3F803F80", "v_mov_b32 v14, 0",
      "v_mov_b32 v15, 0x3F803F80", "ds_write_b128 v10, v[12:15]")
    e.lab(f"{P}_BK2D")
    if SPLIT:
        for slot, ch in ((7, 17), (6, 23)):
            win_v(slot, ch)
    srd(e, 4, 34, 35, HB)
    stamp(e, 15)
    e("s_setprio 0")
    e(f"s_add_u32 s34, s32, {OO}", "s_addc_u32 s35, s33, 0")
    srd(e, 12, 34, 35, 2 * 2359296)
    e(f"s_mov_b32 s{VMASK}, 0x0003FFFF", f"s_mov_b32 s{VMASK+1}, 0x0003FFFF",
      f"s_mov_b32 s{LOW}, -1", f"s_mov_b32 s{LOW+1}, 0")
    e(f"v_lshrrev_b32 v{hh}, 5, v{LANE}", f"v_mov_b32 v{IDX}, 0xDDDDDDDD",
      f"v_mov_b32 v{ZZ}, 0", f"v_mov_b32 v{ZZ+1}, 0", f"v_mov_b32 v{Q2A[0]+1}, 0", f"v_mov_b32 v{Q2A[1]+1}, 0",
      f"v_mov_b32 v{Q2B_+1}, 0")
    e("s_lshr_b32 s24, s19, 1", "s_and_b32 s25, s19, 1", "s_lshl_b32 s26, s24, 3", "s_lshl_b32 s27, s25, 1",
      "s_add_u32 s26, s26, s27",
      f"v_lshlrev_b32 v{T0+3}, 2, v{hh}", f"v_sub_u32 v{T0+3}, v{ii}, v{T0+3}",
      f"v_mov_b32 v{T0+4}, 0x{NEGF:08x}",
      f"v_cmp_le_i32 vcc, s26, v{T0+3}", f"v_cmp_lt_i32 s[44:45], s26, v{T0+3}",
      "s_lshl_b32 s24, s24, 10", "s_lshl_b32 s25, s25, 3", "s_add_u32 s24, s24, s25", f"s_add_u32 s24, s24, {LMSK}",
      f"v_cndmask_b32 v12, v{T0+4}, v{ZZ}, vcc", f"v_cndmask_b32 v13, v{T0+4}, v{ZZ}, s[44:45]",
      f"v_cndmask_b32 v14, v{ZZ}, v{T0+4}, vcc", f"v_cndmask_b32 v15, v{ZZ}, v{T0+4}, s[44:45]",
      f"v_add_u32 v{T0+3}, s24, v{L16}",
      f"ds_write_b64 v{T0+3}, v[12:13]", f"ds_write_b64 v{T0+3}, v[14:15] offset:4096")
    e(f"v_mov_b32 v{T0+4}, 0x3F803F80", f"v_cmp_eq_u32 vcc, 18, v{ii}",
      f"v_lshlrev_b32 v{G2}, 3, v{ii}", f"v_add_u32 v{AK2L}, {LK2}, v{G2}",
      f"v_cndmask_b32 v{T0+3}, v{ZZ}, v{T0+4}, vcc",
      f"v_mfma_f32_32x32x8bf16_1k {vr(OA,16)}, {vr(ZZ,2)}, {vr(ZZ,2)}, 0")
    for r in range(16):
        e(f"v_mov_b32 v{VB[0][0]+r}, v{T0+3}")
    if VL:
        e(f"v_mul_u32_u24 v{GV}, 256, v{hh}", f"v_mul_u32_u24 v{GV2}, 32, v{hh}", f"v_add_u32 v{GV2}, 768, v{GV2}",
          f"v_cmp_gt_u32 vcc, 16, v{ii}", f"v_mov_b32 v{DV}, 512", f"v_mov_b32 v{AV2}, 64",
          f"v_cndmask_b32 v{GV}, v{GV2}, v{GV}, vcc", f"v_cndmask_b32 v{DV}, v{AV2}, v{DV}, vcc",
          f"v_lshl_add_u32 v{GV}, v{ii}, 4, v{GV}", f"v_add_u32 v{GV2}, v{DV}, v{GV}",
          f"v_add_u32 v{AVL}, {LV}, v{GV}")
    else:
        e(f"v_mul_u32_u24 v{GV}, 288, v{hh}", f"v_lshl_add_u32 v{GV}, v{ii}, 4, v{GV}", f"v_add_u32 v{AVL}, {LV}, v{GV}")
    e("s_add_u32 s24, s22, 48", "s_lshl_b32 s25, s24, 10", f"v_add_u32 v{AK1}, s25, v{L16}",
      "s_lshl_b32 s25, s24, 8", f"v_add_u32 v{AK2}, s25, v{AK2L}",
      "s_mul_i32 s25, s24, 1152", f"v_add_u32 v{AV}, s25, v{AVL}")
    if VL:
        e(f"v_add_u32 v{AV2}, v{DV}, v{AV}")
    e("s_lshl_b32 s24, s18, 5", f"v_add_u32 v{T0+6}, s24, v{ii}", "s_lshl_b32 s24, s16, 16",
      f"v_lshlrev_b32 v{ADA}, 5, v{T0+6}", f"v_lshl_add_u32 v{ADA}, v{hh}, 4, v{ADA}", f"v_add_u32 v{ADA}, s24, v{ADA}",
      "s_lshl_b32 s24, s16, 13", "s_add_u32 s24, s24, 2097152",
      f"v_lshlrev_b32 v{ADB}, 2, v{T0+6}", f"v_add_u32 v{ADB}, s24, v{ADB}", "s_mov_b32 s54, 2359296")
    e("s_cmp_eq_u32 s18, 0", "s_cselect_b32 s24, 8, 7", "s_lshl_b32 s25, s24, 10", f"v_add_u32 v{T0+6}, s25, v{AK1}",
      "s_lshl_b32 s25, s24, 8", f"v_add_u32 v{T0+7}, s25, v{AK2}", f"v_add_u32 v{T0+5}, {LMSK}, v{L16}")
    stamp(e, 1)
    if SPLIT:
        e("s_cmp_lt_u32 s19, 2", f"s_cbranch_scc1 {P}_W3", "s_waitcnt vmcnt(2) lgkmcnt(0)", f"s_branch {P}_W2")
        e.lab(f"{P}_W3")
        e("s_waitcnt vmcnt(3) lgkmcnt(0)")
        e.lab(f"{P}_W2")
    else:
        e("s_waitcnt vmcnt(0) lgkmcnt(0)")
    stamp(e, 2)
    e("s_barrier")
    stamp(e, 3)
    e(f"ds_read_b128 {vr(SK1,4)}, v{T0+6}", f"ds_read_b64 {vr(SK2,2)}, v{T0+7}")
    e(*rdK(0, 0), *rdK(1, 1), *([] if SPLIT else rdV(0, 0)))
    for q in range(4):
        e(f"ds_read_b128 {vr(MF+4*q,4)}, v{T0+5} offset:{4096+1024*q}")
    rdML = [f"ds_read_b128 {vr(ML+4*q,4)}, v{T0+5} offset:{1024*q}" for q in range(4)]
    e("s_sub_u32 s26, s18, s21", "s_lshl_b32 s24, s26, 10", "s_lshl_b32 s25, s26, 7", f"s_add_u32 s25, s25, {Q2O}")
    e(f"buffer_load_dwordx4 {vr(Q1A[0],4)}, v{L16}, s[4:7], s24 offen",
      f"buffer_load_dwordx4 {vr(Q1A[1],4)}, v{L16}, s[4:7], s24 offen offset:1024",
      f"buffer_load_dword v{Q2A[0]}, v{i4}, s[4:7], s25 offen",
      f"buffer_load_dword v{Q2A[1]}, v{i4}, s[4:7], s25 offen offset:128")
    kd_ = lambda c: dma(4, (20, LK1 + 8192 * c), 20, K1O + 8192 * c)
    vd_ = lambda c: dma(4, (20, LV + 8192 * c), 20, VO + 8192 * c)
    order = [kd_(0), vd_(0), dma(4, (20, LK2), 20, K2O), kd_(1), vd_(1), vd_(2), kd_(2), vd_(3), kd_(3), vd_(4)]
    e(f"s_waitcnt lgkmcnt({8 if SPLIT else 10})")
    d = vr(SA[0], 16)
    e("s_cmp_eq_u32 s18, 0", f"s_cbranch_scc1 {P}_SMPM",
      f"v_mfma_f32_32x32x16_bf16 {d}, {vr(SK1,4)}, {vr(Q1B_,4)}, 0", *rdML, f"s_branch {P}_SMPJ")
    e.lab(f"{P}_SMPM")
    e(*rdML, "s_waitcnt lgkmcnt(0)")
    e(f"v_mfma_f32_32x32x16_bf16 {d}, {vr(SK1,4)}, {vr(Q1B_,4)}, {vr(ML,16)}")
    e.lab(f"{P}_SMPJ")
    e(f"v_mfma_f32_32x32x8bf16_1k {d}, {vr(SK2,2)}, {vr(Q2B_,2)}, {d}")
    e(*order[0])
    order = order[1:]
    e("s_nop 7", "s_nop 3")
    S = SA[0]
    m, t2 = T0 + 3, T0 + 4
    e(f"v_max3_f32 v{m}, v{S}, v{S+1}, v{S+2}")
    for r in range(3, 15, 2):
        e(f"v_max3_f32 v{m}, v{S+r}, v{S+r+1}, v{m}")
    e(f"v_max_f32 v{m}, v{S+15}, v{m}", f"v_mov_b32 v{t2}, v{m}", "s_nop 1",
      f"v_permlane32_swap_b32 v{m}, v{t2}", "s_nop 1", f"v_max_f32 v{m}, v{m}, v{t2}",
      f"v_sub_f32 v{m}, 0x{f2u(-90.0):08x}, v{m}", f"v_lshrrev_b32 v{m}, 16, v{m}",
      f"s_mov_b64 exec, s[{LOW}:{LOW+1}]", f"v_or_b32 v{Q2B_+1}, 0x{NEGF:08x}, v{m}", "s_mov_b64 exec, -1",
      "s_waitcnt lgkmcnt(0)", "s_nop 0")
    e(mf1(SA[0], 0, Q1B_, MF), mf2(SA[0], 0, Q2B_))
    if SPLIT:
        e("s_waitcnt vmcnt(5)", "s_barrier", *rdV(0, 0), "s_nop 7", "s_nop 1")
    else:
        e("s_nop 7", "s_nop 7")
    stamp(e, 4)
    for t in range(9):
        extra = order[:1]
        order = order[1:]
        if "bprio" in EXP:
            e(f"s_cmp_eq_u32 s21, {t & 1}", f"s_cbranch_scc1 {P}_BP{t}", "s_setprio 0", f"s_branch {P}_BQ{t}")
            e.lab(f"{P}_BP{t}")
            e("s_setprio 1")
            e.lab(f"{P}_BQ{t}")
        if "byoung" in EXP and t == 0:
            e("s_cmp_eq_u32 s21, 0", f"s_cbranch_scc1 {P}_BY", "s_setprio 1")
            e.lab(f"{P}_BY")
        b_iter(e, t, t > 0, t < 8, t < 7, ML if t == 7 else None, extra)
    assert not order
    if "bprio" in EXP or "byoung" in EXP:
        e("s_setprio 0")
    stamp(e, 5)
    e("s_nop 1", pv(OA, 0, 1, SA[0]), "s_nop 7", "s_nop 7")
    e("s_mov_b32 s56, s8", "s_mov_b32 s57, s9", f"s_mov_b32 s58, {HB}", "s_mov_b32 s59, 0x00020000",
      "s_mov_b32 s48, 0", "s_sub_u32 s51, s18, 8", "s_max_i32 s49, s51, 0", "s_mov_b32 s50, s18",
      "s_mov_b32 s52, s18")
    check(e, f"{P}_SLOWB", f"{P}_DONEB")
    normalize(e, OBS)
    stamp(e, 6)
    e("s_waitcnt vmcnt(0)")
    stamp(e, 7)
    e(f"buffer_store_dwordx4 {vr(OBS,4)}, v{ADA}, s[12:15], s54 offen{SC(2)}",
      f"s_mov_b64 exec, s[{LOW}:{LOW+1}]", f"buffer_store_dword v{OBS+4}, v{ADB}, s[12:15], s54 offen",
      "s_mov_b64 exec, -1")
    e("s_barrier")
    stamp(e, 8)
    e("s_lshl_b32 s24, s21, 10", f"v_add_u32 v{AK1}, s24, v{L16}", "s_lshl_b32 s24, s21, 8",
      f"v_add_u32 v{AK2}, s24, v{AK2L}", "s_mul_i32 s24, s21, 1152", f"v_add_u32 v{AV}, s24, v{AVL}")
    if VL:
        e(f"v_add_u32 v{AV2}, v{DV}, v{AV}")
    e(*rdK(0, 0), *rdK(1, 2), *rdV(0, 0))
    for R in (SA[1], SB_[1], OA, OB):
        e(f"v_mfma_f32_32x32x8bf16_1k {vr(R,16)}, {vr(ZZ,2)}, {vr(ZZ,2)}, 0")
    e("s_waitcnt lgkmcnt(0)")
    e(mf1(SA[0], 0, Q1A[0], None), mf1(SB_[0], 0, Q1A[1], None), mf2(SA[0], 0, Q2A[0]), mf2(SB_[0], 0, Q2A[1]),
      "s_mov_b32 s47, 0", "s_nop 3")
    e(f"s_add_u32 s53, s20, {4*8192}")
    e(*dma(4, (20, LK2 + 8192), 20, K2O + 8192))
    e("s_mov_b32 m0, s53", f"s_add_u32 s3, s53, {K1O}", f"buffer_load_dwordx4 v{L16}, s[4:7], s3 offen lds",
      f"s_add_u32 m0, s53, {LV + 8192}", f"s_add_u32 s3, s53, {VO + 8192}",
      f"buffer_load_dwordx4 v{L16}, s[4:7], s3 offen lds", "s_add_u32 s53, s53, 8192")
    stamp(e, 9)
    if "prio" in EXP:
        e("s_cmp_lt_u32 s19, 4", f"s_cbranch_scc1 {P}_NOPRIO", "s_setprio 1")
        e.lab(f"{P}_NOPRIO")
    rnd = ["s_mov_b32 m0, s53", f"s_add_u32 s3, s53, {K1O}", f"buffer_load_dwordx4 v{L16}, s[4:7], s3 offen lds",
           f"s_add_u32 m0, s53, {LV + 8192}", f"s_add_u32 s3, s53, {VO + 8192}",
           f"buffer_load_dwordx4 v{L16}, s[4:7], s3 offen lds", "s_add_u32 s53, s53, 8192"]
    if "nowopf" not in EXP:
        e("s_cmp_eq_u32 s19, 0", f"s_cbranch_scc0 {P}_NOWO",
          "s_cmp_lt_u32 s2, 128", "s_cselect_b32 s36, s36, s38", "s_cselect_b32 s37, s37, s39",
          "s_mov_b32 s38, 663552", "s_mov_b32 s39, 0x00020000",
          "s_and_b32 s3, s2, 127", "s_mul_i32 s3, s3, 5184", f"v_lshlrev_b32 v{T0}, 6, v{LANE}",
          f"buffer_load_dword v210, v{T0}, s[36:39], s3 offen",
          f"buffer_load_dword v211, v{T0}, s[36:39], s3 offen offset:4032")
        e.lab(f"{P}_NOWO")
    e.lab(f"{P}_ALOOP")
    e("s_cmp_lt_u32 s47, 3", f"s_cbranch_scc0 {P}_NODMA", *rnd, f"s_branch {P}_NOBAR")
    e.lab(f"{P}_NODMA")
    e("s_cmp_eq_u32 s47, 3", f"s_cbranch_scc0 {P}_NOBAR", "s_waitcnt vmcnt(0)", "s_barrier")
    e.lab(f"{P}_NOBAR")
    for s in range(4):
        a_step(e, s)
    if VL:
        e(f"v_add_u32 v{AV2}, 9216, v{AV2}")
    e(f"v_add_u32 v{AK1}, 8192, v{AK1}", f"v_add_u32 v{AK2}, 2048, v{AK2}", f"v_add_u32 v{AV}, 9216, v{AV}",
      "s_add_u32 s47, s47, 1", "s_cmp_lt_u32 s47, 8", f"s_cbranch_scc1 {P}_ALOOP")
    stamp(e, 10)
    e(pv(OA, 1, 1, SA[1]), pv(OB, 1, 1, SB_[1]), "s_setprio 0")
    e("s_mul_i32 s24, s19, 3072", f"v_add_u32 v{T0+5}, s24, v{L16}", "s_xor_b32 s25, s19, 4",
      "s_mul_i32 s25, s25, 3072", f"v_add_u32 v{T0+6}, s25, v{L16}", "s_waitcnt lgkmcnt(0)", "s_nop 7", "s_nop 3",
      "s_cmp_eq_u32 s21, 0", f"s_cbranch_scc0 {P}_XB")
    for j in range(3):
        e(f"ds_write_b128 v{T0+5}, {vr(OB+4*j,4)} offset:{1024*j}")
    e(f"s_branch {P}_XJ")
    e.lab(f"{P}_XB")
    for j in range(3):
        e(f"ds_write_b128 v{T0+5}, {vr(OA+4*j,4)} offset:{1024*j}")
    e("s_nop 2")
    for r in range(12):
        e(f"v_mov_b32 v{OA+r}, v{OB+r}")
    for r in range(4):
        e(f"v_mov_b32 v{Q1A[0]+r}, v{Q1A[1]+r}")
    e(f"v_mov_b32 v{Q2A[0]}, v{Q2A[1]}")
    e.lab(f"{P}_XJ")
    e("s_waitcnt lgkmcnt(0)", "s_barrier")
    for j in range(3):
        e(f"ds_read_b128 {vr(OB+4*j,4)}, v{T0+6} offset:{1024*j}")
    e("s_mov_b32 s56, s4", "s_mov_b32 s57, s5", f"s_mov_b32 s58, {HB}", "s_mov_b32 s59, 0x00020000",
      "s_mov_b32 s48, 1", "s_mov_b32 s49, 0", "s_mov_b32 s50, 63", "s_mov_b32 s51, -1", "s_mov_b32 s52, -1")
    e("s_waitcnt lgkmcnt(0)")
    for r in range(11):
        e(f"v_add_f32 v{OA+r}, v{OA+r}, v{OB+r}")
    check(e, f"{P}_SLOWA", f"{P}_DONEA")
    normalize(e, OBS)
    e(f"buffer_store_dwordx4 {vr(OBS,4)}, v{ADA}, s[12:15], 0 offen{SC(2)}",
      f"s_mov_b64 exec, s[{LOW}:{LOW+1}]", f"buffer_store_dword v{OBS+4}, v{ADB}, s[12:15], 0 offen")
    if PROF:
        e("s_mov_b64 exec, -1")
        stamp(e, 11)
        e("s_waitcnt vmcnt(0)")
        stamp(e, 12)
        stamp_dump(e, 1, 16, P)
    e.lab(f"{P}_END")
    e("s_endpgm")
    e.lab(f"{P}_SLOWB")
    e(f"v_and_b32 v{Q2B_+1}, 0xffff0000, v{Q2B_+1}", f"s_branch {P}_SLOW")
    e.lab(f"{P}_SLOWA")
    for r in range(4):
        e(f"v_mov_b32 v{Q1B_+r}, v{Q1A[0]+r}")
    e(f"v_mov_b32 v{Q2B_}, v{Q2A[0]}", f"v_mov_b32 v{Q2B_+1}, 0")
    slow_path(e, P)
    return dict(name="attn_kernel", vgpr=215 if VL else 212, grid=256, lds=163840)
```

```python
from gen import *

VL = "vl" in os.environ.get("EXP", "")
LW = 16896
SB, NB = LW + 4 * 3104, int(os.environ.get("NB3", "4"))
LA = int(os.environ.get("LA3", "2"))
OT = 2097152
XS, WS, ACC = [16, 24], [32, 56], 80
VX, VW, VT = [8, 9], 10, 12


def reads(j, st, tail):
    X = []
    for i in range(2):
        if tail:
            X.append([f"ds_read_b32 v{XS[st]+4*i+q}, v{VT} offset:{8448*j + 1056*(q >> 1) + 512*(q & 1) + 64*i}"
                      for q in range(4)])
        else:
            X.append([f"ds_read_b128 {vr(XS[st]+4*i,4)}, v{VX[j]} offset:{2048*i}"])
    W = [[f"ds_read_b64_tr_b16 {vr(WS[st]+4*T+2*h,2)}, v{VW} offset:{32*T + 768*h + 6208*j}" for h in range(2)]
         for T in range(6)]
    L = X[0] + W[0] + X[1]
    for T in range(1, 6):
        L += W[T]
    return L


def mfmas(st, first):
    L = []
    for T in range(6):
        for i in range(2):
            a = ACC + 4 * (2 * T + i)
            L.append(f"v_mfma_f32_16x16x32_bf16 {vr(a,4)}, {vr(WS[st]+4*T,4)}, {vr(XS[st]+4*i,4)}, "
                     + ("0" if first else vr(a, 4)))
    return L


def compute(e):
    stamp(e, 1)
    e("s_barrier")
    stamp(e, 2)
    e(*reads(0, 0, False))
    e("s_waitcnt lgkmcnt(0)")
    for s in range(9):
        for j in range(2):
            M = mfmas(j, s == 0 and j == 0)
            if j == 0:
                R = reads(1, 1, s == 8)
            elif s < 8:
                d = ((s + 1) % NB - s % NB) * SB
                lit = f"0x{d & 0xffffffff:08x}"
                R = [f"v_add_u32 v{r}, {lit}, v{r}" for r in (VX[0], VW, VT)] + reads(0, 0, s == 7) \
                    + [f"v_add_u32 v{VX[1]}, {lit}, v{VX[1]}"]
            else:
                R = []
            k = 0
            for m in M:
                e(m)
                for _ in range(2):
                    if k < len(R):
                        e(R[k]); k += 1
            e(*R[k:])
            if R:
                e("s_waitcnt lgkmcnt(0)")
            if j == 0 and s < 8:
                e("s_barrier")
                stamp(e, 3 + s)


def loader(e, issue, n):
    for s in range(LA):
        issue(s)
    stamp(e, 1)
    e(f"s_waitcnt vmcnt({(LA-1)*n})")
    stamp(e, 2)
    e("s_barrier")
    issue(LA)
    for s in range(8):
        issued = min(s + LA, 8)
        e(f"s_waitcnt vmcnt({max(issued-(s+1),0)*n})")
        stamp(e, 3 + s)
        e("s_barrier")
        if s + LA + 1 <= 8:
            issue(s + LA + 1)


def gen_k3(e):
    P = "K3"
    e.lab("proj_kernel")
    e("s_cmp_ge_u32 s2, 192", f"s_cbranch_scc1 {P}_END")
    stamp(e, 0)
    e("s_load_dwordx2 s[24:25], s[0:1], 16", "s_load_dwordx2 s[26:27], s[0:1], 40",
      "s_load_dwordx2 s[28:29], s[0:1], 48", "s_load_dwordx2 s[32:33], s[0:1], 64")
    e("v_lshrrev_b32 v1, 6, v0", "v_and_b32 v2, 63, v0",
      "s_and_b32 s16, s2, 1", "s_and_b32 s3, s2, 7", "v_readfirstlane_b32 s19, v1",
      "s_lshr_b32 s3, s3, 1", "s_lshl_b32 s3, s3, 2",
      "s_lshr_b32 s20, s2, 3", "s_and_b32 s17, s20, 3", "s_add_u32 s17, s17, s3", "s_lshr_b32 s18, s20, 2")
    e("s_waitcnt lgkmcnt(0)")
    e("s_mul_i32 s3, s16, 2359296", f"s_add_u32 s3, s3, {OO}", "s_add_u32 s34, s32, s3", "s_addc_u32 s35, s33, 0")
    srd(e, 4, 34, 35, 2359296)
    e("s_cmp_eq_u32 s16, 0", "s_cselect_b32 s36, s24, s26", "s_cselect_b32 s37, s25, s27")
    srd(e, 8, 36, 37, 663552)
    e("s_cmp_ge_u32 s19, 4", f"s_cbranch_scc1 {P}_LOAD")
    srd(e, 12, 28, 29, 4718592)
    e("v_and_b32 v3, 15, v2", "v_lshrrev_b32 v4, 4, v2", "s_lshl_b32 s3, s19, 5", "v_add_u32 v6, s3, v3",
      "v_lshrrev_b32 v5, 3, v6", "v_lshlrev_b32 v5, 10, v5", "v_bfe_u32 v7, v2, 1, 2", "v_lshl_add_u32 v5, v7, 8, v5",
      "v_lshrrev_b32 v13, 1, v4", "v_xor_b32 v7, v7, v13", "v_lshl_add_u32 v5, v7, 6, v5",
      "v_and_b32 v7, 1, v2", "v_lshl_add_u32 v5, v7, 5, v5", "v_and_b32 v7, 1, v4",
      f"v_lshl_add_u32 v{VX[0]}, v7, 4, v5", f"v_xor_b32 v{VX[1]}, 128, v{VX[0]}")
    e("v_mul_u32_u24 v7, 2112, v4", f"v_lshl_add_u32 v{VT}, v6, 2, v7")
    e("v_and_b32 v5, 1, v4", "v_mul_u32_u24 v5, 3104, v5", "v_lshrrev_b32 v7, 1, v4", "v_mul_u32_u24 v7, 1536, v7",
      "v_add_u32 v5, v5, v7", "v_bfe_u32 v7, v2, 2, 2", "v_mul_u32_u24 v7, 192, v7", "v_add_u32 v5, v5, v7",
      "v_and_b32 v7, 3, v2", "v_lshl_add_u32 v5, v7, 3, v5", f"v_add_u32 v{VW}, {LW}, v5")
    e("v_mul_u32_u24 v11, 2304, v3", "v_lshl_add_u32 v11, v4, 4, v11",
      "s_lshl_b32 s22, s17, 2", "s_add_u32 s22, s22, s19", "s_mul_i32 s22, s22, 73728",
      "s_mul_i32 s3, s16, 1152", "s_add_u32 s22, s22, s3", "s_mul_i32 s3, s18, 192", "s_add_u32 s22, s22, s3")
    compute(e)
    stamp(e, 11)
    e("s_nop 7")
    for p in range(3):
        for i in range(2):
            a, b = ACC + 4 * (4 * p + i), ACC + 4 * (4 * p + 2 + i)
            e(f"v_cvt_pk_bf16_f32 v{a}, v{a}, v{a+1}", f"v_cvt_pk_bf16_f32 v{a+1}, v{a+2}, v{a+3}",
              f"v_cvt_pk_bf16_f32 v{a+2}, v{b}, v{b+1}", f"v_cvt_pk_bf16_f32 v{a+3}, v{b+2}, v{b+3}",
              f"s_add_u32 s3, s22, {36864*i + 64*p}", "s_nop 0",
              f"v_permlane32_swap_b32 v{a}, v{a+2}", f"v_permlane32_swap_b32 v{a+1}, v{a+3}", "s_nop 0",
              f"v_permlane16_swap_b32 v{a}, v{a+2}", f"v_permlane16_swap_b32 v{a+1}, v{a+3}",
              f"buffer_store_dwordx4 {vr(a,4)}, v11, s[12:15], s3 offen{SC(3)}")
    e(f"s_branch {P}_FIN")
    e.lab(f"{P}_LOAD")
    e("s_sub_u32 s20, s19, 4")
    e("v_lshrrev_b32 v3, 4, v2", "v_bfe_u32 v4, v2, 2, 2", "v_xor_b32 v4, v4, v3", "v_lshlrev_b32 v5, 16, v4",
      "v_lshl_add_u32 v5, v3, 6, v5", "v_and_b32 v4, 3, v2", "v_lshl_add_u32 v5, v4, 4, v5",
      "s_lshl_b32 s3, s20, 10", "v_add_u32 v8, s3, v5")
    e("s_lshl_b32 s40, s17, 12", "s_lshl_b32 s41, s20, 12")
    e("s_add_u32 m0, s41, 0", "s_nop 0", "buffer_load_dwordx4 v8, s[4:7], s40 offen lds")
    e("v_lshrrev_b32 v3, 5, v2", "v_lshlrev_b32 v3, 13, v3", "v_and_b32 v4, 31, v2", "v_lshl_add_u32 v9, v4, 4, v3",
      "s_lshl_b32 s47, s17, 9", "s_lshl_b32 s3, s20, 16", "s_add_u32 s47, s47, s3", f"s_add_u32 s47, s47, {OT}",
      "s_mul_i32 s48, s20, 4224")
    e("s_lshr_b32 s3, s20, 1", "s_lshl_b32 s3, s3, 5", "s_and_b32 s21, s20, 1", "s_lshl_b32 s21, s21, 3",
      "s_add_u32 s21, s21, s3")
    for k in range(3):
        e(f"v_add_u32 v3, {64*k}, v2", "v_mul_u32_u24 v4, 5462, v3", "v_lshrrev_b32 v4, 16, v4",
          "v_mul_u32_u24 v5, 12, v4", "v_sub_u32 v5, v3, v5", "v_lshrrev_b32 v6, 3, v4", "v_and_b32 v4, 7, v4",
          "v_lshl_add_u32 v4, v6, 4, v4", "v_add_u32 v4, s21, v4",
          "v_lshrrev_b32 v6, 4, v4", "v_lshl_add_u32 v7, v6, 1, v4",
          *(["v_and_b32 v6, 1, v6", "v_lshl_add_u32 v7, v6, 1, v7"] if VL else []),
          "v_mul_u32_u24 v7, 1152, v7",
          f"v_lshl_add_u32 v{10+k}, v5, 4, v7",
          "v_lshrrev_b32 v6, 1, v4", "v_lshl_add_u32 v7, v6, 4, v4",
          *(["v_and_b32 v6, 1, v6", "v_xor_b32 v6, 1, v6", "v_lshl_add_u32 v7, v6, 4, v7"] if VL else
            ["v_add_u32 v7, 16, v7"]),
          "v_mul_u32_u24 v7, 1152, v7", f"v_lshl_add_u32 v{13+k}, v5, 4, v7")
    e("s_mul_i32 s46, s18, 192", "s_mul_i32 s42, s20, 3104", f"s_add_u32 s42, s42, {LW}")
    first = [True]

    def issue(s):
        base = (s % NB) * SB
        for i in range(4):
            if first[0] and i == 0:
                first[0] = False
                continue
            if s < 8:
                e(f"s_add_u32 m0, s41, {base + 1024*i}", f"s_add_u32 s43, s40, {262144*s + 256*i}",
                  "buffer_load_dwordx4 v8, s[4:7], s43 offen lds")
            else:
                e(f"s_add_u32 m0, s48, {base + 1056*i}", f"s_add_u32 s43, s47, {16384*i}",
                  "buffer_load_dwordx4 v9, s[4:7], s43 offen lds")
        for k in range(3):
            e(f"s_add_u32 m0, s42, {base + 1024*k}", f"s_add_u32 s43, s46, {82944*s if s < 8 else 0}",
              f"buffer_load_dwordx4 v{(10 if s < 8 else 13)+k}, s[8:11], s43 offen lds")
    loader(e, issue, 7)
    e.lab(f"{P}_FIN")
    if PROF:
        stamp(e, 13)
        e("s_waitcnt vmcnt(0)")
        stamp(e, 14)
        stamp_dump(e, 2, 15, P)
    e.lab(f"{P}_END")
    e("s_endpgm")
    return dict(name="proj_kernel", vgpr=128, grid=192, lds=NB * SB)
```
